```python
import torch

def _softmax(x, axis=-1):
    return torch.softmax(x, dim=axis)
def _gelu(x):
    return torch.nn.functional.gelu(x, approximate="tanh")
def _silu(x):
    return torch.nn.functional.silu(x)
def _sigmoid(x):
    return torch.sigmoid(x)
def _layernorm(x, axis=-1, eps=1e-5):
    m = x.mean(dim=axis, keepdim=True)
    v = x.var(dim=axis, keepdim=True, unbiased=False)
    return (x - m) / torch.sqrt(v + eps)
def _scatter_add(tgt, idx, src, axis=0):
    return tgt.clone().index_add_(axis, idx, src)
def _segment_sum(src, seg, n):
    out = torch.zeros((n,) + src.shape[1:], dtype=src.dtype)
    return out.index_add_(0, seg, src)
def _pad(x, pw):
    flat = tuple(v for pair in reversed(pw) for v in pair)
    return torch.nn.functional.pad(x, flat)

kernel_name = 'standalone__deep_cross_xdeepfm__recsys'

def setup_inputs():

    _w = (lambda a: (lambda t: t.to(torch.bfloat16) if t.is_floating_point() else t)(torch.as_tensor(a)))
    B, F, D, L = 4096, 26, 16, 3
    V = min(1000000, 100000)
    Din = F * D
    return {
        "idx": _w((lambda lo, hi, *s: torch.randint(lo, hi, s))(0, V, B, F).to(torch.int64)),
        "table": _w((lambda *s: torch.randn(*s, dtype=torch.bfloat16) * 0.8)(V, D)),
        "ws_cin": _w((lambda *s: torch.randn(*s, dtype=torch.bfloat16) * 0.2)(L, F, F, F) * (1.0 / F)),
        "w_cin_out": _w((lambda *s: torch.randn(*s, dtype=torch.bfloat16) * 0.2)(L * F) * ((L * F) ** -0.5)),
        "w_dnn1": _w((lambda *s: torch.randn(*s, dtype=torch.bfloat16) * 0.8)(Din, Din) * (Din ** -0.5)),
        "b_dnn1": _w((lambda *s: torch.randn(*s, dtype=torch.bfloat16) * 3.2)(Din) * 0.1),
        "w_dnn2": _w((lambda *s: torch.randn(*s, dtype=torch.bfloat16) * 0.2)(Din) * (Din ** -0.5)),
        "b_out": _w((lambda *s: torch.randn(*s, dtype=torch.bfloat16) * 0.4)(1)),
    }

def reference(idx, table, ws_cin, w_cin_out, w_dnn1, b_dnn1, w_dnn2, b_out):
    x0 = table[idx]
    B = x0.shape[0]
    L = ws_cin.shape[0]
    xk = x0
    pooled = []
    for l in range(L):
        xk = torch.einsum('bid,bjd,hij->bhd', xk, x0, ws_cin[l])
        pooled.append(xk.sum(axis=-1))
    p_plus = torch.stack(pooled, axis=1).reshape(B, -1)
    logit_cin = p_plus @ w_cin_out
    h = x0.reshape(B, -1)
    h = _gelu(h @ w_dnn1 + b_dnn1)
    logit_dnn = h @ w_dnn2
    return logit_cin + logit_dnn + b_out
```

```python
import re

def regs_of(op):
    op = op.strip()
    m = re.fullmatch(r'([vsa])\[(\d+):(\d+)\]', op)
    if m:
        return [(m.group(1), i) for i in range(int(m.group(2)), int(m.group(3)) + 1)]
    m = re.fullmatch(r'([vsa])(\d+)', op)
    if m:
        return [(m.group(1), int(m.group(2)))]
    if op == 'vcc': return [('s', 106), ('s', 107)]
    if op == 'vcc_lo': return [('s', 106)]
    if op == 'vcc_hi': return [('s', 107)]
    if op == 'exec': return [('x', 0)]
    if op in ('exec_lo', 'exec_hi'): return [('x', 0)]
    if op == 'm0': return [('m', 0)]
    return []

TRANS = ('v_exp_f32', 'v_log_f32', 'v_rcp_f32', 'v_rsq_f32', 'v_sqrt_f32', 'v_sin_f32', 'v_cos_f32')

class Emit:
    def __init__(self):
        self.lines = []
        self.n = 0
        self.last = {}
        self.snap = {}
        self.ds_q = []
        self.ds_id = 0
        self.nops = 0
        self.cond_depth = 0
    def raw(self, t):
        self.lines.append(t)
    def comment(self, t):
        self.lines.append('    ; ' + t)
    def _ev(self, reg, kind):
        self.last.setdefault(reg, {})[kind] = self.n
    def _age(self, reg, kind):
        d = self.last.get(reg)
        if not d or kind not in d: return 10**6
        return self.n - d[kind] - 1
    def _need(self, need):
        while need > 0:
            k = min(need, 16)
            self.lines.append(f'    s_nop {k-1}')
            self.n += k; self.nops += k; need -= k
    def label(self, name):
        for snap_n, snap in self.snap.pop(name, []):
            for reg, d in snap.items():
                for kind, idx in d.items():
                    if kind == 'mfma_range':
                        cur = self.last.setdefault(reg, {})
                        if cur.get('mfma_range') != idx: cur['mfma_range'] = None
                        continue
                    age_taken = snap_n - idx
                    cur = self.last.setdefault(reg, {})
                    age_cur = self.n - cur[kind] if kind in cur else 10**6
                    if age_taken < age_cur:
                        cur[kind] = self.n - age_taken
        self.lines.append(f'{name}:')
    def I(self, text):
        t = text.strip()
        t0 = t.split(';')[0].strip()
        m = re.match(r'(\S+)\s*(.*)', t0)
        opc, rest = m.group(1), m.group(2)
        ops = [o.strip() for o in re.split(r',\s*(?![^\[]*\])', rest)] if rest else []
        mods = ''
        if ops:
            parts = ops[-1].split()
            if len(parts) > 1:
                ops[-1] = parts[0]; mods = ' '.join(parts[1:])
        opn = [o.lstrip('-').replace('abs(', '').replace(')', '').strip('|') for o in ops]
        base = opc.replace('_e32', '').replace('_e64', '').replace('_dpp', '').replace('_sdwa', '')
        is_mfma = base.startswith('v_mfma') or base.startswith('v_smfmac')
        is_valu = base.startswith('v_') and not is_mfma
        is_ds = base.startswith('ds_')
        is_vmem = base.startswith('buffer_') or base.startswith('global_')
        is_salu = base.startswith('s_')
        is_dpp = ('row_' in mods or 'quad_perm' in mods or '_dpp' in opc)
        writes, reads = [], []
        need = 0
        if is_mfma:
            D = regs_of(opn[0]); A = regs_of(opn[1]); B = regs_of(opn[2]); C = regs_of(opn[3])
            passes = 8 if '32x32x16' in base else 4
            for r in A + B + C:
                need = max(need, 2 - self._age(r, 'valu_w'))
            for r in A + B:
                for p, w in ((4, 8), (8, 12)):
                    need = max(need, w - self._age(r, f'mfma_w{p}'))
            sameC = (opn[0] == opn[3])
            for r in C:
                for p, w in ((4, 6), (8, 10)):
                    a = self._age(r, f'mfma_w{p}')
                    if a < w:
                        if self.last[r].get('mfma_range') == (opn[3], passes) and p == passes:
                            continue
                        need = max(need, w - a)
            for r in D:
                for p, w in ((4, 6), (8, 10)):
                    a = self._age(r, f'mfma_w{p}')
                    if a < w and self.last[r].get('mfma_range') != (opn[0], passes):
                        need = max(need, w - a)
            self._need(need)
            for r in D:
                self._ev(r, f'mfma_w{passes}'); self.last[r]['mfma_range'] = (opn[0], passes)
            for r in C:
                self._ev(r, f'mfma_c{passes}')
            self.lines.append('    ' + t); self.n += 1
            return
        if is_valu:
            nd = 1
            if base in ('v_cmp_eq_u32', 'v_cmp_lt_u32', 'v_cmp_gt_u32', 'v_cmp_le_u32', 'v_cmp_ge_u32', 'v_cmp_ne_u32', 'v_cmp_lt_i32', 'v_cmp_gt_i32', 'v_cmp_le_i32', 'v_cmp_ge_i32'):
                writes = regs_of(opn[0]); reads = sum((regs_of(o) for o in opn[1:]), [])
            elif base in ('v_add_co_u32', 'v_addc_co_u32'):
                writes = regs_of(opn[0]) + regs_of(opn[1]); reads = sum((regs_of(o) for o in opn[2:]), [])
            elif base in ('v_permlane32_swap_b32', 'v_permlane16_swap_b32'):
                writes = regs_of(opn[0]) + regs_of(opn[1]); reads = writes
            else:
                writes = regs_of(opn[0]); reads = sum((regs_of(o) for o in opn[1:]), [])
                if base in ('v_fmac_f32', 'v_writelane_b32') or 'd16' in base or is_dpp:
                    reads = reads + writes
                if base == 'v_cndmask_b32' and len(opn) == 3:
                    reads = reads + regs_of('vcc')
            for r in reads + writes:
                if r[0] == 'v':
                    for p, w in ((4, 8), (8, 12)):
                        need = max(need, w - self._age(r, f'mfma_w{p}'))
            for r in writes:
                if r[0] == 'v':
                    for p, w in ((4, 3), (8, 7)):
                        need = max(need, w - self._age(r, f'mfma_c{p}'))
                    need = max(need, 2 - self._age(r, 'store_data'))
            for r in reads:
                if r[0] == 's':
                    need = max(need, 2 - self._age(r, 'valu_w'))
                if r[0] == 'v':
                    if base not in TRANS:
                        need = max(need, 1 - self._age(r, 'trans_w'))
                    if is_dpp or 'permlane' in base:
                        need = max(need, 2 - self._age(r, 'valu_w'))
                    if base in ('v_readfirstlane_b32', 'v_readlane_b32'):
                        need = max(need, 1 - self._age(r, 'valu_w'))
                    need = max(need, 1 - self._age(r, 'sdwa_w'))
            self._need(need)
            for r in writes:
                self._ev(r, 'valu_w')
                if base in TRANS: self._ev(r, 'trans_w')
                if '_sdwa' in opc or 'op_sel' in mods: self._ev(r, 'sdwa_w')
            self.lines.append('    ' + t); self.n += 1
            return
        if is_ds or is_vmem:
            allr = sum((regs_of(o) for o in opn), [])
            is_load = ('read' in base or 'load' in base)
            lds_dma = is_vmem and (' lds' in (' ' + mods) or 'load_lds' in base)
            if is_load and not lds_dma:
                dst = regs_of(opn[0]); src = sum((regs_of(o) for o in opn[1:]), [])
            else:
                dst = []; src = allr
            for r in allr:
                if r[0] == 'v':
                    for p, w in ((4, 8), (8, 12)):
                        need = max(need, w - self._age(r, f'mfma_w{p}'))
            for r in dst:
                for p, w in ((4, 3), (8, 7)):
                    need = max(need, w - self._age(r, f'mfma_c{p}'))
            if is_vmem:
                for r in src:
                    if r[0] == 's':
                        need = max(need, 5 - self._age(r, 'valu_w'))
                if lds_dma:
                    need = max(need, 1 - self._age(('m', 0), 'salu_w'))
            self._need(need)
            if is_vmem and 'store' in base and ('x4' in base or 'x3' in base):
                for r in regs_of(opn[1] if base.startswith('global') else opn[0]):
                    self._ev(r, 'store_data')
            self.lines.append('    ' + t); self.n += 1
            if is_ds:
                self.ds_id += 1
                self.ds_q.append((self.ds_id, self.cond_depth > 0))
                return self.ds_id
            return
        if is_salu:
            if base in ('s_cbranch_scc0', 's_cbranch_scc1', 's_branch', 's_cbranch_execz', 's_cbranch_vccz', 's_cbranch_vccnz'):
                self.lines.append('    ' + t); self.n += 1
                import copy
                self.snap.setdefault(opn[0], []).append((self.n, copy.deepcopy(self.last)))
                return
            if base == 's_nop':
                k = int(opn[0]) + 1
                self.lines.append('    ' + t); self.n += k
                return
            if opn and base not in ('s_waitcnt', 's_barrier', 's_cmp_eq_u32', 's_cmp_lg_u32', 's_cmp_ge_u32', 's_cmp_lt_u32', 's_cmp_gt_u32', 's_cmp_le_u32', 's_setprio', 's_endpgm', 's_sleep'):
                for o in opn[1:]:
                    for r in regs_of(o):
                        need = max(need, 4 - self._age(r, 'valu_w')) if r[0] == 's' else need
                self._need(need)
                for r in regs_of(opn[0]):
                    self._ev(r, 'salu_w')
            elif base.startswith('s_cmp'):
                for o in opn:
                    for r in regs_of(o):
                        need = max(need, 4 - self._age(r, 'valu_w')) if r[0] == 's' else need
                self._need(need)
            self.lines.append('    ' + t); self.n += 1
            if base == 's_waitcnt' and 'lgkmcnt(0)' in t:
                self.ds_q = []
            return
        raise ValueError('unknown instr ' + t)
    def wait_ds(self, ident, extra=''):
        ids = [i for i, c in self.ds_q]
        if ident not in ids:
            return
        pos = ids.index(ident)
        later = [c for (i, c) in self.ds_q[pos + 1:]]
        n = sum(1 for c in later if not c)
        n = min(n, 15)
        self.lines.append(f'    s_waitcnt lgkmcnt({n}){extra}'); self.n += 1
        self.ds_q = self.ds_q[pos + 1:] if n > 0 or later else []
        if n == 0:
            self.ds_q = []
    def wait_ds_all(self):
        self.I('s_waitcnt lgkmcnt(0)')
    def text(self):
        return '\n'.join(self.lines) + '\n'
```

```python
import sys, os
from emit import Emit

KN = "standalone__deep_cross_xdeepfm__recsys_kernel"

FR_P = 0; FST = 1040; FR_Q = 28 * FST
XB = 58240; XS = 912
HB = 72832
RB = 75264; SLOT = 27648; WROW = 864
WB1 = RB + SLOT
STG = 13312
SM = 158208; SM_A0 = SM; SM_B1 = SM + 64; SM_W2 = SM + 896
RED = 159936
LDS_TOTAL = 163840
CIN_L = 35152

S_IDX, S_TAB, S_CIN, S_W1 = 24, 28, 32, 36
S_A0, S_A1, S_A2, S_B1, S_W2, S_OUT = 40, 44, 48, 52, 56, 60
sW, sK = 64, 65
sBO = 66
sI0 = 67
sT0, sT1, sT2, sT3 = 68, 69, 70, 71
sM00, sM10, sM11 = 72, 74, 76
sMN10 = 78
sE52 = 80
sStage, sSrc = 82, 83
sC0, sC1, sC2 = 84, 85, 86
sX0, sX1 = 88, 90
sDma = 92
def srd(n): return f"s[{n}:{n+3}]"
def sp(n): return f"s[{n}:{n+1}]"
def vr(a, n=1): return f"v{a}" if n == 1 else f"v[{a}:{a+n-1}]"

vL = 0
XR = 2
ACCP = 32; ACCQ = 48
ZT = 64; ZF = 72
AF = [76, 84]
DACC = 92
WF = 108
XF = 124
W2V = 128
vAF = 132; vTRW = 133; vXF = 134; vDMA = 135
vTRX = 139
XP = 140
TMP = 154
vN, vG, vR4, vC4 = 176, 177, 178, 179
vWA = 180
vWB = 183
DD = [186, 198]
DC = 210
vSO = 216
vA2 = 220
vA1 = 224
SEL = 2
UACC = 18
FIX = 34
UB = [42, 50]
vTS = 58
HF = 60
GF = [68, 76]
vTA = 84
FF = 2
EF = 60
vIDX = 68
vFO = 72
vTL = 76

def i0_of(k): return 7 * k - max(0, k - 2)

def step_list():
    st = []
    for b in range(7):
        for a in range(b + 1):
            st.append((a, b))
    return st

def build(debug=None, opts=None):
    opts = opts or {}
    e = Emit()
    I = e.I
    I('s_cmp_ge_u32 s2, 256')
    I('s_cbranch_scc1 L_end')
    I('s_load_dwordx16 s[4:19], s[0:1], 0')
    I('s_load_dwordx2 s[20:21], s[0:1], 64')
    if debug:
        I('s_load_dwordx2 s[22:23], s[0:1], 80')
    I(f'v_lshrrev_b32 v1, 6, v0')
    I(f'v_and_b32 v{vL}, 63, v0')
    I(f'v_readfirstlane_b32 s{sW}, v1')
    I(f'v_and_b32 v{vN}, 15, v{vL}')
    I(f'v_lshrrev_b32 v{vG}, 4, v{vL}')
    I(f'v_bfe_u32 v{vR4}, v{vL}, 2, 2')
    I(f'v_and_b32 v{vC4}, 3, v{vL}')
    I(f's_and_b32 s{sK}, s{sW}, 3')
    I(f's_mul_i32 s{sI0}, s{sK}, 7')
    I(f's_cmp_eq_u32 s{sK}, 3')
    I(f's_cselect_b32 s{sT0}, 1, 0')
    I(f's_sub_u32 s{sI0}, s{sI0}, s{sT0}')
    I(f's_mov_b32 s{sE52}, -1')
    I(f's_mov_b32 s{sE52+1}, 0x000fffff')
    a, b, c, d = TMP, TMP + 1, TMP + 2, TMP + 3
    vHS, vPB = TMP + 4, TMP + 5
    I(f'v_lshrrev_b32 v{a}, 5, v{vL}')
    I(f'v_and_b32 v{b}, 1, v{vL}')
    I(f'v_lshlrev_b32 v{b}, 4, v{b}')
    I(f's_movk_i32 s{sC0}, 1352')
    I(f'v_mad_u32_u24 v{vHS}, v{a}, s{sC0}, v{b}')
    I(f'v_bfe_u32 v{b}, v{vL}, 1, 4')
    I(f'v_xor_b32 v{vPB}, v{b}, v{a}')
    I(f's_cmp_ge_u32 s{sW}, 4')
    I('s_cbranch_scc1 L_Lpath')

    I(f's_movk_i32 s{sC1}, 624')
    for tm in range(4):
        I(f'v_xor_b32 v{a}, {2*tm}, v{vPB}')
        I(f'v_and_b32 v{b}, 1, v{a}')
        I(f'v_lshl_add_u32 v{vSO+tm}, v{b}, 5, v{vHS}')
        I(f'v_lshrrev_b32 v{b}, 1, v{a}')
        I(f'v_mad_u32_u24 v{vSO+tm}, v{b}, 52, v{vSO+tm}')
        I(f'v_lshrrev_b32 v{b}, 3, v{a}')
        I(f'v_mad_u32_u24 v{vSO+tm}, v{b}, s{sC1}, v{vSO+tm}')
    I(f'v_lshlrev_b32 v{a}, 3, v{vG}')
    I(f's_lshl_b32 s{sT0}, s{sK}, 3')
    I(f'v_mov_b32 v{b}, s{sT0}')
    I(f's_mul_i32 s{sStage}, s{sK}, {STG}')
    I(f's_mul_i32 s{sSrc}, s{sK}, 208')
    I(f's_add_u32 s{sSrc}, s{sSrc}, {2*CIN_L}')
    I('s_waitcnt lgkmcnt(0)')
    def mk_srd(n, lo, size, add=0):
        if add:
            I(f's_add_u32 s{n}, s{lo}, {add}')
            I(f's_addc_u32 s{n+1}, s{lo+1}, 0')
        else:
            I(f's_mov_b32 s{n}, s{lo}')
            I(f's_mov_b32 s{n+1}, s{lo+1}')
        I(f's_mov_b32 s{n+2}, {size}')
        I(f's_mov_b32 s{n+3}, 0x20000')
    mk_srd(S_A2, 10, 52, add=104)
    mk_srd(S_A1, 10, 52, add=52)
    mk_srd(S_CIN, 8, 3 * CIN_L)
    I(f'buffer_load_dwordx2 {vr(vA2,2)}, v{a}, {srd(S_A2)}, 0 offen')
    I(f'buffer_load_dwordx2 {vr(vA2+2,2)}, v{a}, {srd(S_A2)}, 0 offen offset:32')
    I(f'buffer_load_dwordx2 {vr(vA1,2)}, v{b}, {srd(S_A1)}, 0 offen')
    I(f'buffer_load_dwordx2 {vr(vA1+2,2)}, v{b}, {srd(S_A1)}, 0 offen offset:32')
    for t in range(13):
        I(f's_add_u32 m0, s{sStage}, {t*1024}')
        I(f's_add_u32 s{sT1}, s{sSrc}, {t*2704}')
        I(f'buffer_load_dwordx4 v{vSO + (t & 3)}, {srd(S_CIN)}, s{sT1} offen lds')
    I('s_barrier')
    mk_srd(S_W1, 12, 346112)
    I(f's_load_dword s{sBO}, s[18:19], 0')
    for j in range(2):
        I(f'v_lshl_add_u32 v{a}, v{vG}, 2, v{vR4}')
        if j:
            I(f'v_add_u32 v{a}, 16, v{a}')
            I(f'v_min_u32 v{a}, 25, v{a}')
        I(f'v_and_b32 v{b}, 7, v{a}')
        I(f'v_lshlrev_b32 v{b}, 5, v{b}')
        I(f'v_lshl_add_u32 v{b}, v{a}, 9, v{b}')
        I(f'v_lshl_add_u32 v{b}, v{vC4}, 3, v{b}')
        I(f'v_add_u32 v{vTS+j}, s{sStage}, v{b}')
    common_setup(e, opts)
    I('s_waitcnt vmcnt(15)')
    I(f's_lshl_b32 s{sT0}, s{sK}, 2')
    for r in range(4):
        I(f's_add_u32 s{sT1}, s{sT0}, {r}')
        I(f'v_cmp_eq_u32 vcc, s{sT1}, v{vN}')
        for dw in range(4):
            I(f'v_cndmask_b32 v{SEL+4*r+dw}, 0, v{vA2+dw}, vcc')
    I('s_waitcnt vmcnt(13)')
    I(f'v_cmp_eq_u32 vcc, 10, v{vN}')
    for h in range(2):
        for q in range(2):
            I(f'v_lshlrev_b32 v{a}, 16, v{vA1+2*h+q}')
            I(f'v_and_b32 v{b}, 0xffff0000, v{vA1+2*h+q}')
            I(f'v_cndmask_b32 v{FIX+4*h+2*q}, 0, v{a}, vcc')
            I(f'v_cndmask_b32 v{FIX+4*h+2*q+1}, 0, v{b}, vcc')
    for r in range(16):
        I(f'v_mov_b32 v{UACC+r}, 0')
    I('s_waitcnt vmcnt(0) lgkmcnt(0)')
    def u2_reads(u):
        ids = []
        buf = UB[u & 1]
        for R in range(2):
            for j in range(2):
                t = vTA + (R * 2 + j)
                I(f'v_xor_b32 v{t}, {(2*u+R)*32}, v{vTS+j}') if (2*u+R)*32 > 64 or (2*u+R) > 0 else I(f'v_mov_b32 v{t}, v{vTS+j}')
        for R in range(2):
            for j in range(2):
                t = vTA + (R * 2 + j)
                ids.append(I(f'ds_read_b64_tr_b16 {vr(buf+4*R+2*j,2)}, v{t}'))
        return ids
    pend = u2_reads(0)
    for u in range(8):
        nxt = None
        if u == 4:
            I(f's_cmp_eq_u32 s{sK}, 3'); I('s_cbranch_scc1 L_u2done')
        if u == 6:
            I(f's_cmp_eq_u32 s{sK}, 2'); I('s_cbranch_scc1 L_u2done')
        if u + 1 < 8:
            if u + 1 in (4, 6):
                pass
            nxt = u2_reads(u + 1)
        e.wait_ds(pend[-1])
        buf = UB[u & 1]
        for R in range(2):
            acc = UACC + 8 * (u >> 2) + 4 * R
            I(f'v_mfma_f32_16x16x32_bf16 {vr(acc,4)}, {vr(SEL+4*(u&3),4)}, {vr(buf+4*R,4)}, {vr(acc,4)}')
        pend = nxt
    e.label('L_u2done')
    I('s_waitcnt lgkmcnt(0)')
    I(f'v_cmp_gt_u32 vcc, 10, v{vN}')
    for h in range(2):
        for r in range(4):
            acc = UACC + 8 * h + 4 + r
            I(f'v_cndmask_b32 v{acc}, v{FIX+4*h+r}, v{acc}, vcc')
    for R in range(2):
        for h in range(2):
            acc = UACC + 8 * h + 4 * R
            I(f'v_cvt_pk_bf16_f32 v{HF+4*R+2*h}, v{acc}, v{acc+1}')
            I(f'v_cvt_pk_bf16_f32 v{HF+4*R+2*h+1}, v{acc+2}, v{acc+3}')
    I(f'v_lshlrev_b32 v{a}, 4, v{vL}')
    I(f'v_add_u32 v{a}, {HB}, v{a}')
    I(f's_mov_b32 s{sX0}, 0xffff')
    I(f's_mov_b32 s{sX0+1}, 0')
    I(f's_lshl_b32 s{sT0}, s{sK}, 4')
    I(f's_lshl_b64 exec, {sp(sX0)}, s{sT0}')
    I(f'ds_write_b128 v{a}, {vr(HF,4)}')
    I(f'ds_write_b128 v{a}, {vr(HF+4,4)} offset:1024')
    I('s_mov_b64 exec, -1')
    I('s_waitcnt lgkmcnt(0)')
    I('s_barrier')
    dma_step(e, 0, 'U0')
    h0 = I(f'ds_read_b128 {vr(HF,4)}, v{a} offset:0')
    h1 = I(f'ds_read_b128 {vr(HF+4,4)}, v{a} offset:1024')
    for j in range(2):
        I(f'v_add_u32 v{vTS+j}, {WB1}, v{vTS+j}')
    I(f'v_cmp_gt_u32 {sp(sMN10)}, 10, v{vN}')
    def t_reads(u):
        ids = []
        buf = GF[u & 1]
        for R in range(2):
            for j in range(2):
                t = vTA + (R * 2 + j)
                if 2*u+R: I(f'v_xor_b32 v{t}, {(2*u+R)*32}, v{vTS+j}')
                else: I(f'v_mov_b32 v{t}, v{vTS+j}')
        for R in range(2):
            for j in range(2):
                t = vTA + (R * 2 + j)
                ids.append(I(f'ds_read_b64_tr_b16 {vr(buf+4*R+2*j,2)}, v{t}'))
        return ids
    pend = t_reads(0)
    prev = None
    for u in range(7):
        if u == 6:
            I(f's_cmp_ge_u32 s{sK}, 2'); I('s_cbranch_scc1 L_tlast')
        nxt = t_reads(u + 1) if u + 1 < 7 else None
        e.wait_ds(pend[-1])
        g = GF[u & 1]
        for dw in range(4):
            I(f'v_cndmask_b32 v{g+4+dw}, 0, v{g+4+dw}, {sp(sMN10)}')
        unit_mfma(e, g, g + 4, HF, HF + 4, DD[u & 1])
        if prev is not None:
            unit_store(e, DD[prev & 1], prev, FR_Q)
        prev = u; pend = nxt
    unit_store(e, DD[6 & 1], 6, FR_Q)
    I('s_branch L_folded')
    e.label('L_tlast')
    unit_store(e, DD[5 & 1], 5, FR_Q)
    I('s_branch L_folded')

    e.last = {}
    e.ds_q = []
    e.label('L_Lpath')
    for tm in range(4):
        I(f'v_xor_b32 v{a}, {2*tm}, v{vPB}')
        I(f'v_and_b32 v{b}, 1, v{a}')
        I(f'v_lshl_add_u32 v{vSO+tm}, v{b}, 5, v{vHS}')
        I(f'v_lshrrev_b32 v{b}, 1, v{a}')
        I(f'v_mad_u32_u24 v{vSO+tm}, v{b}, 52, v{vSO+tm}')
    I(f's_lshl_b32 s{sT0}, s2, 4')
    I(f's_lshl_b32 s{sT1}, s{sK}, 2')
    I(f's_add_u32 s{sT0}, s{sT0}, s{sT1}')
    I(f's_mul_i32 s{sT0}, s{sT0}, 104')
    I(f'v_lshrrev_b32 v{a}, 1, v{vL}')
    I(f'v_lshlrev_b32 v{a}, 2, v{a}')
    I(f'v_add_u32 v{a}, s{sT0}, v{a}')
    I(f'v_lshlrev_b32 v{b}, 4, v{vG}')
    I(f'v_mad_u32_u24 v{vFO}, v{vN}, 52, v{b}')
    I(f'v_add_u32 v{vFO+1}, 832, v{vFO}')
    I(f'v_cmp_gt_u32 vcc, 10, v{vN}')
    I(f'v_mov_b32 v{c}, 0x7ff00000')
    I(f'v_cndmask_b32 v{vFO+1}, v{c}, v{vFO+1}, vcc')
    I(f'v_lshlrev_b32 v{d}, 4, v{vL}')
    I(f's_mul_i32 s{sStage}, s{sK}, {STG}')
    I(f's_add_u32 s{sStage}, s{sStage}, {WB1}')
    I(f's_mul_i32 s{sSrc}, s{sI0}, 52')
    I(f's_add_u32 s{sSrc}, s{sSrc}, {CIN_L}')
    I('s_waitcnt lgkmcnt(0)')
    mk_srd(S_IDX, 4, 4096 * 104)
    for bb in range(4):
        I(f'buffer_load_dword v{vIDX+bb}, v{a}, {srd(S_IDX)}, 0 offen offset:{bb*104}')
    mk_srd(S_A0, 10, 52)
    mk_srd(S_B1, 14, 832)
    mk_srd(S_W2, 16, 832)
    I(f's_cmp_eq_u32 s{sK}, 0'); I('s_cbranch_scc0 L_sm1')
    I('s_mov_b32 exec_lo, 15'); I('s_mov_b32 exec_hi, 0')
    I(f's_mov_b32 m0, {SM_A0}'); I('s_nop 0')
    I(f'buffer_load_dwordx4 v{d}, {srd(S_A0)}, 0 offen lds')
    I('s_branch L_smdone')
    e.label('L_sm1')
    I(f's_mov_b64 exec, {sp(sE52)}')
    I(f's_cmp_eq_u32 s{sK}, 1'); I('s_cbranch_scc0 L_sm2')
    I(f's_mov_b32 m0, {SM_B1}'); I('s_nop 0')
    I(f'buffer_load_dwordx4 v{d}, {srd(S_B1)}, 0 offen lds')
    I('s_branch L_smdone')
    e.label('L_sm2')
    I(f's_cmp_eq_u32 s{sK}, 2'); I('s_cbranch_scc0 L_smdone')
    I(f's_mov_b32 m0, {SM_W2}'); I('s_nop 0')
    I(f'buffer_load_dwordx4 v{d}, {srd(S_W2)}, 0 offen lds')
    e.label('L_smdone')
    I('s_mov_b64 exec, -1')
    mk_srd(S_CIN, 8, 3 * CIN_L)
    mk_srd(S_TAB, 6, 3200000)
    I('s_barrier')
    for t in range(13):
        I(f's_add_u32 m0, s{sStage}, {t*1024}')
        I(f's_add_u32 s{sT1}, s{sSrc}, {t*2704}')
        I(f'buffer_load_dwordx4 v{vSO + (t & 3)}, {srd(S_CIN)}, s{sT1} offen lds')
    I(f's_mul_i32 s{sT0}, s{sI0}, 1352')
    for u in range(7):
        if u == 6:
            I(f's_cmp_ge_u32 s{sK}, 2'); I('s_cbranch_scc1 L_w0done')
        I(f's_add_u32 s{sT1}, s{sT0}, {u*1352}')
        for R in range(2):
            I(f'buffer_load_dwordx4 {vr(FF+8*u+4*R,4)}, v{vFO+R}, {srd(S_CIN)}, s{sT1} offen')
    e.label('L_w0done')
    I('s_waitcnt vmcnt(25)')
    I(f'v_and_b32 v{a}, 1, v{vL}')
    I(f'v_lshlrev_b32 v{a}, 4, v{a}')
    for bb in range(4):
        I(f'v_lshl_add_u32 v{vIDX+bb}, v{vIDX+bb}, 5, v{a}')
    I(f's_mul_i32 s{sT0}, s{sK}, {4*XS}')
    I(f's_mov_b64 exec, {sp(sE52)}')
    for bb in range(4):
        I(f's_add_u32 m0, s{sT0}, {XB + bb*XS}')
        I('s_nop 0')
        I(f'buffer_load_dwordx4 v{vIDX+bb}, {srd(S_TAB)}, 0 offen lds')
    I('s_mov_b64 exec, -1')
    mk_srd(S_W1, 12, 346112)
    I(f's_load_dword s{sBO}, s[18:19], 0')
    I(f'v_lshrrev_b32 v{a}, 4, v{vL}')
    I(f'v_mul_u32_u24 v{a}, {XS}, v{a}')
    I(f'v_lshl_add_u32 v{a}, v{vN}, 2, v{a}')
    I(f's_add_u32 s{sT0}, s{sT0}, {XB + 832}')
    I(f'v_add_u32 v{a}, s{sT0}, v{a}')
    I(f'v_cmp_gt_u32 vcc, 8, v{vN}')
    I(f'v_mov_b32 v{b}, 0x3f803f80')
    I(f'v_cndmask_b32 v{b}, 0, v{b}, vcc')
    I(f'ds_write_b32 v{a}, v{b}')
    for R in range(2):
        I(f'v_add_u32 v{a}, {16*R}, v{vN}')
        I(f'v_and_b32 v{b}, 1, v{a}')
        I(f'v_lshlrev_b32 v{b}, 4, v{b}')
        I(f'v_mov_b32 v{c}, 0x3f80')
        I(f'v_lshlrev_b32 v{b}, v{b}, v{c}')
        I(f'v_cmp_gt_u32 vcc, 26, v{a}')
        I(f'v_cndmask_b32 v{b}, 0, v{b}, vcc')
        I(f'v_lshrrev_b32 v{a}, 1, v{a}')
        I(f'v_lshlrev_b32 v{c}, 2, v{vG}')
        I(f'v_sub_u32 v{a}, v{a}, v{c}')
        for dw in range(4):
            I(f'v_cmp_eq_u32 vcc, {dw}, v{a}')
            I(f'v_cndmask_b32 v{EF+4*R+dw}, 0, v{b}, vcc')
    common_setup(e, opts)
    I('s_waitcnt vmcnt(16) lgkmcnt(0)')
    I('s_barrier')
    dma_step(e, 0, 'L0')
    prev = None
    for u in range(7):
        if u == 6:
            I(f's_cmp_ge_u32 s{sK}, 2'); I('s_cbranch_scc1 L_plast')
        n = 2 * (5 - u) + 7 if u <= 5 else 7
        I(f's_waitcnt vmcnt({n})')
        f = FF + 8 * u
        unit_mfma(e, f, f + 4, EF, EF + 4, DD[u & 1])
        if prev is not None:
            unit_store(e, DD[prev & 1], prev, FR_P)
        prev = u
    unit_store(e, DD[6 & 1], 6, FR_P)
    I('s_branch L_folded')
    e.label('L_plast')
    unit_store(e, DD[5 & 1], 5, FR_P)

    e.last = {}
    e.label('L_folded')
    I('s_nop 7')
    I('s_waitcnt lgkmcnt(0)')
    I('s_barrier')
    e.ds_q = []
    dma_step(e, 1, 'C1')
    dma_step(e, 2, 'C2')
    if debug == 'fold':
        I('s_waitcnt vmcnt(0)'); I('s_barrier')
        dump_lds(e)
        return finish(e, opts)
    main(e, debug, opts)
    return finish(e, opts)

def common_setup(e, opts):
    I = e.I
    a, b, c, d = TMP, TMP + 1, TMP + 2, TMP + 3
    I(f'v_bfe_u32 v{a}, v{vN}, 1, 1')
    I(f'v_mul_u32_u24 v{b}, 516, v{a}')
    I(f'v_and_b32 v{c}, 1, v{vN}')
    I(f'v_lshl_add_u32 v{b}, v{c}, 3, v{b}')
    I(f's_lshl_b32 s{sT0}, s{sI0}, 4')
    I(f'v_add_u32 v{b}, s{sT0}, v{b}')
    I(f'v_lshrrev_b32 v{c}, 2, v{vN}')
    I(f's_movk_i32 s{sC2}, {FST}')
    for ti, (M, N) in enumerate(((0, 0), (1, 0), (1, 1))):
        I(f'v_add_u32 v{a}, {4*M}, v{vG}')
        I(f'v_add_u32 v{d}, 1, v{a}')
        I(f'v_mul_u32_u24 v{d}, v{d}, v{a}')
        I(f'v_lshrrev_b32 v{d}, 1, v{d}')
        I(f'v_add3_u32 v{d}, v{d}, v{c}, {4*N}')
        I(f'v_mad_u32_u24 v{vWA+ti}, v{d}, s{sC2}, v{b}')
        I(f'v_xor_b32 v{vWB+ti}, 4, v{vWA+ti}')
    I(f'v_cmp_le_u32 {sp(sM00)}, v{c}, v{vG}')
    I(f's_mov_b32 s{sM10}, -1')
    I(f's_mov_b32 s{sM10+1}, 0xffff')
    I(f's_and_b64 {sp(sM11)}, {sp(sM00)}, {sp(sM10)}')
    I(f's_lshl_b32 s{sT0}, s{sW}, 6')
    I(f's_movk_i32 s{sC0}, 19419')
    I(f's_movk_i32 s{sC1}, 832')
    for u in range(4):
        I(f's_add_u32 s{sT1}, s{sT0}, {512*u}')
        I(f'v_add_u32 v{a}, s{sT1}, v{vL}')
        I(f'v_mul_u32_u24 v{c}, s{sC0}, v{a}')
        I(f'v_lshrrev_b32 v{c}, 20, v{c}')
        I(f'v_mul_u32_u24 v{d}, 54, v{c}')
        I(f'v_sub_u32 v{a}, v{a}, v{d}')
        I(f'v_min_u32 v{a}, 51, v{a}')
        I(f'v_lshlrev_b32 v{a}, 4, v{a}')
        I(f'v_mad_u32_u24 v{vDMA+u}, v{c}, s{sC1}, v{a}')
    I(f's_lshl_b32 s{sDma}, s{sW}, 10')
    I(f's_add_u32 s{sDma}, s{sDma}, {RB}')
    I(f'v_lshlrev_b32 v{vAF}, 4, v{vL}')
    I(f'v_lshrrev_b32 v{a}, 1, v{vG}')
    I(f'v_lshlrev_b32 v{a}, 4, v{a}')
    I(f'v_and_b32 v{c}, 1, v{vG}')
    I(f'v_lshl_add_u32 v{a}, v{c}, 2, v{a}')
    I(f'v_add_u32 v{a}, v{a}, v{vR4}')
    I(f's_movk_i32 s{sC0}, {WROW}')
    I(f's_lshl_b32 s{sT0}, s{sW}, 5')
    I(f's_add_u32 s{sT0}, s{sT0}, {RB}')
    I(f'v_mul_u32_u24 v{a}, s{sC0}, v{a}')
    I(f'v_lshl_add_u32 v{a}, v{vC4}, 3, v{a}')
    I(f'v_add_u32 v{vTRW}, s{sT0}, v{a}')
    I(f'v_lshrrev_b32 v{a}, 1, v{vG}')
    I(f'v_lshlrev_b32 v{a}, 5, v{a}')
    I(f'v_lshl_add_u32 v{a}, v{c}, 3, v{a}')
    I(f's_movk_i32 s{sC0}, {XS}')
    I(f'v_mad_u32_u24 v{a}, v{vN}, s{sC0}, v{a}')
    I(f'v_add_u32 v{vXF}, {XB}, v{a}')
    I(f'v_lshrrev_b32 v{a}, 1, v{vG}')
    I(f'v_lshlrev_b32 v{a}, 1, v{a}')
    I(f'v_xor_b32 v{a}, v{a}, v{vR4}')
    I(f'v_lshlrev_b32 v{a}, 5, v{a}')
    I(f'v_lshl_add_u32 v{a}, v{vC4}, 3, v{a}')
    I(f'v_mad_u32_u24 v{a}, v{c}, s{sC0}, v{a}')
    I(f's_mul_i32 s{sT0}, s{sW}, {2*XS}')
    I(f's_add_u32 s{sT0}, s{sT0}, {XB}')
    I(f'v_add_u32 v{vTRX}, s{sT0}, v{a}')

def dma_step(e, step, tag):
    I = e.I
    slot = step % 3
    for u in range(4):
        if u == 3:
            I(f's_cmp_ge_u32 s{sW}, 3'); I(f's_cbranch_scc1 L_dma_{tag}')
        I(f's_add_u32 m0, s{sDma}, {slot*SLOT + u*8192}')
        I(f's_mov_b32 s{sT3}, {step*26624}')
        I(f'buffer_load_dwordx4 v{vDMA+u}, {srd(S_W1)}, s{sT3} offen lds')
    e.label(f'L_dma_{tag}')

def unit_mfma(e, X0, X1, Y0, Y1, D):
    I = e.I
    def mf(d, A, B, first):
        I(f'v_mfma_f32_16x16x32_bf16 {vr(d,4)}, {vr(A,4)}, {vr(B,4)}, ' + ('0' if first else vr(d, 4)))
    mf(D, X0, Y0, True); mf(D + 4, X1, Y0, True); mf(D + 8, X1, Y1, True)
    mf(D, Y0, X0, False); mf(D + 4, Y1, X0, False); mf(D + 8, Y1, X1, False)

def unit_store(e, D, u, setbase):
    I = e.I
    for ti in range(3):
        I(f'v_cvt_pk_bf16_f32 v{DC+2*ti}, v{D+4*ti}, v{D+4*ti+1}')
        I(f'v_cvt_pk_bf16_f32 v{DC+2*ti+1}, v{D+4*ti+2}, v{D+4*ti+3}')
    for ti, m in enumerate((sM00, sM10, sM11)):
        I(f's_mov_b64 exec, {sp(m)}')
        I(f'ds_write_b32 v{vWA+ti}, v{DC+2*ti} offset:{setbase + u*16}')
        I(f'ds_write_b32 v{vWB+ti}, v{DC+2*ti+1} offset:{setbase + u*16}')
    I('s_mov_b64 exec, -1')

def dump_lds(e):
    I = e.I
    I('v_mbcnt_lo_u32_b32 v1, -1, 0'); I('v_mbcnt_hi_u32_b32 v1, -1, v1')
    I(f's_lshl_b32 s{sT0}, s{sW}, 10')
    I('v_lshlrev_b32 v1, 4, v1')
    I(f'v_add_u32 v1, s{sT0}, v1')
    I(f's_mul_i32 s{sT1}, s2, {LDS_TOTAL}')
    I(f'v_add_u32 v2, s{sT1}, v1')
    I(f's_mov_b32 s{sT2}, 0')
    e.label('L_dump')
    I('ds_read_b128 v[4:7], v1')
    I('s_waitcnt lgkmcnt(0)')
    I('global_store_dwordx4 v2, v[4:7], s[22:23]')
    I('s_waitcnt vmcnt(0)')
    I('v_add_u32 v1, 8192, v1'); I('v_add_u32 v2, 8192, v2')
    I(f's_add_u32 s{sT2}, s{sT2}, 1')
    I(f's_cmp_lt_u32 s{sT2}, 20')
    e.raw('    s_cbranch_scc1 L_dump')

def main(e, debug, opts):
    I = e.I
    a, b, c, d = TMP, TMP + 1, TMP + 2, TMP + 3
    steps = step_list()
    I(f'v_lshrrev_b32 v{a}, 5, v{vL}')
    I(f'v_lshlrev_b32 v{a}, 3, v{a}')
    I(f'v_add_u32 v{a}, {SM_A0}, v{a}')
    ids = [I(f'ds_read_b64 {vr(XP+2*g,2)}, v{a} offset:{16*g}') for g in range(4)]
    I(f's_lshl_b32 s{sT0}, s{sW}, 5')
    I(f's_add_u32 s{sT0}, s{sT0}, {SM_B1}')
    I(f'v_lshlrev_b32 v{b}, 1, v{vN}')
    I(f'v_add_u32 v{b}, s{sT0}, v{b}')
    for u in range(4):
        I(f'v_mov_b32 v{TMP+4+u}, 0')
        I(f'v_mov_b32 v{W2V+u}, 0')
    bid = []
    for u in range(4):
        bid.append(I(f'ds_read_u16_d16_hi v{TMP+4+u}, v{b} offset:{256*u}'))
        bid.append(I(f'ds_read_u16_d16_hi v{W2V+u}, v{b} offset:{832 + 256*u}'))
    e.wait_ds(ids[-1])
    for g in range(4):
        for q in range(2):
            I(f'v_lshlrev_b32 v{ACCQ+4*g+2*q}, 16, v{XP+2*g+q}')
            I(f'v_and_b32 v{ACCQ+4*g+2*q+1}, 0xffff0000, v{XP+2*g+q}')
    for r in range(16):
        I(f'v_mov_b32 v{ACCP+r}, 0')
    e.wait_ds(bid[-1])
    for u in range(4):
        for r in range(4):
            I(f'v_mov_b32 v{DACC+4*u+r}, v{TMP+4+u}')

    sched = [[] for _ in range(13)]
    per = opts.get('cin_per_iter', 3)
    si = 0
    for j in range(13):
        while si < 28 and len(sched[j]) < per:
            sched[j].append(si); si += 1
    assert si == 28
    last_cin_iter = max(j for j in range(13) if sched[j])

    af_ids = {}
    def af_read(s):
        buf = AF[s & 1]
        i1 = I(f'ds_read_b128 {vr(buf,4)}, v{vAF} offset:{FR_P + s*FST}')
        i2 = I(f'ds_read_b128 {vr(buf+4,4)}, v{vAF} offset:{FR_Q + s*FST}')
        af_ids[s] = i2
    def cin_step(s):
        aa, bb = steps[s]
        if s + 1 < 28:
            af_read(s + 1)
        mod = ' div:2' if aa == bb else ''
        for pi in range(2):
            for qi in range(4):
                if mod:
                    I(f'v_mul_f32_e64 v{ZT+4*pi+qi}, v{XR+4*aa+pi}, v{XR+4*bb+qi}{mod}')
                else:
                    I(f'v_mul_f32 v{ZT+4*pi+qi}, v{XR+4*aa+pi}, v{XR+4*bb+qi}')
        for q in range(4):
            I(f'v_cvt_pk_bf16_f32 v{ZF+q}, v{ZT+2*q}, v{ZT+2*q+1}')
        e.wait_ds(af_ids[s])
        buf = AF[s & 1]
        I(f'v_mfma_f32_32x32x16_bf16 {vr(ACCP,16)}, {vr(buf,4)}, {vr(ZF,4)}, {vr(ACCP,16)}')
        I(f'v_mfma_f32_32x32x16_bf16 {vr(ACCQ,16)}, {vr(buf+4,4)}, {vr(ZF,4)}, {vr(ACCQ,16)}')

    def cin_epilogue():
        t = TMP
        I(f'v_mul_f32 v{t}, v{ACCP}, v{ACCQ}')
        I(f'v_mul_f32 v{t+1}, v{ACCP+12}, v{ACCQ+12}')
        for r in range(1, 12):
            I(f'v_fmac_f32 v{t}, v{ACCP+r}, v{ACCQ+r}')
            if r == 1:
                I(f'v_fmac_f32 v{t+1}, v{ACCP+13}, v{ACCQ+13}')
        I(f'v_cmp_gt_u32 vcc, 32, v{vL}')
        I(f'v_cndmask_b32 v{t+1}, 0, v{t+1}, vcc')
        I(f'v_add_f32 v{t}, v{t}, v{t+1}')
        for sh in (8, 4, 2, 1):
            I(f'v_add_f32_dpp v{t}, v{t}, v{t} row_ror:{sh} row_mask:0xf bank_mask:0xf')
        I(f'v_and_b32 v{t+2}, 1, v{vG}')
        I(f'v_lshlrev_b32 v{t+2}, 6, v{t+2}')
        I(f'v_lshrrev_b32 v{t+3}, 1, v{vG}')
        I(f'v_lshl_add_u32 v{t+2}, v{t+3}, 2, v{t+2}')
        I(f's_lshl_b32 s{sT0}, s{sW}, 7')
        I(f's_add_u32 s{sT0}, s{sT0}, {RED + 32}')
        I(f'v_add_u32 v{t+2}, s{sT0}, v{t+2}')
        I(f's_mov_b32 exec_lo, 0x00010001'); I(f's_mov_b32 exec_hi, 0x00010001')
        I(f'ds_write_b32 v{t+2}, v{t}')
        I('s_mov_b64 exec, -1')

    for j in range(13):
        e.comment(f'---- iteration {j}')
        I(f's_waitcnt vmcnt({6 if j == 0 else (3 if j < 12 else 0)})')
        I('s_barrier')
        if 1 <= j <= 10:
            dma_step(e, j + 2, f'M{j}')
        if j == 0:
            if debug == 'x':
                I('s_waitcnt vmcnt(0)'); I('s_barrier'); dump_lds(e); return
            xid = [I(f'ds_read_b64_tr_b16 {vr(XP+2*q,2)}, v{vTRX} offset:{128*q}') for q in range(7)]
            af_read(0)
        slot = j % 3
        xf = I(f'ds_read2_b64 {vr(XF,4)}, v{vXF} offset0:{8*j} offset1:{8*j+2}')
        wid = []
        for u in range(3):
            for jj in range(2):
                wid.append(I(f'ds_read_b64_tr_b16 {vr(WF+4*u+2*jj,2)}, v{vTRW} offset:{slot*SLOT + jj*8*WROW + u*256}'))
        I(f's_cmp_ge_u32 s{sW}, 2'); I(f's_cbranch_scc1 L_w3r_{j}')
        e.cond_depth += 1
        w3 = []
        for jj in range(2):
            w3.append(I(f'ds_read_b64_tr_b16 {vr(WF+12+2*jj,2)}, v{vTRW} offset:{slot*SLOT + jj*8*WROW + 3*256}'))
        e.cond_depth -= 1
        e.label(f'L_w3r_{j}')
        if j == 0:
            e.wait_ds(xid[-1])
            for q in range(7):
                for h in range(2):
                    I(f'v_lshlrev_b32 v{XR+4*q+2*h}, 16, v{XP+2*q+h}')
                    I(f'v_and_b32 v{XR+4*q+2*h+1}, 0xffff0000, v{XP+2*q+h}')
        first = True
        def dnn_mfma():
            e.wait_ds(wid[-1])
            for u in range(3):
                I(f'v_mfma_f32_16x16x32_bf16 {vr(DACC+4*u,4)}, {vr(XF,4)}, {vr(WF+4*u,4)}, {vr(DACC+4*u,4)}')
            I(f's_cmp_ge_u32 s{sW}, 2'); I(f's_cbranch_scc1 L_w3m_{j}')
            I('s_waitcnt lgkmcnt(0)') if False else e.wait_ds(w3[-1])
            I(f'v_mfma_f32_16x16x32_bf16 {vr(DACC+12,4)}, {vr(XF,4)}, {vr(WF+12,4)}, {vr(DACC+12,4)}')
            e.label(f'L_w3m_{j}')
        for s in sched[j]:
            cin_step(s)
        dnn_mfma()
        if j == last_cin_iter + 1:
            cin_epilogue()
    if last_cin_iter == 12:
        cin_epilogue()
    G = TMP
    T = TMP + 4
    I(f's_mov_b32 s{sC0}, 0xc0135761')
    I(f's_mov_b32 s{sC1}, 0xbdd2d3e8')
    def gelu_tile(u, first):
        x = DACC + 4 * u
        for r in range(4): I(f'v_mul_f32 v{T+r}, v{x+r}, v{x+r}')
        for r in range(4):
            I(f'v_mul_f32 v{T+r}, s{sC1}, v{T+r}')
        for r in range(4):
            I(f'v_add_f32 v{T+r}, s{sC0}, v{T+r}')
        for r in range(4): I(f'v_mul_f32 v{T+r}, v{T+r}, v{x+r}')
        for r in range(4): I(f'v_exp_f32 v{T+r}, v{T+r}')
        for r in range(4): I(f'v_add_f32 v{T+r}, 1.0, v{T+r}')
        for r in range(4): I(f'v_rcp_f32 v{T+r}, v{T+r}')
        for r in range(4): I(f'v_mul_f32 v{T+4+r}, v{x+r}, v{W2V+u}')
        for r in range(4):
            if first: I(f'v_mul_f32 v{G+r}, v{T+r}, v{T+4+r}')
            else: I(f'v_fmac_f32 v{G+r}, v{T+r}, v{T+4+r}')
    for u in range(3):
        gelu_tile(u, u == 0)
    I(f's_cmp_ge_u32 s{sW}, 2'); I(f's_cbranch_scc1 L_g3')
    gelu_tile(3, False)
    e.label('L_g3')
    for sh in (8, 4, 2, 1):
        for r in range(4):
            I(f'v_add_f32_dpp v{G+r}, v{G+r}, v{G+r} row_ror:{sh} row_mask:0xf bank_mask:0xf')
    I(f'v_lshlrev_b32 v{T}, 8, v{vG}')
    I(f's_lshl_b32 s{sT0}, s{sW}, 2')
    I(f's_add_u32 s{sT0}, s{sT0}, {RED}')
    I(f'v_add_u32 v{T}, s{sT0}, v{T}')
    I(f's_mov_b32 exec_lo, 0x00010001'); I(f's_mov_b32 exec_hi, 0x00010001')
    for r in range(4):
        I(f'ds_write_b32 v{T}, v{G+r} offset:{64*r}')
    I('s_mov_b64 exec, -1')
    I('s_waitcnt lgkmcnt(0)')
    I('s_barrier')
    if debug == 'red':
        dump_lds(e); return
    I(f's_cmp_lg_u32 s{sW}, 0'); I('s_cbranch_scc1 L_end')
    I('s_mov_b32 exec_lo, 0xffff'); I('s_mov_b32 exec_hi, 0')
    I(f'v_lshlrev_b32 v{T}, 6, v{vL}')
    I(f'v_add_u32 v{T}, {RED}, v{T}')
    I(f'ds_read_b128 {vr(8,4)}, v{T}')
    I(f'ds_read_b128 {vr(12,4)}, v{T} offset:16')
    I(f'ds_read_b64 {vr(16,2)}, v{T} offset:32')
    I(f's_mov_b32 s{S_OUT}, s20'); I(f's_mov_b32 s{S_OUT+1}, s21')
    I(f's_mov_b32 s{S_OUT+2}, 8192'); I(f's_mov_b32 s{S_OUT+3}, 0x20000')
    I(f's_lshl_b32 s{sBO}, s{sBO}, 16')
    I(f's_lshl_b32 s{sT0}, s2, 5')
    I(f'v_lshlrev_b32 v{T+1}, 1, v{vL}')
    I(f'v_add_u32 v{T+1}, s{sT0}, v{T+1}')
    I('s_waitcnt lgkmcnt(0)')
    I('v_add_f32 v8, v8, v9'); I('v_add_f32 v10, v10, v11'); I('v_add_f32 v12, v12, v13'); I('v_add_f32 v14, v14, v15')
    I('v_add_f32 v16, v16, v17')
    I('v_add_f32 v8, v8, v10'); I('v_add_f32 v12, v12, v14')
    I(f'v_add_f32 v16, s{sBO}, v16')
    I('v_add_f32 v8, v8, v12')
    I('v_add_f32 v8, v8, v16')
    I('v_cvt_pk_bf16_f32 v8, v8, v8')
    I(f'buffer_store_short v8, v{T+1}, {srd(S_OUT)}, 0 offen')
    I('s_waitcnt vmcnt(0)')

def finish(e, opts):
    e.label('L_end')
    body = e.text()
    hdr = f"""; xDeepFM (CIN + DNN) fused kernel, generated by my own generator script (gen/gen.py).
; One workgroup = 16 batch rows, 8 waves.  CIN layers are folded at run time into two quadratic forms.
; @launch grid=(256,1,1) block=(512,1,1) lds={LDS_TOTAL}
.amdgcn_target "amdgcn-amd-amdhsa--gfx950"
.text
.globl {KN}
.p2align 8
.type {KN},@function
{KN}:
"""
    ftr = f"""    s_endpgm
.section .rodata,"a"
.p2align 6
.amdhsa_kernel {KN}
  .amdhsa_next_free_vgpr 256
  .amdhsa_next_free_sgpr 96
  .amdhsa_accum_offset 256
  .amdhsa_group_segment_fixed_size 0
  .amdhsa_kernarg_size 88
  .amdhsa_user_sgpr_count 2
  .amdhsa_user_sgpr_kernarg_segment_ptr 1
  .amdhsa_system_sgpr_workgroup_id_x 1
  .amdhsa_ieee_mode 0
.end_amdhsa_kernel
"""
    return hdr + body + ftr

if __name__ == '__main__':
    dbg = sys.argv[2] if len(sys.argv) > 2 and sys.argv[2] != 'none' else None
    out = build(dbg)
    open(sys.argv[1], 'w').write(out)
    print('wrote', sys.argv[1], len(out), 'bytes')
```

```python
import sys, os
from emit import Emit

KN = "standalone__deep_cross_xdeepfm__recsys_kernel"

FR_P = 0; FST = 1040; FR_Q = 28 * FST
XB = 58240; XS = 912
HB = 72832
RB = 75264; SLOT = 26624; WROW = 832
WB1 = RB + SLOT
STG = 13312
SM = 155136; SM_A0 = SM; SM_B1 = SM + 64; SM_W2 = SM + 896
RED = SM + 1728
LDS_TOTAL = 163840
OOB_LDS = 0x40000
CIN_L = 35152
assert WB1 % 512 == 0 and WB1 + 4 * STG <= SM

S_IDX, S_TAB, S_CIN, S_W1 = 24, 28, 32, 36
S_A0, S_B1, S_W2, S_OUT = 40, 52, 56, 60
sA2 = 96
sW, sK = 64, 65
sBO = 66
sI0 = 67
sT0, sT1, sT2, sT3 = 68, 69, 70, 71
sMN10 = 78
sE52 = 80
sStage, sSrc = 82, 83
sC0, sC1, sC2 = 84, 85, 86
sX0 = 88
sF0, sF1, sF2 = 84, 85, 86
sDma = 92
sSL = 93
SA = 44
def srd(n): return f"s[{n}:{n+3}]"
def sp(n): return f"s[{n}:{n+1}]"
def vr(a, n=1): return f"v{a}" if n == 1 else f"v[{a}:{a+n-1}]"

vL = 0
TMP = 122
fa, fb, fc, fd, fe = 132, 133, 134, 135, 136
vN, vG, vR4, vC4 = 142, 143, 144, 145
vWA = 146
vWB = 149
DD = [152, 164]
DC = 176
vSO = 182
vDUM = 186
SEL = 2; UACC = 18; FIX = 34; HF = 42; vA2 = 50
TAD = 188
UB = 54
FF = 2; EF = 60; vIDX = 68; vFO = 72
XA = 2; XBB = 30
ZA = [58, 62]; ZBB = [66, 70]
ZT = 74
AF = [82, 90]
vAF = 100; vTRX = 101
XPA = 104; XPB = 152
ACC = {('P', 0): 192, ('Q', 0): 208, ('P', 1): 224, ('Q', 1): 240}
vDMA = 100
vTRW = 107; vXF = 108
WF = [2, 30]
XF = [58, 62]
DACC = 208
W2V = 236
CST = 244

STAMP_SLOTS = [94, 98, 100, 72, 74, 76] + list(range(44, 60, 2)) + [24, 26, 28, 30, 4, 6, 8, 10, 40, 42, 14, 16]
class Stamps:
    def __init__(self, on): self.on = on; self.names = []
    def __call__(self, e, name):
        if not self.on: return
        if name in self.names: i = self.names.index(name)
        else:
            i = len(self.names); self.names.append(name)
        r = STAMP_SLOTS[i]
        e.I(f's_memtime s[{r}:{r+1}]')
    def flush(self, e):
        if not self.on: return
        I = e.I
        I('s_mov_b64 exec, -1')
        I('s_waitcnt vmcnt(0) lgkmcnt(0)')
        for i in range(len(self.names)):
            I(f'v_writelane_b32 v200, s{STAMP_SLOTS[i]}, {i}')
        I('s_memrealtime s[68:69]')
        I('s_waitcnt lgkmcnt(0)')
        I('v_writelane_b32 v200, s68, 31')
        I('v_mbcnt_lo_u32_b32 v201, -1, 0'); I('v_mbcnt_hi_u32_b32 v201, -1, v201')
        I('v_lshlrev_b32 v201, 2, v201')
        I(f's_lshl_b32 s70, s2, 3'); I(f's_add_u32 s70, s70, s{sW}'); I('s_lshl_b32 s70, s70, 8')
        I('v_add_u32 v201, s70, v201')
        I('global_store_dword v201, v200, s[22:23]')
        I('s_waitcnt vmcnt(0)')
ST = Stamps(False)

def step_list():
    return [(a, b) for b in range(7) for a in range(b + 1)]

def mk_srd(e, n, lo, size, add=0):
    I = e.I
    if add:
        I(f's_add_u32 s{n}, s{lo}, {add}')
        I(f's_addc_u32 s{n+1}, s{lo+1}, 0')
    else:
        I(f's_mov_b32 s{n}, s{lo}')
        I(f's_mov_b32 s{n+1}, s{lo+1}')
    I(f's_mov_b32 s{n+2}, {size}')
    I(f's_mov_b32 s{n+3}, 0x20000')


class FQ:
    def __init__(self): self.q = []
    def add(self, *items): self.q.extend(items)
    def drain(self, e, n=10**9):
        k = 0
        while self.q and k < n:
            it = self.q.pop(0)
            if isinstance(it, list):
                for x in it: e.I(x)
                k += len(it)
            else:
                e.I(it); k += 1

def f_srd(n, lo, size):
    return [f's_mov_b32 s{n}, s{lo}', f's_mov_b32 s{n+1}, s{lo+1}', f's_mov_b32 s{n+2}, {size}', f's_mov_b32 s{n+3}, 0x20000']

def f_common_a():
    L = []
    L += [f'v_bfe_u32 v{fa}, v{vN}, 1, 1', f'v_mul_u32_u24 v{fb}, 516, v{fa}', f'v_and_b32 v{fc}, 1, v{vN}',
          f'v_lshl_add_u32 v{fb}, v{fc}, 3, v{fb}', f's_lshl_b32 s{sF0}, s{sI0}, 4', f'v_add_u32 v{fb}, s{sF0}, v{fb}',
          f'v_lshrrev_b32 v{fc}, 2, v{vN}', f's_movk_i32 s{sF2}, {FST}', f'v_lshlrev_b32 v{fe}, 2, v{vL}', f'v_add_u32 v{fe}, {OOB_LDS}, v{fe}',
          f'v_cmp_le_u32 s[72:73], v{fc}, v{vG}', f'v_cmp_ge_u32 s[74:75], 2, v{vG}']
    first = True
    for ti, (M, N) in enumerate(((0, 0), (1, 0), (1, 1))):
        L += [f'v_add_u32 v{fa}, {4*M}, v{vG}', f'v_add_u32 v{fd}, 1, v{fa}', f'v_mul_u32_u24 v{fd}, v{fd}, v{fa}',
              f'v_lshrrev_b32 v{fd}, 1, v{fd}', f'v_add3_u32 v{fd}, v{fd}, v{fc}, {4*N}', f'v_mad_u32_u24 v{fd}, v{fd}, s{sF2}, v{fb}']
        if first:
            L += [f's_and_b64 s[76:77], s[72:73], s[74:75]']; first = False
        L += [f'v_cndmask_b32 v{vWA+ti}, v{fe}, v{fd}, s[{72+2*ti}:{73+2*ti}]', f'v_xor_b32 v{vWB+ti}, 4, v{vWA+ti}']
    return L

def f_setup_cin():
    L = [f'v_lshlrev_b32 v{vAF}, 4, v{vL}',
         f'v_lshrrev_b32 v{fb}, 1, v{vG}', f'v_and_b32 v{fc}, 1, v{vG}', f's_movk_i32 s{sF1}, {XS}',
         f'v_lshlrev_b32 v{fa}, 1, v{fb}', f'v_xor_b32 v{fa}, v{fa}, v{vR4}', f'v_lshlrev_b32 v{fa}, 5, v{fa}',
         f'v_lshl_add_u32 v{fa}, v{vC4}, 3, v{fa}', f'v_mad_u32_u24 v{fa}, v{fc}, s{sF1}, v{fa}',
         f's_mul_i32 s{sF0}, s{sK}, {4*XS}', f's_add_u32 s{sF0}, s{sF0}, {XB}', f'v_add_u32 v{vTRX}, s{sF0}, v{fa}']
    return L

def f_setup_dnn():
    L = [f's_lshl_b32 s{sF0}, s{sK}, 6', f's_movk_i32 s{sF1}, 20165', f's_movk_i32 s{sF2}, 832']
    for u in range(7):
        L += [f'v_add_u32 v{fa}, s{sF0}, v{vL}'] + ([f'v_add_u32 v{fa}, {256*u}, v{fa}'] if u else [])
        L += [f'v_mul_u32_u24 v{fc}, s{sF1}, v{fa}', f'v_lshrrev_b32 v{fc}, 20, v{fc}', f'v_mul_u32_u24 v{fd}, 52, v{fc}',
              f'v_sub_u32 v{fa}, v{fa}, v{fd}', f'v_bfe_u32 v{fd}, v{fc}, 3, 1', f'v_lshlrev_b32 v{fd}, 1, v{fd}',
              f'v_xor_b32 v{fa}, v{fa}, v{fd}', f'v_lshlrev_b32 v{fa}, 4, v{fa}', f'v_mad_u32_u24 v{vDMA+u}, v{fc}, s{sF2}, v{fa}']
    L += [f's_lshl_b32 s{sDma}, s{sK}, 10', f's_add_u32 s{sDma}, s{sDma}, {RB}']
    L += [f'v_and_b32 v{fc}, 1, v{vG}', f'v_lshl_add_u32 v{fa}, v{vG}, 3, v{vR4}', f'v_mul_u32_u24 v{fa}, s{sF2}, v{fa}',
          f'v_lshl_add_u32 v{fa}, v{vC4}, 3, v{fa}', f'v_xor_b32 v{fd}, s{sK}, v{fc}', f'v_lshl_add_u32 v{fa}, v{fd}, 5, v{fa}',
          f'v_add_u32 v{vTRW}, {RB}, v{fa}']
    L += [f's_movk_i32 s{sF1}, {XS}', f'v_lshlrev_b32 v{fa}, 4, v{vG}', f'v_mad_u32_u24 v{fa}, v{vN}, s{sF1}, v{fa}',
          f'v_add_u32 v{vXF}, {XB}, v{fa}']
    return L

def acc_init_cin(e):
    I = e.I
    I(f'v_lshrrev_b32 v{fa}, 5, v{vL}')
    I(f'v_lshlrev_b32 v{fa}, 3, v{fa}')
    I(f'v_add_u32 v{fa}, {SM_A0}, v{fa}')
    ids = [I(f'ds_read_b64 {vr(XPA+2*g,2)}, v{fa} offset:{16*g}') for g in range(4)]
    for X in range(2):
        for r in range(16):
            I(f'v_mov_b32 v{ACC[("P",X)]+r}, 0')
    e.wait_ds(ids[-1])
    QA, QB = ACC[('Q', 0)], ACC[('Q', 1)]
    for g in range(4):
        for q in range(2):
            I(f'v_lshlrev_b32 v{QA+4*g+2*q}, 16, v{XPA+2*g+q}')
            I(f'v_and_b32 v{QA+4*g+2*q+1}, 0xffff0000, v{XPA+2*g+q}')
            I(f'v_lshlrev_b32 v{QB+4*g+2*q}, 16, v{XPA+2*g+q}')
            I(f'v_and_b32 v{QB+4*g+2*q+1}, 0xffff0000, v{XPA+2*g+q}')

def acc_init_dnn(e):
    I = e.I
    I(f's_lshl_b32 s{sF0}, s{sK}, 5')
    I(f's_add_u32 s{sF0}, s{sF0}, {SM_B1}')
    I(f'v_lshlrev_b32 v{fb}, 1, v{vN}')
    I(f'v_add_u32 v{fb}, s{sF0}, v{fb}')
    B = 110
    for u in range(7):
        I(f'v_mov_b32 v{B+u}, 0')
        I(f'v_mov_b32 v{W2V+u}, 0')
    ids = []
    for u in range(7):
        ids.append(I(f'ds_read_u16_d16_hi v{B+u}, v{fb} offset:{128*u}'))
        ids.append(I(f'ds_read_u16_d16_hi v{W2V+u}, v{fb} offset:{832 + 128*u}'))
    for q, val in enumerate(('0xbdd2d3e8', '0xbdd2d3e8', '0xc0135761', '0xc0135761', '1.0', '1.0')):
        I(f'v_mov_b32 v{CST+q}, {val}')
    e.wait_ds(ids[-1])
    for u in range(7):
        for r in range(4):
            I(f'v_mov_b32 v{DACC+4*u+r}, v{B+u}')

def build(debug=None, opts=None):
    global ST
    opts = opts or {}
    e = Emit(); I = e.I
    a, b, c, d = TMP, TMP + 1, TMP + 2, TMP + 3
    vHS, vPB = TMP + 4, TMP + 5
    touch = opts.get('touch', True)
    ncode = opts.get('code_lines', 5)
    gapU = opts.get('gapU', 14); gapL = opts.get('gapL', 10)
    I('s_cmp_ge_u32 s2, 256')
    I('s_cbranch_scc1 L_end')
    I('s_load_dwordx16 s[4:19], s[0:1], 0')
    I('s_load_dwordx2 s[20:21], s[0:1], 64')
    ST = Stamps(debug == 'stamp')
    ST(e, 'start')
    if debug:
        I('s_load_dwordx2 s[22:23], s[0:1], 80')
    I(f'v_lshrrev_b32 v1, 6, v0')
    I(f'v_and_b32 v{vL}, 63, v0')
    I(f'v_readfirstlane_b32 s{sW}, v1')
    I(f's_bfe_u32 s{sSL}, s2, 0x50003')
    I(f'v_and_b32 v{vN}, 15, v{vL}')
    I(f'v_lshrrev_b32 v{vG}, 4, v{vL}')
    I(f'v_bfe_u32 v{vR4}, v{vL}, 2, 2')
    I(f'v_and_b32 v{vC4}, 3, v{vL}')
    I(f's_and_b32 s{sK}, s{sW}, 3')
    if touch:
        I(f's_cmp_eq_u32 s{sW}, 7'); I('s_cbranch_scc0 L_nocode')
        I(f's_getpc_b64 {sp(sX0)}')
        I(f's_and_b32 s{sX0}, s{sX0}, 0xffffff00')
        I(f's_mul_i32 s{sT0}, s{sSL}, {ncode*128}')
        I(f'v_lshlrev_b32 v{a}, 7, v{vL}')
        I(f'v_add_u32 v{a}, s{sT0}, v{a}')
        I(f's_mov_b32 exec_lo, {(1 << ncode) - 1}'); I('s_mov_b32 exec_hi, 0')
        I(f'global_load_dword v{vDUM}, v{a}, {sp(sX0)}')
        I('s_mov_b64 exec, -1')
        e.label('L_nocode')
    I(f's_mul_i32 s{sI0}, s{sK}, 7')
    I(f's_cmp_eq_u32 s{sK}, 3')
    I(f's_cselect_b32 s{sT0}, 1, 0')
    I(f's_sub_u32 s{sI0}, s{sI0}, s{sT0}')
    I(f's_mov_b32 s{sE52}, -1')
    I(f's_mov_b32 s{sE52+1}, 0x000fffff')
    I(f'v_lshrrev_b32 v{a}, 5, v{vL}')
    I(f'v_and_b32 v{b}, 1, v{vL}')
    I(f'v_lshlrev_b32 v{b}, 4, v{b}')
    I(f's_movk_i32 s{sC0}, 1352')
    I(f'v_mad_u32_u24 v{vHS}, v{a}, s{sC0}, v{b}')
    I(f'v_bfe_u32 v{b}, v{vL}, 1, 4')
    I(f'v_xor_b32 v{vPB}, v{b}, v{a}')
    I(f's_cmp_ge_u32 s{sW}, 4')
    I('s_cbranch_scc1 L_Lpath')

    I(f's_movk_i32 s{sC1}, 624')
    for tm in range(4):
        I(f'v_xor_b32 v{a}, {2*tm}, v{vPB}')
        I(f'v_and_b32 v{b}, 1, v{a}')
        I(f'v_lshl_add_u32 v{vSO+tm}, v{b}, 5, v{vHS}')
        I(f'v_lshrrev_b32 v{b}, 1, v{a}')
        I(f'v_mad_u32_u24 v{vSO+tm}, v{b}, 52, v{vSO+tm}')
        I(f'v_lshrrev_b32 v{b}, 3, v{a}')
        I(f'v_mad_u32_u24 v{vSO+tm}, v{b}, s{sC1}, v{vSO+tm}')
    I(f's_mul_i32 s{sStage}, s{sK}, {STG}')
    I(f's_mul_i32 s{sSrc}, s{sK}, 208')
    I(f's_add_u32 s{sSrc}, s{sSrc}, {2*CIN_L}')
    if touch:
        I(f's_mul_i32 s{sT0}, s{sSL}, 85')
        I(f's_lshl_b32 s{sT1}, s{sK}, 6')
        I(f's_add_u32 s{sT0}, s{sT0}, s{sT1}')
        I(f's_mul_i32 s{sT1}, s{sSL}, 26')
        I(f's_cmp_eq_u32 s{sK}, 2')
        I(f's_cselect_b32 s{sT0}, s{sT1}, s{sT0}')
        I(f'v_add_u32 v{c}, s{sT0}, v{vL}')
        I(f'v_lshlrev_b32 v{c}, 7, v{c}')
    I(f's_lshl_b32 s{sT2}, s{sK}, 3')
    I(f's_add_u32 s{sT2}, s{sT2}, 52')
    I(f's_add_u32 s{sT3}, s{sT2}, 32')
    I('s_waitcnt lgkmcnt(0)')
    mk_srd(e, S_CIN, 8, 3 * CIN_L)
    mk_srd(e, S_W1, 12, 346112)
    if touch:
        I(f's_cmp_eq_u32 s{sK}, 0'); I('s_cbranch_scc0 L_t1')
        I(f'buffer_load_dword v{vDUM}, v{c}, {srd(S_W1)}, 0 offen')
        I('s_branch L_tdone')
        e.label('L_t1')
        I(f's_cmp_eq_u32 s{sK}, 1'); I('s_cbranch_scc0 L_t2')
        I('s_mov_b32 exec_lo, 0x1fffff'); I('s_mov_b32 exec_hi, 0')
        I(f'buffer_load_dword v{vDUM}, v{c}, {srd(S_W1)}, 0 offen')
        I('s_branch L_tdone')
        e.label('L_t2')
        I(f's_cmp_eq_u32 s{sK}, 2'); I('s_cbranch_scc0 L_tdone')
        I('s_mov_b32 exec_lo, 0x3ffffff'); I('s_mov_b32 exec_hi, 0')
        I(f'buffer_load_dword v{vDUM}, v{c}, {srd(S_CIN)}, 0 offen')
        e.label('L_tdone')
        I('s_mov_b64 exec, -1')
    I(f's_load_dwordx16 s[{SA}:{SA+15}], s[10:11], 104')
    I(f's_load_dwordx2 s[60:61], s[10:11], s{sT2}')
    I(f's_load_dwordx2 s[62:63], s[10:11], s{sT3}')
    I(f's_load_dword s{sBO}, s[18:19], 0')
    F = FQ()
    for j in range(2):
        F.add(f'v_lshl_add_u32 v{fa}, v{vG}, 2, v{vR4}')
        if j: F.add(f'v_add_u32 v{fa}, 16, v{fa}', f'v_min_u32 v{fa}, 25, v{fa}')
        F.add(f'v_and_b32 v{fb}, 7, v{fa}', f'v_lshlrev_b32 v{fb}, 5, v{fb}', f'v_lshl_add_u32 v{fb}, v{fa}, 9, v{fb}',
              f'v_lshl_add_u32 v{fb}, v{vC4}, 3, v{fb}', f'v_add_u32 v{TAD+8*j}, s{sStage}, v{fb}')
        F.add(*[f'v_xor_b32 v{TAD+8*j+x}, {x*32}, v{TAD+8*j}' for x in range(1, 8)])
    F.add(*[f'v_mov_b32 v{UACC+r}, 0' for r in range(16)])
    F.add(*[f'v_mov_b32 v{FIX+r}, 0' for r in range(8)])
    F.add(*f_common_a())
    F.add(*f_setup_cin())
    F2 = FQ()
    F2.add('s_waitcnt lgkmcnt(0)')
    F2.add(*[f's_mov_b32 s{SA+q}, 0' for q in (13, 14, 15)])
    for g in range(4):
        m = 0xffff << (16 * g)
        F2.add([f's_mov_b32 exec_lo, {hex(m & 0xffffffff)}', f's_mov_b32 exec_hi, {hex(m >> 32)}'] +
              [f'v_mov_b32 v{vA2+dw}, s{SA+src}' for dw, src in enumerate((2*g, 2*g+1, 8+2*g, 9+2*g))] + ['s_mov_b64 exec, -1'])
    F2.add(f's_lshl_b32 s{sF0}, s{sK}, 2')
    ms = ['s[72:73]', 's[74:75]', 's[76:77]', 'vcc']
    for r in range(4):
        F2.add(f's_add_u32 s{sF1}, s{sF0}, {r}', f'v_cmp_eq_u32 {ms[r]}, s{sF1}, v{vN}')
    for r in range(4):
        F2.add(*[f'v_cndmask_b32 v{SEL+4*r+dw}, 0, v{vA2+dw}, {ms[r]}' for dw in range(4)])
    F2.add(f's_cmp_le_u32 s{sK}, 2', 's_cselect_b32 s62, s62, 0', f's_cmp_le_u32 s{sK}, 1', 's_cselect_b32 s63, s63, 0')
    grp = ['s_mov_b32 exec_lo, 0x04000400', 's_mov_b32 exec_hi, 0x04000400']
    for h in range(2):
        for q in range(2):
            src = 60 + 2 * h + q
            grp += [f's_lshl_b32 s{sF1}, s{src}, 16', f's_and_b32 s{sF2}, s{src}, 0xffff0000',
                    f'v_mov_b32 v{FIX+4*h+2*q}, s{sF1}', f'v_mov_b32 v{FIX+4*h+2*q+1}, s{sF2}']
    grp += ['s_mov_b64 exec, -1']
    F2.add(grp)
    for t in range(13):
        I(f's_add_u32 m0, s{sStage}, {t*1024}')
        I(f's_add_u32 s{sT1}, s{sSrc}, {t*2704}')
        I(f'buffer_load_dwordx4 v{vSO + (t & 3)}, {srd(S_CIN)}, s{sT1} offen lds')
        if t < 12: F.drain(e, gapU)
    I('s_barrier')
    ST(e, 'b0')
    F2.drain(e)
    I('s_waitcnt vmcnt(0)')
    ST(e, 'pre1')
    def frag_reads(u, nbuf=4):
        buf = UB + 8 * (u % nbuf)
        ids = []
        for R in range(2):
            pg = 2 * u + R
            for j in range(2):
                ids.append(I(f'ds_read_b64_tr_b16 {vr(buf+4*R+2*j,2)}, v{TAD+8*j+(pg&7)} offset:{(pg>>3)*256}'))
        return ids
    pend = {u: frag_reads(u) for u in range(3)}
    for u in range(8):
        if u == 4:
            I(f's_cmp_eq_u32 s{sK}, 3'); I('s_cbranch_scc1 L_u2done')
        if u == 6:
            I(f's_cmp_eq_u32 s{sK}, 2'); I('s_cbranch_scc1 L_u2done')
        if u + 3 < 8:
            pend[u + 3] = frag_reads(u + 3)
        e.wait_ds(pend[u][-1])
        buf = UB + 8 * (u % 4)
        for R in range(2):
            acc = UACC + 8 * (u >> 2) + 4 * R
            I(f'v_mfma_f32_16x16x32_bf16 {vr(acc,4)}, {vr(SEL+4*(u&3),4)}, {vr(buf+4*R,4)}, {vr(acc,4)}')
    e.label('L_u2done')
    I(f'v_cmp_gt_u32 vcc, 10, v{vN}')
    I(f'v_lshlrev_b32 v{a}, 4, v{vL}')
    I(f'v_add_u32 v{a}, {HB}, v{a}')
    I(f's_mov_b32 s{sX0}, 0xffff')
    I(f's_mov_b32 s{sX0+1}, 0')
    I(f's_lshl_b32 s{sT0}, s{sK}, 4')
    for h in range(2):
        for r in range(4):
            acc = UACC + 8 * h + 4 + r
            I(f'v_cndmask_b32 v{acc}, v{FIX+4*h+r}, v{acc}, vcc')
    for R in range(2):
        for h in range(2):
            acc = UACC + 8 * h + 4 * R
            I(f'v_cvt_pk_bf16_f32 v{HF+4*R+2*h}, v{acc}, v{acc+1}')
            I(f'v_cvt_pk_bf16_f32 v{HF+4*R+2*h+1}, v{acc+2}, v{acc+3}')
    I(f's_lshl_b64 exec, {sp(sX0)}, s{sT0}')
    I(f'ds_write_b128 v{a}, {vr(HF,4)}')
    I(f'ds_write_b128 v{a}, {vr(HF+4,4)} offset:1024')
    I('s_mov_b64 exec, -1')
    for x in range(16):
        I(f'v_add_u32 v{TAD+x}, {WB1}, v{TAD+x}')
    I(f'v_cmp_gt_u32 {sp(sMN10)}, 10, v{vN}')
    F.drain(e)
    I('s_waitcnt lgkmcnt(0)')
    I('s_barrier')
    ST(e, 'b1')
    I(f'ds_read_b128 {vr(HF,4)}, v{a} offset:0')
    I(f'ds_read_b128 {vr(HF+4,4)}, v{a} offset:1024')
    pend = {u: frag_reads(u) for u in range(3)}
    prev = None
    for u in range(7):
        if u == 6:
            I(f's_cmp_ge_u32 s{sK}, 2'); I('s_cbranch_scc1 L_tlast')
        if u + 3 < 7:
            pend[u + 3] = frag_reads(u + 3)
        e.wait_ds(pend[u][-1])
        g = UB + 8 * (u % 4)
        for dw in range(4):
            I(f'v_cndmask_b32 v{g+4+dw}, 0, v{g+4+dw}, {sp(sMN10)}')
        unit(e, g, g + 4, HF, HF + 4, DD[u & 1], None if prev is None else (DD[prev & 1], prev, FR_Q))
        prev = u
    unit_store(e, DD[6 & 1], 6, FR_Q)
    I('s_branch L_tend')
    e.label('L_tlast')
    unit_store(e, DD[5 & 1], 5, FR_Q)
    e.label('L_tend')
    ST(e, 'units')
    I('s_waitcnt lgkmcnt(0)')
    e.ds_q = []
    acc_init_cin(e)
    I('s_waitcnt lgkmcnt(0)')
    ST(e, 'fold')
    I('s_barrier')
    ST(e, 'b2')
    e.ds_q = []
    if debug == 'fold':
        I('s_branch L_dbg')
    else:
        main_cin(e, debug, opts)

    e.last = {}; e.ds_q = []
    e.label('L_Lpath')
    I(f's_lshl_b32 s{sT0}, s2, 4')
    I(f's_lshl_b32 s{sT1}, s{sK}, 2')
    I(f's_add_u32 s{sT0}, s{sT0}, s{sT1}')
    I(f's_mul_i32 s{sT0}, s{sT0}, 104')
    I(f'v_lshrrev_b32 v{d}, 1, v{vL}')
    I(f'v_lshlrev_b32 v{d}, 2, v{d}')
    I(f'v_add_u32 v{d}, s{sT0}, v{d}')
    for tm in range(4):
        I(f'v_xor_b32 v{a}, {2*tm}, v{vPB}')
        I(f'v_and_b32 v{b}, 1, v{a}')
        I(f'v_lshl_add_u32 v{vSO+tm}, v{b}, 5, v{vHS}')
        I(f'v_lshrrev_b32 v{b}, 1, v{a}')
        I(f'v_mad_u32_u24 v{vSO+tm}, v{b}, 52, v{vSO+tm}')
    I(f'v_lshlrev_b32 v{b}, 4, v{vG}')
    I(f'v_mad_u32_u24 v{vFO}, v{vN}, 52, v{b}')
    I(f'v_add_u32 v{vFO+1}, 832, v{vFO}')
    I(f'v_cmp_gt_u32 vcc, 10, v{vN}')
    I(f'v_mov_b32 v{c}, 0x7ff00000')
    I(f'v_cndmask_b32 v{vFO+1}, v{c}, v{vFO+1}, vcc')
    I(f'v_lshlrev_b32 v{c}, 4, v{vL}')
    I(f's_mul_i32 s{sStage}, s{sK}, {STG}')
    I(f's_add_u32 s{sStage}, s{sStage}, {WB1}')
    I(f's_mul_i32 s{sSrc}, s{sI0}, 52')
    I(f's_add_u32 s{sSrc}, s{sSrc}, {CIN_L}')
    I('s_waitcnt lgkmcnt(0)')
    mk_srd(e, S_IDX, 4, 4096 * 104)
    for bb in range(4):
        I(f'buffer_load_dword v{vIDX+bb}, v{d}, {srd(S_IDX)}, 0 offen offset:{bb*104}')
    I(f's_load_dword s{sBO}, s[18:19], 0')
    mk_srd(e, S_A0, 10, 52)
    mk_srd(e, S_B1, 14, 832)
    mk_srd(e, S_W2, 16, 832)
    I(f's_cmp_eq_u32 s{sK}, 0'); I('s_cbranch_scc0 L_sm1')
    I('s_mov_b32 exec_lo, 15'); I('s_mov_b32 exec_hi, 0')
    I(f's_mov_b32 m0, {SM_A0}'); I('s_nop 0')
    I(f'buffer_load_dwordx4 v{c}, {srd(S_A0)}, 0 offen lds')
    I('s_branch L_smdone')
    e.label('L_sm1')
    I(f's_mov_b64 exec, {sp(sE52)}')
    I(f's_cmp_eq_u32 s{sK}, 1'); I('s_cbranch_scc0 L_sm2')
    I(f's_mov_b32 m0, {SM_B1}'); I('s_nop 0')
    I(f'buffer_load_dwordx4 v{c}, {srd(S_B1)}, 0 offen lds')
    I('s_branch L_smdone')
    e.label('L_sm2')
    I(f's_cmp_eq_u32 s{sK}, 2'); I('s_cbranch_scc0 L_smdone')
    I(f's_mov_b32 m0, {SM_W2}'); I('s_nop 0')
    I(f'buffer_load_dwordx4 v{c}, {srd(S_W2)}, 0 offen lds')
    e.label('L_smdone')
    I('s_mov_b64 exec, -1')
    mk_srd(e, S_CIN, 8, 3 * CIN_L)
    mk_srd(e, S_TAB, 6, 3200000)
    mk_srd(e, S_W1, 12, 346112)
    F = FQ()
    F.add(f'v_lshrrev_b32 v{fa}, 4, v{vL}', f'v_mul_u32_u24 v{fa}, {XS}, v{fa}', f'v_lshl_add_u32 v{fa}, v{vN}, 2, v{fa}',
          f's_mul_i32 s{sF0}, s{sK}, {4*XS}', f's_add_u32 s{sF0}, s{sF0}, {XB + 832}', f'v_add_u32 v{fa}, s{sF0}, v{fa}',
          f'v_cmp_gt_u32 vcc, 8, v{vN}', f'v_mov_b32 v{fb}, 0x3f803f80', f'v_and_b32 v{fc}, 1, v{vL}',
          f'v_cndmask_b32 v{fb}, 0, v{fb}, vcc', f'ds_write_b32 v{fa}, v{fb}')
    for R in range(2):
        F.add(f'v_add_u32 v{fa}, {16*R}, v{vN}', f'v_and_b32 v{fb}, 1, v{fa}', f'v_lshlrev_b32 v{fb}, 4, v{fb}',
              f'v_mov_b32 v{fc}, 0x3f80', f'v_cmp_gt_u32 vcc, 26, v{fa}', f'v_lshlrev_b32 v{fb}, v{fb}, v{fc}',
              f'v_lshrrev_b32 v{fa}, 1, v{fa}', f'v_lshlrev_b32 v{fc}, 2, v{vG}', f'v_cndmask_b32 v{fb}, 0, v{fb}, vcc',
              f'v_sub_u32 v{fa}, v{fa}, v{fc}')
        F.add(*[f'v_cmp_eq_u32 {ms[dw]}, {dw}, v{fa}' for dw in range(4)])
        F.add(*[f'v_cndmask_b32 v{EF+4*R+dw}, 0, v{fb}, {ms[dw]}' for dw in range(4)])
    F.add(*f_common_a())
    F.add(*f_setup_dnn())
    F.drain(e, opts.get('preb0L', 60))
    I('s_waitcnt lgkmcnt(0)')
    I('s_barrier')
    ST(e, 'b0')
    for t in range(13):
        I(f's_add_u32 m0, s{sStage}, {t*1024}')
        I(f's_add_u32 s{sT1}, s{sSrc}, {t*2704}')
        I(f'buffer_load_dwordx4 v{vSO + (t & 3)}, {srd(S_CIN)}, s{sT1} offen lds')
        F.drain(e, gapL)
    F.drain(e)
    I(f's_mul_i32 s{sT0}, s{sI0}, 1352')
    for u in range(7):
        if u == 6:
            I(f's_cmp_ge_u32 s{sK}, 2'); I('s_cbranch_scc1 L_w0done')
        if u == opts.get('b1_at', 2):
            I(f's_waitcnt vmcnt({2*u}) lgkmcnt(0)')
            I('s_barrier')
            ST(e, 'b1')
            e.ds_q = []
        I(f's_add_u32 s{sT1}, s{sT0}, {u*1352}')
        for R in range(2):
            I(f'buffer_load_dwordx4 {vr(FF+8*u+4*R,4)}, v{vFO+R}, {srd(S_CIN)}, s{sT1} offen')
    e.label('L_w0done')
    I(f'v_and_b32 v{a}, 1, v{vL}')
    I(f'v_lshlrev_b32 v{a}, 4, v{a}')
    for bb in range(4):
        I(f'v_lshl_add_u32 v{vIDX+bb}, v{vIDX+bb}, 5, v{a}')
    I(f's_mul_i32 s{sT0}, s{sK}, {4*XS}')
    I(f's_mov_b64 exec, {sp(sE52)}')
    for bb in range(4):
        I(f's_add_u32 m0, s{sT0}, {XB + bb*XS}')
        I('s_nop 0')
        I(f'buffer_load_dwordx4 v{vIDX+bb}, {srd(S_TAB)}, 0 offen lds')
    I('s_mov_b64 exec, -1')
    ST(e, 'pre1')
    acc_init_dnn(e)
    prev = None
    for u in range(7):
        if u == 6:
            I(f's_cmp_ge_u32 s{sK}, 2'); I('s_cbranch_scc1 L_plast')
        n = 2 * (5 - u) + 4 if u <= 5 else 4
        I(f's_waitcnt vmcnt({n})')
        f = FF + 8 * u
        unit(e, f, f + 4, EF, EF + 4, DD[u & 1], None if prev is None else (DD[prev & 1], prev, FR_P))
        prev = u
    unit_store(e, DD[6 & 1], 6, FR_P)
    I('s_branch L_pend')
    e.label('L_plast')
    unit_store(e, DD[5 & 1], 5, FR_P)
    e.label('L_pend')
    ST(e, 'units')
    dma_step(e, 0, 'L0')
    I('s_waitcnt lgkmcnt(0)')
    ST(e, 'fold')
    I('s_barrier')
    ST(e, 'b2')
    e.ds_q = []
    if debug == 'fold':
        e.label('L_dbg')
        I('s_waitcnt vmcnt(0)'); I('s_barrier')
        dump_lds(e)
        return finish(e, opts)
    main_dnn(e, debug, opts)
    final(e, debug, opts)
    return finish(e, opts)

def dma_step(e, step, tag):
    I = e.I
    slot = step % 3
    I(f's_mov_b32 s{sT3}, {step*26624}')
    for u in range(7):
        if u == 6:
            I(f's_cmp_ge_u32 s{sK}, 2'); I(f's_cbranch_scc1 L_dma_{tag}')
        I(f's_add_u32 m0, s{sDma}, {slot*SLOT + u*4096}')
        I('s_nop 0')
        I(f'buffer_load_dwordx4 v{vDMA+u}, {srd(S_W1)}, s{sT3} offen lds')
    e.label(f'L_dma_{tag}')

def unit(e, X0, X1, Y0, Y1, D, prev):
    I = e.I
    mf = []
    def m(dd, A, B, first):
        mf.append(f'v_mfma_f32_16x16x32_bf16 {vr(dd,4)}, {vr(A,4)}, {vr(B,4)}, ' + ('0' if first else vr(dd, 4)))
    m(D, X0, Y0, True); m(D + 4, X1, Y0, True); m(D + 8, X1, Y1, True)
    m(D, Y0, X0, False); m(D + 4, Y1, X0, False); m(D + 8, Y1, X1, False)
    fill = []
    if prev is not None:
        PD, pu, setbase = prev
        for ti in range(3):
            fill.append(f'v_cvt_pk_bf16_f32 v{DC+2*ti}, v{PD+4*ti}, v{PD+4*ti+1}')
            fill.append(f'v_cvt_pk_bf16_f32 v{DC+2*ti+1}, v{PD+4*ti+2}, v{PD+4*ti+3}')
        for ti in range(3):
            fill.append(f'ds_write_b32 v{vWA+ti}, v{DC+2*ti} offset:{setbase + pu*16}')
            fill.append(f'ds_write_b32 v{vWB+ti}, v{DC+2*ti+1} offset:{setbase + pu*16}')
    for i in range(6):
        I(mf[i])
        for f in fill[2*i:2*i+2]:
            I(f)

def unit_store(e, D, u, setbase):
    I = e.I
    for ti in range(3):
        I(f'v_cvt_pk_bf16_f32 v{DC+2*ti}, v{D+4*ti}, v{D+4*ti+1}')
        I(f'v_cvt_pk_bf16_f32 v{DC+2*ti+1}, v{D+4*ti+2}, v{D+4*ti+3}')
    for ti in range(3):
        I(f'ds_write_b32 v{vWA+ti}, v{DC+2*ti} offset:{setbase + u*16}')
        I(f'ds_write_b32 v{vWB+ti}, v{DC+2*ti+1} offset:{setbase + u*16}')

def dump_lds(e):
    I = e.I
    I('v_mbcnt_lo_u32_b32 v1, -1, 0'); I('v_mbcnt_hi_u32_b32 v1, -1, v1')
    I(f's_lshl_b32 s{sT0}, s{sW}, 10')
    I('v_lshlrev_b32 v1, 4, v1')
    I(f'v_add_u32 v1, s{sT0}, v1')
    I(f's_mul_i32 s{sT1}, s2, {LDS_TOTAL}')
    I(f'v_add_u32 v2, s{sT1}, v1')
    I(f's_mov_b32 s{sT2}, 0')
    e.label('L_dump')
    I('ds_read_b128 v[4:7], v1')
    I('s_waitcnt lgkmcnt(0)')
    I('global_store_dwordx4 v2, v[4:7], s[22:23]')
    I('s_waitcnt vmcnt(0)')
    I('v_add_u32 v1, 8192, v1'); I('v_add_u32 v2, 8192, v2')
    I(f's_add_u32 s{sT2}, s{sT2}, 1')
    I(f's_cmp_lt_u32 s{sT2}, 20')
    e.raw('    s_cbranch_scc1 L_dump')

def main_cin(e, debug, opts):
    I = e.I
    steps = step_list()
    sched = opts.get('sched', [1, 2, 3, 2, 3, 2, 3, 2, 2, 3, 2, 3, 0])
    assert sum(sched) == 28 and len(sched) == 13
    sc = []; si = 0
    for n in sched:
        sc.append(list(range(si, si + n))); si += n
    XR = [XA, XBB]; ZZ = [ZA, ZBB]
    af_ids = {}
    def af_read(s):
        buf = AF[s & 1]
        I(f'ds_read_b128 {vr(buf,4)}, v{vAF} offset:{FR_P + s*FST}')
        af_ids[s] = I(f'ds_read_b128 {vr(buf+4,4)}, v{vAF} offset:{FR_Q + s*FST}')
    def z_half(X, s, pi):
        aa, bb = steps[s]
        mod = ' div:2' if aa == bb else ''
        t = ZT + 4 * pi
        x = XR[X]
        for qi in range(4):
            if mod: I(f'v_mul_f32_e64 v{t+qi}, v{x+4*aa+pi}, v{x+4*bb+qi}{mod}')
            else: I(f'v_mul_f32 v{t+qi}, v{x+4*aa+pi}, v{x+4*bb+qi}')
        z = ZZ[X][s & 1]
        I(f'v_cvt_pk_bf16_f32 v{z+2*pi}, v{t}, v{t+1}')
        I(f'v_cvt_pk_bf16_f32 v{z+2*pi+1}, v{t+2}, v{t+3}')
    def epilogue():
        t = TMP
        for X in range(2):
            P, Q = ACC[('P', X)], ACC[('Q', X)]
            t = TMP + 4 * X
            I(f'v_mul_f32 v{t}, v{P}, v{Q}')
            I(f'v_mul_f32 v{t+1}, v{P+12}, v{Q+12}')
            I(f'v_mul_f32 v{t+2}, v{P+1}, v{Q+1}')
            I(f'v_fmac_f32 v{t+1}, v{P+13}, v{Q+13}')
            for r in range(2, 12):
                I(f'v_fmac_f32 v{t + 2*(r&1)}, v{P+r}, v{Q+r}')
        I(f'v_cmp_gt_u32 vcc, 32, v{vL}')
        for X in range(2):
            t = TMP + 4 * X
            I(f'v_add_f32 v{t}, v{t}, v{t+2}')
        for X in range(2):
            t = TMP + 4 * X
            I(f'v_cndmask_b32 v{t+1}, 0, v{t+1}, vcc')
        for X in range(2):
            t = TMP + 4 * X
            I(f'v_add_f32 v{t}, v{t}, v{t+1}')
        t = TMP
        I(f'v_and_b32 v{t+2}, 1, v{vG}')
        I(f'v_lshlrev_b32 v{t+2}, 6, v{t+2}')
        I(f'v_lshrrev_b32 v{t+3}, 1, v{vG}')
        I(f'v_lshl_add_u32 v{t+2}, v{t+3}, 2, v{t+2}')
        I(f's_lshl_b32 s{sT0}, s{sK}, 8')
        I(f's_add_u32 s{sT0}, s{sT0}, {RED + 16}')
        I(f'v_add_u32 v{t+2}, s{sT0}, v{t+2}')
        for sh in (8, 4, 2, 1):
            for X in range(2):
                tt = TMP + 4 * X
                I(f'v_add_f32_dpp v{tt}, v{tt}, v{tt} row_ror:{sh} row_mask:0xf bank_mask:0xf')
        I(f's_mov_b32 exec_lo, 0x00010001'); I(f's_mov_b32 exec_hi, 0x00010001')
        I(f'ds_write_b32 v{t+2}, v{TMP}')
        I(f'ds_write_b32 v{t+2}, v{TMP+4} offset:128')
        I('s_mov_b64 exec, -1')
    for j in range(13):
        e.comment(f'---- CIN interval {j}')
        I('s_barrier')
        ST(e, f'it{j}')
        if j == 0:
            xa = [I(f'ds_read_b64_tr_b16 {vr(XPA+2*q,2)}, v{vTRX} offset:{128*q}') for q in range(7)]
            xb = [I(f'ds_read_b64_tr_b16 {vr(XPB+2*q,2)}, v{vTRX} offset:{2*XS + 128*q}') for q in range(7)]
            e.wait_ds(xa[-1])
            af_read(0); af_read(1)
            for q in range(7):
                for h in range(2):
                    I(f'v_lshlrev_b32 v{XA+4*q+2*h}, 16, v{XPA+2*q+h}')
                    I(f'v_and_b32 v{XA+4*q+2*h+1}, 0xffff0000, v{XPA+2*q+h}')
            z_half(0, 0, 0); z_half(0, 0, 1)
            e.wait_ds(xb[-1])
            for q in range(7):
                for h in range(2):
                    I(f'v_lshlrev_b32 v{XBB+4*q+2*h}, 16, v{XPB+2*q+h}')
                    I(f'v_and_b32 v{XBB+4*q+2*h+1}, 0xffff0000, v{XPB+2*q+h}')
            z_half(1, 0, 0); z_half(1, 0, 1)
        for s in ([] if opts.get('no_cin') else sc[j]):
            e.wait_ds(af_ids[s])
            buf = AF[s & 1]
            for X in range(2):
                z = ZZ[X][s & 1]
                P, Q = ACC[('P', X)], ACC[('Q', X)]
                I(f'v_mfma_f32_32x32x16_bf16 {vr(P,16)}, {vr(buf,4)}, {vr(z,4)}, {vr(P,16)}')
                if s + 1 < 28: z_half(X, s + 1, 0)
                I(f'v_mfma_f32_32x32x16_bf16 {vr(Q,16)}, {vr(buf+4,4)}, {vr(z,4)}, {vr(Q,16)}')
                if X == 1 and s + 2 < 28: af_read(s + 2)
                if s + 1 < 28: z_half(X, s + 1, 1)
        if j == 12 or (sc[j] and sc[j][-1] == 27 and j < 12 and False):
            pass
        if (not sc[j]) and j > 0 and sc[j-1] and sc[j-1][-1] == 27:
            epilogue()
    if sc[12]:
        epilogue()
    I('s_waitcnt lgkmcnt(0)')
    ST(e, 'gelu')
    I('s_branch L_join')

def main_dnn(e, debug, opts):
    I = e.I
    e.last = {}
    if opts.get('prio', 0):
        I('s_setprio 1')
    dma_step(e, 1, 'C1')
    def mfmas(j):
        if opts.get('no_dmfma'): return
        for u in range(7):
            if u == 6:
                I(f's_cmp_ge_u32 s{sK}, 2'); I(f's_cbranch_scc1 L_m6_{j}')
            I(f'v_mfma_f32_16x16x32_bf16 {vr(DACC+4*u,4)}, {vr(XF[j&1],4)}, {vr(WF[j&1]+4*u,4)}, {vr(DACC+4*u,4)}')
        e.label(f'L_m6_{j}')
    for j in range(13):
        e.comment(f'---- DNN interval {j}')
        if j < 12 and opts.get('exactvm', 1):
            I(f's_cmp_ge_u32 s{sK}, 2'); I(f's_cbranch_scc1 L_vw6_{j}')
            I('s_waitcnt vmcnt(7) lgkmcnt(0)')
            I(f's_branch L_vwd_{j}')
            e.label(f'L_vw6_{j}')
            I('s_waitcnt vmcnt(6) lgkmcnt(0)')
            e.label(f'L_vwd_{j}')
        else:
            I(f's_waitcnt vmcnt({6 if j < 12 else 0}) lgkmcnt(0)')
        I('s_barrier')
        ST(e, f'it{j}')
        order = opts.get('dorder', 'drm')
        pm = opts.get('pmode', 0)
        if pm: I('s_setprio 3')
        if order[0] == 'd' and j <= 10 and not opts.get('no_dma'):
            dma_step(e, j + 2, f'M{j}')
        if pm == 1: I('s_setprio 0')
        if order == 'mrd' or order == 'mdr':
            if j >= 1: mfmas(j - 1)
            if order == 'mdr' and j <= 10: dma_step(e, j + 2, f'M{j}')
        slot = j % 3
        I(f'ds_read_b128 {vr(XF[j&1],4)}, v{vXF} offset:{64*j}')
        for u in range(0 if opts.get('no_dread') else 7):
            if u == 6:
                I(f's_cmp_ge_u32 s{sK}, 2'); I(f's_cbranch_scc1 L_r6_{j}')
            for jj in range(2):
                I(f'ds_read_b64_tr_b16 {vr(WF[j&1]+4*u+2*jj,2)}, v{vTRW} offset:{slot*SLOT + jj*4*WROW + u*128}')
        if not opts.get('no_dread'): e.label(f'L_r6_{j}')
        if pm == 2: I('s_setprio 0')
        if order in ('rdm', 'mrd') and j <= 10:
            dma_step(e, j + 2, f'M{j}')
        if j >= 1 and order in ('drm', 'rdm'):
            mfmas(j - 1)
    I('s_waitcnt lgkmcnt(0)')
    mfmas(12)
    ST(e, 'gelu')
    G = TMP
    T = TMP + 4
    C1, C0, ONE = CST, CST + 2, CST + 4
    def gelu(pairs, first):
        def each(fn):
            for k_, (x, u, h) in enumerate(pairs):
                fn(x, T + 2 * k_, u, h, k_)
        each(lambda x, t, u, h, k_: I(f'v_pk_mul_f32 {vr(t,2)}, {vr(x,2)}, {vr(x,2)}'))
        each(lambda x, t, u, h, k_: I(f'v_pk_fma_f32 {vr(t,2)}, {vr(t,2)}, {vr(C1,2)}, {vr(C0,2)}'))
        each(lambda x, t, u, h, k_: I(f'v_pk_mul_f32 {vr(t,2)}, {vr(t,2)}, {vr(x,2)}'))
        each(lambda x, t, u, h, k_: (I(f'v_exp_f32 v{t}, v{t}'), I(f'v_exp_f32 v{t+1}, v{t+1}')))
        each(lambda x, t, u, h, k_: I(f'v_pk_mul_f32 {vr(x,2)}, {vr(x,2)}, {vr(W2V + (u & ~1), 2)} op_sel:[0,{u&1}] op_sel_hi:[1,{u&1}]'))
        each(lambda x, t, u, h, k_: I(f'v_pk_add_f32 {vr(t,2)}, {vr(t,2)}, {vr(ONE,2)}'))
        each(lambda x, t, u, h, k_: (I(f'v_rcp_f32 v{t}, v{t}'), I(f'v_rcp_f32 v{t+1}, v{t+1}')))
        def last(x, t, u, h, k_):
            if first and k_ < 2: I(f'v_pk_mul_f32 {vr(G+2*h,2)}, {vr(t,2)}, {vr(x,2)}')
            else: I(f'v_pk_fma_f32 {vr(G+2*h,2)}, {vr(t,2)}, {vr(x,2)}, {vr(G+2*h,2)}')
        each(last)
    allp = [(DACC + 4*u + 2*h, u, h) for u in range(6) for h in range(2)]
    gelu(allp[0:4], True); gelu(allp[4:8], False); gelu(allp[8:12], False)
    I(f's_cmp_ge_u32 s{sK}, 2'); I(f's_cbranch_scc1 L_g6')
    gelu([(DACC + 24 + 2*h, 6, h) for h in range(2)], False)
    e.label('L_g6')
    I(f'v_lshlrev_b32 v{T}, 8, v{vG}')
    I(f's_lshl_b32 s{sT0}, s{sK}, 2')
    I(f's_add_u32 s{sT0}, s{sT0}, {RED}')
    I(f'v_add_u32 v{T}, s{sT0}, v{T}')
    for sh in (8, 4, 2, 1):
        for r in range(4):
            I(f'v_add_f32_dpp v{G+r}, v{G+r}, v{G+r} row_ror:{sh} row_mask:0xf bank_mask:0xf')
    I(f's_mov_b32 exec_lo, 0x00010001'); I(f's_mov_b32 exec_hi, 0x00010001')
    for r in range(4):
        I(f'ds_write_b32 v{T}, v{G+r} offset:{64*r}')
    I('s_mov_b64 exec, -1')
    I('s_waitcnt lgkmcnt(0)')

def final(e, debug, opts):
    I = e.I
    T = TMP + 4
    e.last = {}
    e.label('L_join')
    I('s_barrier')
    if debug == 'red':
        dump_lds(e); return
    if debug == 'stamp':
        ST(e, 'fin')
        ST.flush(e)
        open('stamp_names.txt', 'w').write(' '.join(ST.names))
        return
    I(f's_cmp_lg_u32 s{sW}, 0'); I('s_cbranch_scc1 L_end')
    I('s_mov_b32 exec_lo, 0xffff'); I('s_mov_b32 exec_hi, 0')
    I(f'v_lshlrev_b32 v{T}, 6, v{vL}')
    I(f'v_add_u32 v{T}, {RED}, v{T}')
    I(f'ds_read_b128 {vr(8,4)}, v{T}')
    I(f'ds_read_b64 {vr(12,2)}, v{T} offset:16')
    I(f's_mov_b32 s{S_OUT}, s20'); I(f's_mov_b32 s{S_OUT+1}, s21')
    I(f's_mov_b32 s{S_OUT+2}, 8192'); I(f's_mov_b32 s{S_OUT+3}, 0x20000')
    I(f's_lshl_b32 s{sBO}, s{sBO}, 16')
    I(f's_lshl_b32 s{sT0}, s2, 5')
    I(f'v_lshlrev_b32 v{T+1}, 1, v{vL}')
    I(f'v_add_u32 v{T+1}, s{sT0}, v{T+1}')
    I('s_waitcnt lgkmcnt(0)')
    I('v_add_f32 v8, v8, v9'); I('v_add_f32 v10, v10, v11'); I('v_add_f32 v12, v12, v13')
    I('v_add_f32 v8, v8, v10')
    I(f'v_add_f32 v12, s{sBO}, v12')
    I('v_add_f32 v8, v8, v12')
    I('v_cvt_pk_bf16_f32 v8, v8, v8')
    I(f'buffer_store_short v8, v{T+1}, {srd(S_OUT)}, 0 offen')
    I('s_waitcnt vmcnt(0)')

def finish(e, opts):
    e.label('L_end')
    body = e.text()
    hdr = f"""; xDeepFM (CIN + DNN) fused kernel, generated by my own generator script.
; One workgroup = 16 batch rows, 8 waves.  CIN layers are folded at run time into two quadratic forms.
; @launch grid=(256,1,1) block=(512,1,1) lds={LDS_TOTAL}
.amdgcn_target "amdgcn-amd-amdhsa--gfx950"
.text
.globl {KN}
.p2align 8
.type {KN},@function
{KN}:
"""
    ftr = f"""    s_endpgm
.section .rodata,"a"
.p2align 6
.amdhsa_kernel {KN}
  .amdhsa_next_free_vgpr 256
  .amdhsa_next_free_sgpr 102
  .amdhsa_accum_offset 256
  .amdhsa_group_segment_fixed_size 0
  .amdhsa_kernarg_size 88
  .amdhsa_user_sgpr_count 2
  .amdhsa_user_sgpr_kernarg_segment_ptr 1
  .amdhsa_system_sgpr_workgroup_id_x 1
  .amdhsa_ieee_mode 0
.end_amdhsa_kernel
"""
    return hdr + body + ftr

if __name__ == '__main__':
    dbg = sys.argv[2] if len(sys.argv) > 2 and sys.argv[2] != 'none' else None
    opts = eval(sys.argv[3]) if len(sys.argv) > 3 else {}
    out = build(dbg, opts)
    open(sys.argv[1], 'w').write(out)
    print('wrote', sys.argv[1], len(out), 'bytes')
```

```python
import sys, os
from emit import Emit

KN = "standalone__deep_cross_xdeepfm__recsys_kernel"

FR_P = 0; FST = 1040; FR_Q = 28 * FST
XB = 58240; XS = 912
HB = 72832
RB = 75264; SLOT = 26624; WROW = 832
WB1 = RB + SLOT
STG = 13312
SM = 155136; SM_A0 = SM; SM_B1 = SM + 64; SM_W2 = SM + 896
RED = SM + 1728
LDS_TOTAL = 163840
OOB_LDS = 0x40000
CIN_L = 35152
assert WB1 % 512 == 0 and WB1 + 4 * STG <= SM

S_IDX, S_TAB, S_CIN, S_W1 = 24, 28, 32, 36
S_A0, S_B1, S_W2, S_OUT = 40, 52, 56, 60
sA2 = 96
sW, sK = 64, 65
sBO = 66
sI0 = 67
sT0, sT1, sT2, sT3 = 68, 69, 70, 71
sMN10 = 78
sE52 = 80
sStage, sSrc = 82, 83
sC0, sC1, sC2 = 84, 85, 86
sX0 = 88
sF0, sF1, sF2 = 84, 85, 86
sDma = 92
sSL = 93
SA = 44
def srd(n): return f"s[{n}:{n+3}]"
def sp(n): return f"s[{n}:{n+1}]"
def vr(a, n=1): return f"v{a}" if n == 1 else f"v[{a}:{a+n-1}]"

vL = 0
TMP = 122
fa, fb, fc, fd, fe = 132, 133, 134, 135, 136
vN, vG, vR4, vC4 = 142, 143, 144, 145
vWA = 146
vWB = 149
DD = [152, 164]
DC = 176
vSO = 182
vDUM = 186
SEL = 2; UACC = 18; FIX = 34; HF = 42; vA2 = 50
TAD = 188
UB = 54
FF = 2; EF = 60; vIDX = 68; vFO = 72
XA = 2; XBB = 30
ZA = [58, 62]; ZBB = [66, 70]
ZT = 74
AF = [82, 90]
vAF = 100; vTRX = 101
XPA = 104; XPB = 152
ACC = {('P', 0): 192, ('Q', 0): 208, ('P', 1): 224, ('Q', 1): 240}
vDMA = 100
vTRW = 107; vXF = 108
WF = [2, 30]
XF = [58, 62]
DACC = 208
W2V = 236
CST = 244

STAMP_SLOTS = [94, 98, 100, 72, 74, 76] + list(range(44, 60, 2)) + [24, 26, 28, 30, 4, 6, 8, 10, 40, 42, 14, 16]
class Stamps:
    def __init__(self, on): self.on = on; self.names = []
    def __call__(self, e, name):
        if not self.on: return
        if name in self.names: i = self.names.index(name)
        else:
            i = len(self.names); self.names.append(name)
        r = STAMP_SLOTS[i]
        e.I(f's_memtime s[{r}:{r+1}]')
    def flush(self, e):
        if not self.on: return
        I = e.I
        I('s_mov_b64 exec, -1')
        I('s_waitcnt vmcnt(0) lgkmcnt(0)')
        for i in range(len(self.names)):
            I(f'v_writelane_b32 v200, s{STAMP_SLOTS[i]}, {i}')
        I('s_memrealtime s[68:69]')
        I('s_waitcnt lgkmcnt(0)')
        I('v_writelane_b32 v200, s68, 31')
        I('v_mbcnt_lo_u32_b32 v201, -1, 0'); I('v_mbcnt_hi_u32_b32 v201, -1, v201')
        I('v_lshlrev_b32 v201, 2, v201')
        I(f's_lshl_b32 s70, s2, 3'); I(f's_add_u32 s70, s70, s{sW}'); I('s_lshl_b32 s70, s70, 8')
        I('v_add_u32 v201, s70, v201')
        I('global_store_dword v201, v200, s[22:23]')
        I('s_waitcnt vmcnt(0)')
ST = Stamps(False)

def step_list():
    return [(a, b) for b in range(7) for a in range(b + 1)]

def mk_srd(e, n, lo, size, add=0):
    I = e.I
    if add:
        I(f's_add_u32 s{n}, s{lo}, {add}')
        I(f's_addc_u32 s{n+1}, s{lo+1}, 0')
    else:
        I(f's_mov_b32 s{n}, s{lo}')
        I(f's_mov_b32 s{n+1}, s{lo+1}')
    I(f's_mov_b32 s{n+2}, {size}')
    I(f's_mov_b32 s{n+3}, 0x20000')


class FQ:
    def __init__(self): self.q = []
    def add(self, *items): self.q.extend(items)
    def drain(self, e, n=10**9):
        k = 0
        while self.q and k < n:
            it = self.q.pop(0)
            if isinstance(it, list):
                for x in it: e.I(x)
                k += len(it)
            else:
                e.I(it); k += 1

def f_srd(n, lo, size):
    return [f's_mov_b32 s{n}, s{lo}', f's_mov_b32 s{n+1}, s{lo+1}', f's_mov_b32 s{n+2}, {size}', f's_mov_b32 s{n+3}, 0x20000']

def f_common_a():
    L = []
    L += [f'v_bfe_u32 v{fa}, v{vN}, 1, 1', f'v_mul_u32_u24 v{fb}, 516, v{fa}', f'v_and_b32 v{fc}, 1, v{vN}',
          f'v_lshl_add_u32 v{fb}, v{fc}, 3, v{fb}', f's_lshl_b32 s{sF0}, s{sI0}, 4', f'v_add_u32 v{fb}, s{sF0}, v{fb}',
          f'v_lshrrev_b32 v{fc}, 2, v{vN}', f's_movk_i32 s{sF2}, {FST}', f'v_lshlrev_b32 v{fe}, 2, v{vL}', f'v_add_u32 v{fe}, {OOB_LDS}, v{fe}',
          f'v_cmp_le_u32 s[72:73], v{fc}, v{vG}', f'v_cmp_ge_u32 s[74:75], 2, v{vG}']
    first = True
    for ti, (M, N) in enumerate(((0, 0), (1, 0), (1, 1))):
        L += [f'v_add_u32 v{fa}, {4*M}, v{vG}', f'v_add_u32 v{fd}, 1, v{fa}', f'v_mul_u32_u24 v{fd}, v{fd}, v{fa}',
              f'v_lshrrev_b32 v{fd}, 1, v{fd}', f'v_add3_u32 v{fd}, v{fd}, v{fc}, {4*N}', f'v_mad_u32_u24 v{fd}, v{fd}, s{sF2}, v{fb}']
        if first:
            L += [f's_and_b64 s[76:77], s[72:73], s[74:75]']; first = False
        L += [f'v_cndmask_b32 v{vWA+ti}, v{fe}, v{fd}, s[{72+2*ti}:{73+2*ti}]', f'v_xor_b32 v{vWB+ti}, 4, v{vWA+ti}']
    return L

def f_setup_cin():
    L = [f'v_lshlrev_b32 v{vAF}, 4, v{vL}',
         f'v_lshrrev_b32 v{fb}, 1, v{vG}', f'v_and_b32 v{fc}, 1, v{vG}', f's_movk_i32 s{sF1}, {XS}',
         f'v_lshlrev_b32 v{fa}, 1, v{fb}', f'v_xor_b32 v{fa}, v{fa}, v{vR4}', f'v_lshlrev_b32 v{fa}, 5, v{fa}',
         f'v_lshl_add_u32 v{fa}, v{vC4}, 3, v{fa}', f'v_mad_u32_u24 v{fa}, v{fc}, s{sF1}, v{fa}',
         f's_mul_i32 s{sF0}, s{sK}, {4*XS}', f's_add_u32 s{sF0}, s{sF0}, {XB}', f'v_add_u32 v{vTRX}, s{sF0}, v{fa}']
    return L

def f_setup_dnn():
    L = [f's_lshl_b32 s{sF0}, s{sK}, 6', f's_movk_i32 s{sF1}, 20165', f's_movk_i32 s{sF2}, 832']
    for u in range(7):
        L += [f'v_add_u32 v{fa}, s{sF0}, v{vL}'] + ([f'v_add_u32 v{fa}, {256*u}, v{fa}'] if u else [])
        L += [f'v_mul_u32_u24 v{fc}, s{sF1}, v{fa}', f'v_lshrrev_b32 v{fc}, 20, v{fc}', f'v_mul_u32_u24 v{fd}, 52, v{fc}',
              f'v_sub_u32 v{fa}, v{fa}, v{fd}', f'v_bfe_u32 v{fd}, v{fc}, 3, 1', f'v_lshlrev_b32 v{fd}, 1, v{fd}',
              f'v_xor_b32 v{fa}, v{fa}, v{fd}', f'v_lshlrev_b32 v{fa}, 4, v{fa}', f'v_mad_u32_u24 v{vDMA+u}, v{fc}, s{sF2}, v{fa}']
    L += [f's_lshl_b32 s{sDma}, s{sK}, 10', f's_add_u32 s{sDma}, s{sDma}, {RB}']
    L += [f'v_and_b32 v{fc}, 1, v{vG}', f'v_lshl_add_u32 v{fa}, v{vG}, 3, v{vR4}', f'v_mul_u32_u24 v{fa}, s{sF2}, v{fa}',
          f'v_lshl_add_u32 v{fa}, v{vC4}, 3, v{fa}', f'v_xor_b32 v{fd}, s{sK}, v{fc}', f'v_lshl_add_u32 v{fa}, v{fd}, 5, v{fa}',
          f'v_add_u32 v{vTRW}, {RB}, v{fa}']
    L += [f's_movk_i32 s{sF1}, {XS}', f'v_lshlrev_b32 v{fa}, 4, v{vG}', f'v_mad_u32_u24 v{fa}, v{vN}, s{sF1}, v{fa}',
          f'v_add_u32 v{vXF}, {XB}, v{fa}']
    return L

def acc_init_cin(e):
    I = e.I
    I(f'v_lshrrev_b32 v{fa}, 5, v{vL}')
    I(f'v_lshlrev_b32 v{fa}, 3, v{fa}')
    I(f'v_add_u32 v{fa}, {SM_A0}, v{fa}')
    ids = [I(f'ds_read_b64 {vr(XPA+2*g,2)}, v{fa} offset:{16*g}') for g in range(4)]
    for X in range(2):
        for r in range(16):
            I(f'v_mov_b32 v{ACC[("P",X)]+r}, 0')
    e.wait_ds(ids[-1])
    QA, QB = ACC[('Q', 0)], ACC[('Q', 1)]
    for g in range(4):
        for q in range(2):
            I(f'v_lshlrev_b32 v{QA+4*g+2*q}, 16, v{XPA+2*g+q}')
            I(f'v_and_b32 v{QA+4*g+2*q+1}, 0xffff0000, v{XPA+2*g+q}')
            I(f'v_lshlrev_b32 v{QB+4*g+2*q}, 16, v{XPA+2*g+q}')
            I(f'v_and_b32 v{QB+4*g+2*q+1}, 0xffff0000, v{XPA+2*g+q}')

def acc_init_dnn(e):
    I = e.I
    I(f's_lshl_b32 s{sF0}, s{sK}, 5')
    I(f's_add_u32 s{sF0}, s{sF0}, {SM_B1}')
    I(f'v_lshlrev_b32 v{fb}, 1, v{vN}')
    I(f'v_add_u32 v{fb}, s{sF0}, v{fb}')
    B = 110
    for u in range(7):
        I(f'v_mov_b32 v{B+u}, 0')
        I(f'v_mov_b32 v{W2V+u}, 0')
    ids = []
    for u in range(7):
        ids.append(I(f'ds_read_u16_d16_hi v{B+u}, v{fb} offset:{128*u}'))
        ids.append(I(f'ds_read_u16_d16_hi v{W2V+u}, v{fb} offset:{832 + 128*u}'))
    for q, val in enumerate(('0xbdd2d3e8', '0xbdd2d3e8', '0xc0135761', '0xc0135761', '1.0', '1.0')):
        I(f'v_mov_b32 v{CST+q}, {val}')
    e.wait_ds(ids[-1])
    for u in range(7):
        for r in range(4):
            I(f'v_mov_b32 v{DACC+4*u+r}, v{B+u}')

def build(debug=None, opts=None):
    global ST
    opts = opts or {}
    e = Emit(); I = e.I
    a, b, c, d = TMP, TMP + 1, TMP + 2, TMP + 3
    vHS, vPB = TMP + 4, TMP + 5
    touch = opts.get('touch', True)
    ncode = opts.get('code_lines', 5)
    gapU = opts.get('gapU', 14); gapL = opts.get('gapL', 10)
    I('s_cmp_ge_u32 s2, 256')
    I('s_cbranch_scc1 L_end')
    I('s_load_dwordx16 s[4:19], s[0:1], 0')
    I('s_load_dwordx2 s[20:21], s[0:1], 64')
    ST = Stamps(debug in ('stamp', 'hstamp'))
    ST(e, 'start')
    if debug == 'hstamp':
        I('s_load_dwordx2 s[22:23], s[0:1], 72')
    elif debug:
        I('s_load_dwordx2 s[22:23], s[0:1], 80')
    I(f'v_lshrrev_b32 v1, 6, v0')
    I(f'v_and_b32 v{vL}, 63, v0')
    I(f'v_readfirstlane_b32 s{sW}, v1')
    I(f's_bfe_u32 s{sSL}, s2, 0x50003')
    I(f'v_and_b32 v{vN}, 15, v{vL}')
    I(f'v_lshrrev_b32 v{vG}, 4, v{vL}')
    I(f'v_bfe_u32 v{vR4}, v{vL}, 2, 2')
    I(f'v_and_b32 v{vC4}, 3, v{vL}')
    I(f's_and_b32 s{sK}, s{sW}, 3')
    if touch:
        I(f's_cmp_eq_u32 s{sW}, 7'); I('s_cbranch_scc0 L_nocode')
        I(f's_getpc_b64 {sp(sX0)}')
        I(f's_and_b32 s{sX0}, s{sX0}, 0xffffff00')
        I(f's_mul_i32 s{sT0}, s{sSL}, {ncode*128}')
        I(f'v_lshlrev_b32 v{a}, 7, v{vL}')
        I(f'v_add_u32 v{a}, s{sT0}, v{a}')
        I(f's_mov_b32 exec_lo, {(1 << ncode) - 1}'); I('s_mov_b32 exec_hi, 0')
        I(f'global_load_dword v{vDUM}, v{a}, {sp(sX0)}')
        I('s_mov_b64 exec, -1')
        e.label('L_nocode')
    I(f's_mul_i32 s{sI0}, s{sK}, 7')
    I(f's_cmp_eq_u32 s{sK}, 3')
    I(f's_cselect_b32 s{sT0}, 1, 0')
    I(f's_sub_u32 s{sI0}, s{sI0}, s{sT0}')
    I(f's_mov_b32 s{sE52}, -1')
    I(f's_mov_b32 s{sE52+1}, 0x000fffff')
    I(f'v_lshrrev_b32 v{a}, 5, v{vL}')
    I(f'v_and_b32 v{b}, 1, v{vL}')
    I(f'v_lshlrev_b32 v{b}, 4, v{b}')
    I(f's_movk_i32 s{sC0}, 1352')
    I(f'v_mad_u32_u24 v{vHS}, v{a}, s{sC0}, v{b}')
    I(f'v_bfe_u32 v{b}, v{vL}, 1, 4')
    I(f'v_xor_b32 v{vPB}, v{b}, v{a}')
    I(f's_cmp_ge_u32 s{sW}, 4')
    I('s_cbranch_scc1 L_Lpath')

    I(f's_movk_i32 s{sC1}, 624')
    for tm in range(4):
        I(f'v_xor_b32 v{a}, {2*tm}, v{vPB}')
        I(f'v_and_b32 v{b}, 1, v{a}')
        I(f'v_lshl_add_u32 v{vSO+tm}, v{b}, 5, v{vHS}')
        I(f'v_lshrrev_b32 v{b}, 1, v{a}')
        I(f'v_mad_u32_u24 v{vSO+tm}, v{b}, 52, v{vSO+tm}')
        I(f'v_lshrrev_b32 v{b}, 3, v{a}')
        I(f'v_mad_u32_u24 v{vSO+tm}, v{b}, s{sC1}, v{vSO+tm}')
    I(f's_mul_i32 s{sStage}, s{sK}, {STG}')
    I(f's_mul_i32 s{sSrc}, s{sK}, 208')
    I(f's_add_u32 s{sSrc}, s{sSrc}, {2*CIN_L}')
    if touch:
        I(f's_mul_i32 s{sT0}, s{sSL}, 85')
        I(f's_lshl_b32 s{sT1}, s{sK}, 6')
        I(f's_add_u32 s{sT0}, s{sT0}, s{sT1}')
        I(f's_mul_i32 s{sT1}, s{sSL}, 26')
        I(f's_cmp_eq_u32 s{sK}, 2')
        I(f's_cselect_b32 s{sT0}, s{sT1}, s{sT0}')
        I(f'v_add_u32 v{c}, s{sT0}, v{vL}')
        I(f'v_lshlrev_b32 v{c}, 7, v{c}')
    I(f's_lshl_b32 s{sT2}, s{sK}, 3')
    I(f's_add_u32 s{sT2}, s{sT2}, 52')
    I(f's_add_u32 s{sT3}, s{sT2}, 32')
    I('s_waitcnt lgkmcnt(0)')
    mk_srd(e, S_CIN, 8, 3 * CIN_L)
    mk_srd(e, S_W1, 12, 346112)
    if touch:
        I(f's_cmp_eq_u32 s{sK}, 0'); I('s_cbranch_scc0 L_t1')
        I(f'buffer_load_dword v{vDUM}, v{c}, {srd(S_W1)}, 0 offen')
        I('s_branch L_tdone')
        e.label('L_t1')
        I(f's_cmp_eq_u32 s{sK}, 1'); I('s_cbranch_scc0 L_t2')
        I('s_mov_b32 exec_lo, 0x1fffff'); I('s_mov_b32 exec_hi, 0')
        I(f'buffer_load_dword v{vDUM}, v{c}, {srd(S_W1)}, 0 offen')
        I('s_branch L_tdone')
        e.label('L_t2')
        I(f's_cmp_eq_u32 s{sK}, 2'); I('s_cbranch_scc0 L_tdone')
        I('s_mov_b32 exec_lo, 0x3ffffff'); I('s_mov_b32 exec_hi, 0')
        I(f'buffer_load_dword v{vDUM}, v{c}, {srd(S_CIN)}, 0 offen')
        e.label('L_tdone')
        I('s_mov_b64 exec, -1')
    I(f's_load_dwordx16 s[{SA}:{SA+15}], s[10:11], 104')
    I(f's_load_dwordx2 s[60:61], s[10:11], s{sT2}')
    I(f's_load_dwordx2 s[62:63], s[10:11], s{sT3}')
    I(f's_load_dword s{sBO}, s[18:19], 0')
    F = FQ()
    for j in range(2):
        F.add(f'v_lshl_add_u32 v{fa}, v{vG}, 2, v{vR4}')
        if j: F.add(f'v_add_u32 v{fa}, 16, v{fa}', f'v_min_u32 v{fa}, 25, v{fa}')
        F.add(f'v_and_b32 v{fb}, 7, v{fa}', f'v_lshlrev_b32 v{fb}, 5, v{fb}', f'v_lshl_add_u32 v{fb}, v{fa}, 9, v{fb}',
              f'v_lshl_add_u32 v{fb}, v{vC4}, 3, v{fb}', f'v_add_u32 v{TAD+8*j}, s{sStage}, v{fb}')
        F.add(*[f'v_xor_b32 v{TAD+8*j+x}, {x*32}, v{TAD+8*j}' for x in range(1, 8)])
    F.add(*[f'v_mov_b32 v{UACC+r}, 0' for r in range(16)])
    F.add(*[f'v_mov_b32 v{FIX+r}, 0' for r in range(8)])
    F.add(*f_common_a())
    F.add(*f_setup_cin())
    F2 = FQ()
    F2.add('s_waitcnt lgkmcnt(0)')
    F2.add(*[f's_mov_b32 s{SA+q}, 0' for q in (13, 14, 15)])
    for g in range(4):
        m = 0xffff << (16 * g)
        F2.add([f's_mov_b32 exec_lo, {hex(m & 0xffffffff)}', f's_mov_b32 exec_hi, {hex(m >> 32)}'] +
              [f'v_mov_b32 v{vA2+dw}, s{SA+src}' for dw, src in enumerate((2*g, 2*g+1, 8+2*g, 9+2*g))] + ['s_mov_b64 exec, -1'])
    F2.add(f's_lshl_b32 s{sF0}, s{sK}, 2')
    ms = ['s[72:73]', 's[74:75]', 's[76:77]', 'vcc']
    for r in range(4):
        F2.add(f's_add_u32 s{sF1}, s{sF0}, {r}', f'v_cmp_eq_u32 {ms[r]}, s{sF1}, v{vN}')
    for r in range(4):
        F2.add(*[f'v_cndmask_b32 v{SEL+4*r+dw}, 0, v{vA2+dw}, {ms[r]}' for dw in range(4)])
    F2.add(f's_cmp_le_u32 s{sK}, 2', 's_cselect_b32 s62, s62, 0', f's_cmp_le_u32 s{sK}, 1', 's_cselect_b32 s63, s63, 0')
    grp = ['s_mov_b32 exec_lo, 0x04000400', 's_mov_b32 exec_hi, 0x04000400']
    for h in range(2):
        for q in range(2):
            src = 60 + 2 * h + q
            grp += [f's_lshl_b32 s{sF1}, s{src}, 16', f's_and_b32 s{sF2}, s{src}, 0xffff0000',
                    f'v_mov_b32 v{FIX+4*h+2*q}, s{sF1}', f'v_mov_b32 v{FIX+4*h+2*q+1}, s{sF2}']
    grp += ['s_mov_b64 exec, -1']
    F2.add(grp)
    for t in range(13):
        I(f's_add_u32 m0, s{sStage}, {t*1024}')
        I(f's_add_u32 s{sT1}, s{sSrc}, {t*2704}')
        I(f'buffer_load_dwordx4 v{vSO + (t & 3)}, {srd(S_CIN)}, s{sT1} offen lds')
        if t < 12: F.drain(e, gapU)
    I('s_barrier')
    ST(e, 'b0')
    F2.drain(e)
    I('s_waitcnt vmcnt(0)')
    ST(e, 'pre1')
    def frag_reads(u, nbuf=4):
        buf = UB + 8 * (u % nbuf)
        ids = []
        for R in range(2):
            pg = 2 * u + R
            for j in range(2):
                ids.append(I(f'ds_read_b64_tr_b16 {vr(buf+4*R+2*j,2)}, v{TAD+8*j+(pg&7)} offset:{(pg>>3)*256}'))
        return ids
    pend = {u: frag_reads(u) for u in range(3)}
    for u in range(8):
        if u == 4:
            I(f's_cmp_eq_u32 s{sK}, 3'); I('s_cbranch_scc1 L_u2done')
        if u == 6:
            I(f's_cmp_eq_u32 s{sK}, 2'); I('s_cbranch_scc1 L_u2done')
        if u + 3 < 8:
            pend[u + 3] = frag_reads(u + 3)
        e.wait_ds(pend[u][-1])
        buf = UB + 8 * (u % 4)
        for R in range(2):
            acc = UACC + 8 * (u >> 2) + 4 * R
            I(f'v_mfma_f32_16x16x32_bf16 {vr(acc,4)}, {vr(SEL+4*(u&3),4)}, {vr(buf+4*R,4)}, {vr(acc,4)}')
    e.label('L_u2done')
    I(f'v_cmp_gt_u32 vcc, 10, v{vN}')
    I(f'v_lshlrev_b32 v{a}, 4, v{vL}')
    I(f'v_add_u32 v{a}, {HB}, v{a}')
    I(f's_mov_b32 s{sX0}, 0xffff')
    I(f's_mov_b32 s{sX0+1}, 0')
    I(f's_lshl_b32 s{sT0}, s{sK}, 4')
    for h in range(2):
        for r in range(4):
            acc = UACC + 8 * h + 4 + r
            I(f'v_cndmask_b32 v{acc}, v{FIX+4*h+r}, v{acc}, vcc')
    for R in range(2):
        for h in range(2):
            acc = UACC + 8 * h + 4 * R
            I(f'v_cvt_pk_bf16_f32 v{HF+4*R+2*h}, v{acc}, v{acc+1}')
            I(f'v_cvt_pk_bf16_f32 v{HF+4*R+2*h+1}, v{acc+2}, v{acc+3}')
    I(f's_lshl_b64 exec, {sp(sX0)}, s{sT0}')
    I(f'ds_write_b128 v{a}, {vr(HF,4)}')
    I(f'ds_write_b128 v{a}, {vr(HF+4,4)} offset:1024')
    I('s_mov_b64 exec, -1')
    for x in range(16):
        I(f'v_add_u32 v{TAD+x}, {WB1}, v{TAD+x}')
    I(f'v_cmp_gt_u32 {sp(sMN10)}, 10, v{vN}')
    F.drain(e)
    I('s_waitcnt lgkmcnt(0)')
    I('s_barrier')
    ST(e, 'b1')
    I(f'ds_read_b128 {vr(HF,4)}, v{a} offset:0')
    I(f'ds_read_b128 {vr(HF+4,4)}, v{a} offset:1024')
    pend = {u: frag_reads(u) for u in range(3)}
    prev = None
    for u in range(7):
        if u == 6:
            I(f's_cmp_ge_u32 s{sK}, 2'); I('s_cbranch_scc1 L_tlast')
        if u + 3 < 7:
            pend[u + 3] = frag_reads(u + 3)
        e.wait_ds(pend[u][-1])
        g = UB + 8 * (u % 4)
        for dw in range(4):
            I(f'v_cndmask_b32 v{g+4+dw}, 0, v{g+4+dw}, {sp(sMN10)}')
        unit(e, g, g + 4, HF, HF + 4, DD[u & 1], None if prev is None else (DD[prev & 1], prev, FR_Q))
        prev = u
    unit_store(e, DD[6 & 1], 6, FR_Q)
    I('s_branch L_tend')
    e.label('L_tlast')
    unit_store(e, DD[5 & 1], 5, FR_Q)
    e.label('L_tend')
    ST(e, 'units')
    I('s_waitcnt lgkmcnt(0)')
    e.ds_q = []
    acc_init_cin(e)
    I('s_waitcnt lgkmcnt(0)')
    ST(e, 'fold')
    I('s_barrier')
    ST(e, 'b2')
    e.ds_q = []
    if debug == 'fold':
        I('s_branch L_dbg')
    else:
        main_cin(e, debug, opts)

    e.last = {}; e.ds_q = []
    e.label('L_Lpath')
    I(f's_lshl_b32 s{sT0}, s2, 4')
    I(f's_lshl_b32 s{sT1}, s{sK}, 2')
    I(f's_add_u32 s{sT0}, s{sT0}, s{sT1}')
    I(f's_mul_i32 s{sT0}, s{sT0}, 104')
    I(f'v_lshrrev_b32 v{d}, 1, v{vL}')
    I(f'v_lshlrev_b32 v{d}, 2, v{d}')
    I(f'v_add_u32 v{d}, s{sT0}, v{d}')
    for tm in range(4):
        I(f'v_xor_b32 v{a}, {2*tm}, v{vPB}')
        I(f'v_and_b32 v{b}, 1, v{a}')
        I(f'v_lshl_add_u32 v{vSO+tm}, v{b}, 5, v{vHS}')
        I(f'v_lshrrev_b32 v{b}, 1, v{a}')
        I(f'v_mad_u32_u24 v{vSO+tm}, v{b}, 52, v{vSO+tm}')
    I(f'v_lshlrev_b32 v{b}, 4, v{vG}')
    I(f'v_mad_u32_u24 v{vFO}, v{vN}, 52, v{b}')
    I(f'v_add_u32 v{vFO+1}, 832, v{vFO}')
    I(f'v_cmp_gt_u32 vcc, 10, v{vN}')
    I(f'v_mov_b32 v{c}, 0x7ff00000')
    I(f'v_cndmask_b32 v{vFO+1}, v{c}, v{vFO+1}, vcc')
    I(f'v_lshlrev_b32 v{c}, 4, v{vL}')
    I(f's_mul_i32 s{sStage}, s{sK}, {STG}')
    I(f's_add_u32 s{sStage}, s{sStage}, {WB1}')
    I(f's_mul_i32 s{sSrc}, s{sI0}, 52')
    I(f's_add_u32 s{sSrc}, s{sSrc}, {CIN_L}')
    I('s_waitcnt lgkmcnt(0)')
    mk_srd(e, S_IDX, 4, 4096 * 104)
    for bb in range(4):
        I(f'buffer_load_dword v{vIDX+bb}, v{d}, {srd(S_IDX)}, 0 offen offset:{bb*104}')
    I(f's_load_dword s{sBO}, s[18:19], 0')
    mk_srd(e, S_A0, 10, 52)
    mk_srd(e, S_B1, 14, 832)
    mk_srd(e, S_W2, 16, 832)
    I(f's_cmp_eq_u32 s{sK}, 0'); I('s_cbranch_scc0 L_sm1')
    I('s_mov_b32 exec_lo, 15'); I('s_mov_b32 exec_hi, 0')
    I(f's_mov_b32 m0, {SM_A0}'); I('s_nop 0')
    I(f'buffer_load_dwordx4 v{c}, {srd(S_A0)}, 0 offen lds')
    I('s_branch L_smdone')
    e.label('L_sm1')
    I(f's_mov_b64 exec, {sp(sE52)}')
    I(f's_cmp_eq_u32 s{sK}, 1'); I('s_cbranch_scc0 L_sm2')
    I(f's_mov_b32 m0, {SM_B1}'); I('s_nop 0')
    I(f'buffer_load_dwordx4 v{c}, {srd(S_B1)}, 0 offen lds')
    I('s_branch L_smdone')
    e.label('L_sm2')
    I(f's_cmp_eq_u32 s{sK}, 2'); I('s_cbranch_scc0 L_smdone')
    I(f's_mov_b32 m0, {SM_W2}'); I('s_nop 0')
    I(f'buffer_load_dwordx4 v{c}, {srd(S_W2)}, 0 offen lds')
    e.label('L_smdone')
    I('s_mov_b64 exec, -1')
    mk_srd(e, S_CIN, 8, 3 * CIN_L)
    mk_srd(e, S_TAB, 6, 3200000)
    mk_srd(e, S_W1, 12, 346112)
    F = FQ()
    F.add(f'v_lshrrev_b32 v{fa}, 4, v{vL}', f'v_mul_u32_u24 v{fa}, {XS}, v{fa}', f'v_lshl_add_u32 v{fa}, v{vN}, 2, v{fa}',
          f's_mul_i32 s{sF0}, s{sK}, {4*XS}', f's_add_u32 s{sF0}, s{sF0}, {XB + 832}', f'v_add_u32 v{fa}, s{sF0}, v{fa}',
          f'v_cmp_gt_u32 vcc, 8, v{vN}', f'v_mov_b32 v{fb}, 0x3f803f80', f'v_and_b32 v{fc}, 1, v{vL}',
          f'v_cndmask_b32 v{fb}, 0, v{fb}, vcc', f'ds_write_b32 v{fa}, v{fb}')
    for R in range(2):
        F.add(f'v_add_u32 v{fa}, {16*R}, v{vN}', f'v_and_b32 v{fb}, 1, v{fa}', f'v_lshlrev_b32 v{fb}, 4, v{fb}',
              f'v_mov_b32 v{fc}, 0x3f80', f'v_cmp_gt_u32 vcc, 26, v{fa}', f'v_lshlrev_b32 v{fb}, v{fb}, v{fc}',
              f'v_lshrrev_b32 v{fa}, 1, v{fa}', f'v_lshlrev_b32 v{fc}, 2, v{vG}', f'v_cndmask_b32 v{fb}, 0, v{fb}, vcc',
              f'v_sub_u32 v{fa}, v{fa}, v{fc}')
        F.add(*[f'v_cmp_eq_u32 {ms[dw]}, {dw}, v{fa}' for dw in range(4)])
        F.add(*[f'v_cndmask_b32 v{EF+4*R+dw}, 0, v{fb}, {ms[dw]}' for dw in range(4)])
    F.add(*f_common_a())
    F.add(*f_setup_dnn())
    F.drain(e, opts.get('preb0L', 60))
    I('s_waitcnt lgkmcnt(0)')
    I('s_barrier')
    ST(e, 'b0')
    for t in range(13):
        I(f's_add_u32 m0, s{sStage}, {t*1024}')
        I(f's_add_u32 s{sT1}, s{sSrc}, {t*2704}')
        I(f'buffer_load_dwordx4 v{vSO + (t & 3)}, {srd(S_CIN)}, s{sT1} offen lds')
        F.drain(e, gapL)
    F.drain(e)
    I(f's_mul_i32 s{sT0}, s{sI0}, 1352')
    for u in range(7):
        if u == 6:
            I(f's_cmp_ge_u32 s{sK}, 2'); I('s_cbranch_scc1 L_w0done')
        if u == opts.get('b1_at', 2):
            I(f's_waitcnt vmcnt({2*u}) lgkmcnt(0)')
            I('s_barrier')
            ST(e, 'b1')
            e.ds_q = []
        I(f's_add_u32 s{sT1}, s{sT0}, {u*1352}')
        for R in range(2):
            I(f'buffer_load_dwordx4 {vr(FF+8*u+4*R,4)}, v{vFO+R}, {srd(S_CIN)}, s{sT1} offen')
    e.label('L_w0done')
    I(f'v_and_b32 v{a}, 1, v{vL}')
    I(f'v_lshlrev_b32 v{a}, 4, v{a}')
    for bb in range(4):
        I(f'v_lshl_add_u32 v{vIDX+bb}, v{vIDX+bb}, 5, v{a}')
    I(f's_mul_i32 s{sT0}, s{sK}, {4*XS}')
    I(f's_mov_b64 exec, {sp(sE52)}')
    for bb in range(4):
        I(f's_add_u32 m0, s{sT0}, {XB + bb*XS}')
        I('s_nop 0')
        I(f'buffer_load_dwordx4 v{vIDX+bb}, {srd(S_TAB)}, 0 offen lds')
    I('s_mov_b64 exec, -1')
    ST(e, 'pre1')
    acc_init_dnn(e)
    prev = None
    for u in range(7):
        if u == 6:
            I(f's_cmp_ge_u32 s{sK}, 2'); I('s_cbranch_scc1 L_plast')
        n = 2 * (5 - u) + 4 if u <= 5 else 4
        I(f's_waitcnt vmcnt({n})')
        f = FF + 8 * u
        unit(e, f, f + 4, EF, EF + 4, DD[u & 1], None if prev is None else (DD[prev & 1], prev, FR_P))
        prev = u
    unit_store(e, DD[6 & 1], 6, FR_P)
    I('s_branch L_pend')
    e.label('L_plast')
    unit_store(e, DD[5 & 1], 5, FR_P)
    e.label('L_pend')
    ST(e, 'units')
    dma_step(e, 0, 'L0')
    I('s_waitcnt lgkmcnt(0)')
    ST(e, 'fold')
    I('s_barrier')
    ST(e, 'b2')
    e.ds_q = []
    if debug == 'fold':
        e.label('L_dbg')
        I('s_waitcnt vmcnt(0)'); I('s_barrier')
        dump_lds(e)
        return finish(e, opts)
    main_dnn(e, debug, opts)
    final(e, debug, opts)
    return finish(e, opts)

def dma_step(e, step, tag):
    I = e.I
    slot = step % 3
    I(f's_mov_b32 s{sT3}, {step*26624}')
    for u in range(7):
        if u == 6:
            I(f's_cmp_ge_u32 s{sK}, 2'); I(f's_cbranch_scc1 L_dma_{tag}')
        I(f's_add_u32 m0, s{sDma}, {slot*SLOT + u*4096}')
        I('s_nop 0')
        I(f'buffer_load_dwordx4 v{vDMA+u}, {srd(S_W1)}, s{sT3} offen lds')
    e.label(f'L_dma_{tag}')

def unit(e, X0, X1, Y0, Y1, D, prev):
    I = e.I
    mf = []
    def m(dd, A, B, first):
        mf.append(f'v_mfma_f32_16x16x32_bf16 {vr(dd,4)}, {vr(A,4)}, {vr(B,4)}, ' + ('0' if first else vr(dd, 4)))
    m(D, X0, Y0, True); m(D + 4, X1, Y0, True); m(D + 8, X1, Y1, True)
    m(D, Y0, X0, False); m(D + 4, Y1, X0, False); m(D + 8, Y1, X1, False)
    fill = []
    if prev is not None:
        PD, pu, setbase = prev
        for ti in range(3):
            fill.append(f'v_cvt_pk_bf16_f32 v{DC+2*ti}, v{PD+4*ti}, v{PD+4*ti+1}')
            fill.append(f'v_cvt_pk_bf16_f32 v{DC+2*ti+1}, v{PD+4*ti+2}, v{PD+4*ti+3}')
        for ti in range(3):
            fill.append(f'ds_write_b32 v{vWA+ti}, v{DC+2*ti} offset:{setbase + pu*16}')
            fill.append(f'ds_write_b32 v{vWB+ti}, v{DC+2*ti+1} offset:{setbase + pu*16}')
    for i in range(6):
        I(mf[i])
        for f in fill[2*i:2*i+2]:
            I(f)

def unit_store(e, D, u, setbase):
    I = e.I
    for ti in range(3):
        I(f'v_cvt_pk_bf16_f32 v{DC+2*ti}, v{D+4*ti}, v{D+4*ti+1}')
        I(f'v_cvt_pk_bf16_f32 v{DC+2*ti+1}, v{D+4*ti+2}, v{D+4*ti+3}')
    for ti in range(3):
        I(f'ds_write_b32 v{vWA+ti}, v{DC+2*ti} offset:{setbase + u*16}')
        I(f'ds_write_b32 v{vWB+ti}, v{DC+2*ti+1} offset:{setbase + u*16}')

def dump_lds(e):
    I = e.I
    I('v_mbcnt_lo_u32_b32 v1, -1, 0'); I('v_mbcnt_hi_u32_b32 v1, -1, v1')
    I(f's_lshl_b32 s{sT0}, s{sW}, 10')
    I('v_lshlrev_b32 v1, 4, v1')
    I(f'v_add_u32 v1, s{sT0}, v1')
    I(f's_mul_i32 s{sT1}, s2, {LDS_TOTAL}')
    I(f'v_add_u32 v2, s{sT1}, v1')
    I(f's_mov_b32 s{sT2}, 0')
    e.label('L_dump')
    I('ds_read_b128 v[4:7], v1')
    I('s_waitcnt lgkmcnt(0)')
    I('global_store_dwordx4 v2, v[4:7], s[22:23]')
    I('s_waitcnt vmcnt(0)')
    I('v_add_u32 v1, 8192, v1'); I('v_add_u32 v2, 8192, v2')
    I(f's_add_u32 s{sT2}, s{sT2}, 1')
    I(f's_cmp_lt_u32 s{sT2}, 20')
    e.raw('    s_cbranch_scc1 L_dump')

def main_cin(e, debug, opts):
    I = e.I
    steps = step_list()
    sched = opts.get('sched', [1, 2, 3, 2, 3, 2, 3, 2, 2, 3, 2, 3, 0])
    assert sum(sched) == 28 and len(sched) == 13
    sc = []; si = 0
    for n in sched:
        sc.append(list(range(si, si + n))); si += n
    XR = [XA, XBB]; ZZ = [ZA, ZBB]
    af_ids = {}
    def af_read(s):
        buf = AF[s & 1]
        I(f'ds_read_b128 {vr(buf,4)}, v{vAF} offset:{FR_P + s*FST}')
        af_ids[s] = I(f'ds_read_b128 {vr(buf+4,4)}, v{vAF} offset:{FR_Q + s*FST}')
    def z_half(X, s, pi):
        aa, bb = steps[s]
        mod = ' div:2' if aa == bb else ''
        t = ZT + 4 * pi
        x = XR[X]
        for qi in range(4):
            if mod: I(f'v_mul_f32_e64 v{t+qi}, v{x+4*aa+pi}, v{x+4*bb+qi}{mod}')
            else: I(f'v_mul_f32 v{t+qi}, v{x+4*aa+pi}, v{x+4*bb+qi}')
        z = ZZ[X][s & 1]
        I(f'v_cvt_pk_bf16_f32 v{z+2*pi}, v{t}, v{t+1}')
        I(f'v_cvt_pk_bf16_f32 v{z+2*pi+1}, v{t+2}, v{t+3}')
    def epilogue():
        t = TMP
        for X in range(2):
            P, Q = ACC[('P', X)], ACC[('Q', X)]
            t = TMP + 4 * X
            I(f'v_mul_f32 v{t}, v{P}, v{Q}')
            I(f'v_mul_f32 v{t+1}, v{P+12}, v{Q+12}')
            I(f'v_mul_f32 v{t+2}, v{P+1}, v{Q+1}')
            I(f'v_fmac_f32 v{t+1}, v{P+13}, v{Q+13}')
            for r in range(2, 12):
                I(f'v_fmac_f32 v{t + 2*(r&1)}, v{P+r}, v{Q+r}')
        I(f'v_cmp_gt_u32 vcc, 32, v{vL}')
        for X in range(2):
            t = TMP + 4 * X
            I(f'v_add_f32 v{t}, v{t}, v{t+2}')
        for X in range(2):
            t = TMP + 4 * X
            I(f'v_cndmask_b32 v{t+1}, 0, v{t+1}, vcc')
        for X in range(2):
            t = TMP + 4 * X
            I(f'v_add_f32 v{t}, v{t}, v{t+1}')
        t = TMP
        I(f'v_and_b32 v{t+2}, 1, v{vG}')
        I(f'v_lshlrev_b32 v{t+2}, 6, v{t+2}')
        I(f'v_lshrrev_b32 v{t+3}, 1, v{vG}')
        I(f'v_lshl_add_u32 v{t+2}, v{t+3}, 2, v{t+2}')
        I(f's_lshl_b32 s{sT0}, s{sK}, 8')
        I(f's_add_u32 s{sT0}, s{sT0}, {RED + 16}')
        I(f'v_add_u32 v{t+2}, s{sT0}, v{t+2}')
        for sh in (8, 4, 2, 1):
            for X in range(2):
                tt = TMP + 4 * X
                I(f'v_add_f32_dpp v{tt}, v{tt}, v{tt} row_ror:{sh} row_mask:0xf bank_mask:0xf')
        I(f's_mov_b32 exec_lo, 0x00010001'); I(f's_mov_b32 exec_hi, 0x00010001')
        I(f'ds_write_b32 v{t+2}, v{TMP}')
        I(f'ds_write_b32 v{t+2}, v{TMP+4} offset:128')
        I('s_mov_b64 exec, -1')
    for j in range(13):
        e.comment(f'---- CIN interval {j}')
        I('s_barrier')
        ST(e, f'it{j}')
        if j == 0:
            xa = [I(f'ds_read_b64_tr_b16 {vr(XPA+2*q,2)}, v{vTRX} offset:{128*q}') for q in range(7)]
            xb = [I(f'ds_read_b64_tr_b16 {vr(XPB+2*q,2)}, v{vTRX} offset:{2*XS + 128*q}') for q in range(7)]
            e.wait_ds(xa[-1])
            af_read(0); af_read(1)
            for q in range(7):
                for h in range(2):
                    I(f'v_lshlrev_b32 v{XA+4*q+2*h}, 16, v{XPA+2*q+h}')
                    I(f'v_and_b32 v{XA+4*q+2*h+1}, 0xffff0000, v{XPA+2*q+h}')
            z_half(0, 0, 0); z_half(0, 0, 1)
            e.wait_ds(xb[-1])
            for q in range(7):
                for h in range(2):
                    I(f'v_lshlrev_b32 v{XBB+4*q+2*h}, 16, v{XPB+2*q+h}')
                    I(f'v_and_b32 v{XBB+4*q+2*h+1}, 0xffff0000, v{XPB+2*q+h}')
            z_half(1, 0, 0); z_half(1, 0, 1)
        for s in ([] if opts.get('no_cin') else sc[j]):
            e.wait_ds(af_ids[s])
            buf = AF[s & 1]
            for X in range(2):
                z = ZZ[X][s & 1]
                P, Q = ACC[('P', X)], ACC[('Q', X)]
                I(f'v_mfma_f32_32x32x16_bf16 {vr(P,16)}, {vr(buf,4)}, {vr(z,4)}, {vr(P,16)}')
                if s + 1 < 28: z_half(X, s + 1, 0)
                I(f'v_mfma_f32_32x32x16_bf16 {vr(Q,16)}, {vr(buf+4,4)}, {vr(z,4)}, {vr(Q,16)}')
                if X == 1 and s + 2 < 28: af_read(s + 2)
                if s + 1 < 28: z_half(X, s + 1, 1)
        if j == 12 or (sc[j] and sc[j][-1] == 27 and j < 12 and False):
            pass
        if (not sc[j]) and j > 0 and sc[j-1] and sc[j-1][-1] == 27:
            epilogue()
    if sc[12]:
        epilogue()
    I('s_waitcnt lgkmcnt(0)')
    ST(e, 'gelu')
    I('s_branch L_join')

def main_dnn(e, debug, opts):
    I = e.I
    e.last = {}
    if opts.get('prio', 0):
        I('s_setprio 1')
    dma_step(e, 1, 'C1')
    def mfmas(j):
        if opts.get('no_dmfma'): return
        for u in range(7):
            if u == 6:
                I(f's_cmp_ge_u32 s{sK}, 2'); I(f's_cbranch_scc1 L_m6_{j}')
            I(f'v_mfma_f32_16x16x32_bf16 {vr(DACC+4*u,4)}, {vr(XF[j&1],4)}, {vr(WF[j&1]+4*u,4)}, {vr(DACC+4*u,4)}')
        e.label(f'L_m6_{j}')
    for j in range(13):
        e.comment(f'---- DNN interval {j}')
        if j < 12 and opts.get('exactvm', 1):
            I(f's_cmp_ge_u32 s{sK}, 2'); I(f's_cbranch_scc1 L_vw6_{j}')
            I('s_waitcnt vmcnt(7) lgkmcnt(0)')
            I(f's_branch L_vwd_{j}')
            e.label(f'L_vw6_{j}')
            I('s_waitcnt vmcnt(6) lgkmcnt(0)')
            e.label(f'L_vwd_{j}')
        else:
            I(f's_waitcnt vmcnt({6 if j < 12 else 0}) lgkmcnt(0)')
        I('s_barrier')
        ST(e, f'it{j}')
        order = opts.get('dorder', 'drm')
        pm = opts.get('pmode', 0)
        if pm: I('s_setprio 3')
        if order[0] == 'd' and j <= 10 and not opts.get('no_dma'):
            dma_step(e, j + 2, f'M{j}')
        if pm == 1: I('s_setprio 0')
        if order == 'mrd' or order == 'mdr':
            if j >= 1: mfmas(j - 1)
            if order == 'mdr' and j <= 10: dma_step(e, j + 2, f'M{j}')
        slot = j % 3
        I(f'ds_read_b128 {vr(XF[j&1],4)}, v{vXF} offset:{64*j}')
        for u in range(0 if opts.get('no_dread') else 7):
            if u == 6:
                I(f's_cmp_ge_u32 s{sK}, 2'); I(f's_cbranch_scc1 L_r6_{j}')
            for jj in range(2):
                I(f'ds_read_b64_tr_b16 {vr(WF[j&1]+4*u+2*jj,2)}, v{vTRW} offset:{slot*SLOT + jj*4*WROW + u*128}')
        if not opts.get('no_dread'): e.label(f'L_r6_{j}')
        if pm == 2: I('s_setprio 0')
        if order in ('rdm', 'mrd') and j <= 10:
            dma_step(e, j + 2, f'M{j}')
        if j >= 1 and order in ('drm', 'rdm'):
            mfmas(j - 1)
    I('s_waitcnt lgkmcnt(0)')
    mfmas(12)
    ST(e, 'gelu')
    G = TMP
    T = TMP + 4
    C1, C0, ONE = CST, CST + 2, CST + 4
    def gelu(pairs, first):
        def each(fn):
            for k_, (x, u, h) in enumerate(pairs):
                fn(x, T + 2 * k_, u, h, k_)
        each(lambda x, t, u, h, k_: I(f'v_pk_mul_f32 {vr(t,2)}, {vr(x,2)}, {vr(x,2)}'))
        each(lambda x, t, u, h, k_: I(f'v_pk_fma_f32 {vr(t,2)}, {vr(t,2)}, {vr(C1,2)}, {vr(C0,2)}'))
        each(lambda x, t, u, h, k_: I(f'v_pk_mul_f32 {vr(t,2)}, {vr(t,2)}, {vr(x,2)}'))
        each(lambda x, t, u, h, k_: (I(f'v_exp_f32 v{t}, v{t}'), I(f'v_exp_f32 v{t+1}, v{t+1}')))
        each(lambda x, t, u, h, k_: I(f'v_pk_mul_f32 {vr(x,2)}, {vr(x,2)}, {vr(W2V + (u & ~1), 2)} op_sel:[0,{u&1}] op_sel_hi:[1,{u&1}]'))
        each(lambda x, t, u, h, k_: I(f'v_pk_add_f32 {vr(t,2)}, {vr(t,2)}, {vr(ONE,2)}'))
        each(lambda x, t, u, h, k_: (I(f'v_rcp_f32 v{t}, v{t}'), I(f'v_rcp_f32 v{t+1}, v{t+1}')))
        def last(x, t, u, h, k_):
            if first and k_ < 2: I(f'v_pk_mul_f32 {vr(G+2*h,2)}, {vr(t,2)}, {vr(x,2)}')
            else: I(f'v_pk_fma_f32 {vr(G+2*h,2)}, {vr(t,2)}, {vr(x,2)}, {vr(G+2*h,2)}')
        each(last)
    allp = [(DACC + 4*u + 2*h, u, h) for u in range(6) for h in range(2)]
    gelu(allp[0:4], True); gelu(allp[4:8], False); gelu(allp[8:12], False)
    I(f's_cmp_ge_u32 s{sK}, 2'); I(f's_cbranch_scc1 L_g6')
    gelu([(DACC + 24 + 2*h, 6, h) for h in range(2)], False)
    e.label('L_g6')
    I(f'v_lshlrev_b32 v{T}, 8, v{vG}')
    I(f's_lshl_b32 s{sT0}, s{sK}, 2')
    I(f's_add_u32 s{sT0}, s{sT0}, {RED}')
    I(f'v_add_u32 v{T}, s{sT0}, v{T}')
    for sh in (8, 4, 2, 1):
        for r in range(4):
            I(f'v_add_f32_dpp v{G+r}, v{G+r}, v{G+r} row_ror:{sh} row_mask:0xf bank_mask:0xf')
    I(f's_mov_b32 exec_lo, 0x00010001'); I(f's_mov_b32 exec_hi, 0x00010001')
    for r in range(4):
        I(f'ds_write_b32 v{T}, v{G+r} offset:{64*r}')
    I('s_mov_b64 exec, -1')
    I('s_waitcnt lgkmcnt(0)')

def final(e, debug, opts):
    I = e.I
    T = TMP + 4
    e.last = {}
    e.label('L_join')
    I('s_barrier')
    if debug == 'red':
        dump_lds(e); return
    if debug == 'stamp':
        ST(e, 'fin')
        ST.flush(e)
        open('stamp_names.txt', 'w').write(' '.join(ST.names))
        return
    if debug == 'hstamp':
        ST(e, 'fin')
        sel = opts.get('hsel', ['b0', 'pre1', 'b1', 'units', 'b2', 'it0', 'it12', 'fin'])
        I(f's_cmp_eq_u32 s2, {opts.get("hwg", 128)}'); I('s_cbranch_scc0 L_nohs')
        I(f's_and_b32 s{sT0}, s{sW}, 3'); I(f's_cmp_eq_u32 s{sT0}, 0'); I('s_cbranch_scc0 L_nohs')
        I('s_waitcnt lgkmcnt(0)')
        r0 = STAMP_SLOTS[0]
        for i, nm in enumerate(sel):
            r = STAMP_SLOTS[ST.names.index(nm)]
            I(f's_sub_u32 s{sT1}, s{r}, s{r0}')
            I(f'v_writelane_b32 v200, s{sT1}, {i}')
        I(f's_lshl_b32 s{sT0}, s{sW}, 3')
        I(f'v_lshlrev_b32 v201, 2, v{vL}')
        I(f'v_add_u32 v201, s{sT0}, v201')
        I('s_mov_b32 exec_lo, 0xff'); I('s_mov_b32 exec_hi, 0')
        I('global_store_dword v201, v200, s[22:23]')
        I('s_mov_b64 exec, -1')
        I('s_waitcnt vmcnt(0)')
        e.label('L_nohs')
    I(f's_cmp_lg_u32 s{sW}, 0'); I('s_cbranch_scc1 L_end')
    I('s_mov_b32 exec_lo, 0xffff'); I('s_mov_b32 exec_hi, 0')
    I(f'v_lshlrev_b32 v{T}, 6, v{vL}')
    I(f'v_add_u32 v{T}, {RED}, v{T}')
    I(f'ds_read_b128 {vr(8,4)}, v{T}')
    I(f'ds_read_b64 {vr(12,2)}, v{T} offset:16')
    I(f's_mov_b32 s{S_OUT}, s20'); I(f's_mov_b32 s{S_OUT+1}, s21')
    I(f's_mov_b32 s{S_OUT+2}, 8192'); I(f's_mov_b32 s{S_OUT+3}, 0x20000')
    I(f's_lshl_b32 s{sBO}, s{sBO}, 16')
    I(f's_lshl_b32 s{sT0}, s2, 5')
    I(f'v_lshlrev_b32 v{T+1}, 1, v{vL}')
    I(f'v_add_u32 v{T+1}, s{sT0}, v{T+1}')
    I('s_waitcnt lgkmcnt(0)')
    I('v_add_f32 v8, v8, v9'); I('v_add_f32 v10, v10, v11'); I('v_add_f32 v12, v12, v13')
    I('v_add_f32 v8, v8, v10')
    I(f'v_add_f32 v12, s{sBO}, v12')
    I('v_add_f32 v8, v8, v12')
    I('v_cvt_pk_bf16_f32 v8, v8, v8')
    I(f'buffer_store_short v8, v{T+1}, {srd(S_OUT)}, 0 offen')
    I('s_waitcnt vmcnt(0)')

def finish(e, opts):
    e.label('L_end')
    body = e.text()
    hdr = f"""; xDeepFM (CIN + DNN) fused kernel, generated by my own generator script.
; One workgroup = 16 batch rows, 8 waves.  CIN layers are folded at run time into two quadratic forms.
; @launch grid=(256,1,1) block=(512,1,1) lds={LDS_TOTAL}
.amdgcn_target "amdgcn-amd-amdhsa--gfx950"
.text
.globl {KN}
.p2align 8
.type {KN},@function
{KN}:
"""
    ftr = f"""    s_endpgm
.section .rodata,"a"
.p2align 6
.amdhsa_kernel {KN}
  .amdhsa_next_free_vgpr 256
  .amdhsa_next_free_sgpr 102
  .amdhsa_accum_offset 256
  .amdhsa_group_segment_fixed_size 0
  .amdhsa_kernarg_size 88
  .amdhsa_user_sgpr_count 2
  .amdhsa_user_sgpr_kernarg_segment_ptr 1
  .amdhsa_system_sgpr_workgroup_id_x 1
  .amdhsa_ieee_mode 0
.end_amdhsa_kernel
"""
    return hdr + body + ftr

if __name__ == '__main__':
    dbg = sys.argv[2] if len(sys.argv) > 2 and sys.argv[2] != 'none' else None
    opts = eval(sys.argv[3]) if len(sys.argv) > 3 else {}
    out = build(dbg, opts)
    open(sys.argv[1], 'w').write(out)
    print('wrote', sys.argv[1], len(out), 'bytes')
```

```python
import sys, os
from emit import Emit

KN = "standalone__deep_cross_xdeepfm__recsys_kernel"

FST = 848; FR_P = 0; FR_Q = 28 * FST
RB = 47616; SLOT = 26624; WROW = 832
WS2 = RB + SLOT - 4 * 13312
WS1 = RB + SLOT
STG = 13312
XB = RB + 3 * SLOT; XS = 912
HB = RB + 4 * SLOT
SM = HB + 2048; SM_A0 = SM; SM_B1 = SM + 64; SM_W2 = SM + 896
RED = SM + 1728
XCNT = RED + 1024
LDS_TOTAL = 163840
OOB_LDS = 0x40000
CIN_L = 35152
assert WS1 % 512 == 0 and 28 * FST * 2 <= RB and RED + 1024 <= LDS_TOTAL and WS2 % 512 == 0 and WS2 >= 0

S_IDX, S_TAB, S_CIN, S_W1 = 24, 28, 32, 36
S_A0, S_B1, S_W2, S_OUT = 40, 52, 56, 60
sA2 = 96
sW, sK = 64, 65
sBO = 66
sI0 = 67
sT0, sT1, sT2, sT3 = 68, 69, 70, 71
sMN10 = 78
sE52 = 80
sStage, sSrc = 82, 83
sC0, sC1, sC2 = 84, 85, 86
sX0 = 88
sF0, sF1, sF2 = 84, 85, 86
sDma = 92
sSL = 93
SA = 44
def srd(n): return f"s[{n}:{n+3}]"
def sp(n): return f"s[{n}:{n+1}]"
def vr(a, n=1): return f"v{a}" if n == 1 else f"v[{a}:{a+n-1}]"

vL = 0
TMP = 122
fa, fb, fc, fd, fe = 132, 133, 134, 135, 136
vN, vG, vR4, vC4 = 142, 143, 144, 145
vWA = 146
vWB = 149
DD = [152, 164]
DC = 176
vSO = 182
vDUM = 186
UD = 2; SELA = 66; HF = 102
TAD = 188
UB = 70
FF = 2; EF = 60; vIDX = 68; vFO = 72
XA = 2; XBB = 30
ZA = [58, 62]; ZBB = [66, 70]
ZT = 74
AF = [82, 90]
vAF = 100; vTRX = 101
XPA = 104; XPB = 152
QI = 166
ACC = {('P', 0): 192, ('Q', 0): 208, ('P', 1): 224, ('Q', 1): 240}
vDMA = 100
vT = 108
vXF = 116
WF = [2, 30]
XF = 152
DACC = 208
W2V = 236
CST = 244
vXCA = 118; vONE = 119; vXCT = 120

STAMP_SLOTS = [94, 96, 98, 100, 90, 40, 42] + list(range(44, 60, 2)) + [24, 26, 28, 30, 4, 6, 8, 10, 14, 16]
class Stamps:
    def __init__(self, on): self.on = on; self.names = []
    def __call__(self, e, name):
        if not self.on: return
        if name in self.names: i = self.names.index(name)
        else:
            i = len(self.names); self.names.append(name)
        r = STAMP_SLOTS[i]
        e.I(f's_memtime s[{r}:{r+1}]')
    def flush(self, e):
        if not self.on: return
        I = e.I
        I('s_mov_b64 exec, -1')
        I('s_waitcnt vmcnt(0) lgkmcnt(0)')
        for i in range(len(self.names)):
            I(f'v_writelane_b32 v200, s{STAMP_SLOTS[i]}, {i}')
        I('s_memrealtime s[68:69]')
        I('s_waitcnt lgkmcnt(0)')
        I('v_writelane_b32 v200, s68, 31')
        I('v_mbcnt_lo_u32_b32 v201, -1, 0'); I('v_mbcnt_hi_u32_b32 v201, -1, v201')
        I('v_lshlrev_b32 v201, 2, v201')
        I(f's_lshl_b32 s70, s2, 3'); I(f's_add_u32 s70, s70, s{sW}'); I('s_lshl_b32 s70, s70, 8')
        I('v_add_u32 v201, s70, v201')
        I('global_store_dword v201, v200, s[22:23]')
        I('s_waitcnt vmcnt(0)')
ST = Stamps(False)

def step_list():
    return [(a, b) for b in range(7) for a in range(b + 1)]

def mk_srd(e, n, lo, size, add=0):
    I = e.I
    if add:
        I(f's_add_u32 s{n}, s{lo}, {add}')
        I(f's_addc_u32 s{n+1}, s{lo+1}, 0')
    else:
        I(f's_mov_b32 s{n}, s{lo}')
        I(f's_mov_b32 s{n+1}, s{lo+1}')
    I(f's_mov_b32 s{n+2}, {size}')
    I(f's_mov_b32 s{n+3}, 0x20000')


class FQ:
    def __init__(self): self.q = []
    def add(self, *items): self.q.extend(items)
    def drain(self, e, n=10**9):
        k = 0
        while self.q and k < n:
            it = self.q.pop(0)
            if isinstance(it, list):
                for x in it: e.I(x)
                k += len(it)
            else:
                e.I(it); k += 1

def f_srd(n, lo, size):
    return [f's_mov_b32 s{n}, s{lo}', f's_mov_b32 s{n+1}, s{lo+1}', f's_mov_b32 s{n+2}, {size}', f's_mov_b32 s{n+3}, 0x20000']

def f_common_a():
    L = [f'v_bfe_u32 v{fa}, v{vN}, 1, 1', f'v_mul_u32_u24 v{fb}, 420, v{fa}', f'v_and_b32 v{fc}, 1, v{vN}',
         f'v_lshl_add_u32 v{fb}, v{fc}, 3, v{fb}', f's_lshl_b32 s{sF0}, s{sI0}, 4', f'v_lshrrev_b32 v{fc}, 2, v{vN}',
         f'v_add_u32 v{fa}, 1, v{vG}', f'v_mul_u32_u24 v{fa}, v{fa}, v{vG}', f'v_cmp_le_u32 s[72:73], v{fc}, v{vG}',
         f'v_lshrrev_b32 v{fa}, 1, v{fa}', f'v_cmp_ge_u32 s[74:75], 2, v{vG}', f'v_add_u32 v{fa}, v{fa}, v{fc}',
         f's_movk_i32 s{sF2}, {FST}', f'v_add_u32 v{fb}, s{sF0}, v{fb}', f'v_lshlrev_b32 v{fe}, 2, v{vL}',
         f'v_mad_u32_u24 v{fd}, v{fa}, s{sF2}, v{fb}', f's_and_b64 s[76:77], s[72:73], s[74:75]', f'v_add_u32 v{fe}, {OOB_LDS}, v{fe}',
         f's_movk_i32 s{sF1}, {4*FST}', f'v_cndmask_b32 v{vWA}, v{fe}, v{fd}, s[72:73]',
         f'v_mad_u32_u24 v{fd}, v{vG}, s{sF1}, v{fd}', f'v_xor_b32 v{vWB}, 4, v{vWA}', f'v_add_u32 v{fd}, {10*FST}, v{fd}',
         f'v_cndmask_b32 v{vWA+1}, v{fe}, v{fd}, s[74:75]', f'v_add_u32 v{fd}, {4*FST}, v{fd}', f'v_xor_b32 v{vWB+1}, 4, v{vWA+1}',
         f'v_cndmask_b32 v{vWA+2}, v{fe}, v{fd}, s[76:77]', f'v_xor_b32 v{vWB+2}, 4, v{vWA+2}']
    return L

def f_setup_cin():
    L = [f'v_and_b32 v{fa}, 31, v{vL}', f'v_lshlrev_b32 v{fa}, 4, v{fa}', f'v_lshrrev_b32 v{fb}, 5, v{vL}',
         f's_movk_i32 s{sF1}, 416', f'v_mad_u32_u24 v{vAF}, v{fb}, s{sF1}, v{fa}',
         f'v_lshrrev_b32 v{fb}, 1, v{vG}', f'v_and_b32 v{fc}, 1, v{vG}', f's_movk_i32 s{sF1}, {XS}',
         f'v_lshlrev_b32 v{fa}, 1, v{fb}', f'v_xor_b32 v{fa}, v{fa}, v{vR4}', f'v_lshlrev_b32 v{fa}, 5, v{fa}',
         f'v_lshl_add_u32 v{fa}, v{vC4}, 3, v{fa}', f'v_mad_u32_u24 v{fa}, v{fc}, s{sF1}, v{fa}',
         f's_mul_i32 s{sF0}, s{sK}, {4*XS}', f's_add_u32 s{sF0}, s{sF0}, {XB}', f'v_add_u32 v{vTRX}, s{sF0}, v{fa}']
    return L

def f_setup_dnn():
    sCPR, sMAG, sSWZ, sRS = 72, 73, 74, 75
    L = [f's_cmp_lt_u32 s{sK}, 2', f's_cselect_b32 s{sCPR}, 14, 12', f's_mov_b32 s{sF1}, 87382', f's_cselect_b32 s{sMAG}, 74899, s{sF1}',
         f's_cselect_b32 s{sSWZ}, 0, 2', f's_lshl_b32 s{sRS}, s{sCPR}, 4', f's_lshl_b32 s{sF0}, s{sI0}, 5', f's_movk_i32 s{sF2}, 832']
    L += [f's_sub_u32 s{sF2}, s{sF2}, s{sRS}']
    for u in range(7):
        L += [f'v_add_u32 v{fa}, {64*u}, v{vL}', f'v_mul_u32_u24 v{fc}, s{sMAG}, v{fa}', f'v_lshrrev_b32 v{fc}, 20, v{fc}',
              f'v_lshrrev_b32 v{fd}, 1, v{fc}', f'v_and_b32 v{fd}, s{sSWZ}, v{fd}', f'v_xor_b32 v{fa}, v{fa}, v{fd}',
              f'v_lshl_add_u32 v{fa}, v{fa}, 4, s{sF0}', f'v_mad_u32_u24 v{vDMA+u}, v{fc}, s{sF2}, v{fa}']
    L += [f's_lshl_b32 s{sDma}, s{sI0}, 10', f's_add_u32 s{sDma}, s{sDma}, {RB}']
    L += [f'v_lshrrev_b32 v{fb}, 1, v{vG}', f'v_and_b32 v{fc}, 1, v{vG}', f'v_lshlrev_b32 v{fa}, 4, v{fb}',
          f'v_lshl_add_u32 v{fa}, v{fc}, 2, v{fa}', f'v_add_u32 v{fa}, v{fa}, v{vR4}', f'v_mul_u32_u24 v{fa}, s{sRS}, v{fa}',
          f'v_lshl_add_u32 v{fa}, v{vC4}, 3, v{fa}', f'v_add_u32 v{fa}, s{sDma}, v{fa}',
          f's_lshl_b32 s{sF1}, s{sSWZ}, 4', f'v_lshlrev_b32 v{fd}, 5, v{fc}', f'v_and_b32 v{fd}, s{sF1}, v{fd}',
          f'v_add_u32 v{vT}, v{fa}, v{fd}', f'v_sub_u32 v{vT+1}, v{fa}, v{fd}', f'v_add_u32 v{vT+1}, 32, v{vT+1}',
          f's_lshl_b32 s{sF1}, s{sRS}, 3',
          f'v_add_u32 v{vT+2}, s{sF1}, v{vT}', f'v_add_u32 v{vT+3}, s{sF1}, v{vT+1}']
    L += [f'v_add_u32 v{vT+4+q}, {2*SLOT}, v{vT+q}' for q in range(4)]
    L += [f's_movk_i32 s{sF1}, {XS}', f'v_lshlrev_b32 v{fa}, 5, v{fb}', f'v_lshl_add_u32 v{fa}, v{fc}, 3, v{fa}',
          f'v_mad_u32_u24 v{fa}, v{vN}, s{sF1}, v{fa}', f'v_add_u32 v{vXF}, {XB}, v{fa}']
    return L

def acc_init_cin(e):
    I = e.I
    I(f'v_lshrrev_b32 v{fa}, 5, v{vL}')
    I(f'v_lshlrev_b32 v{fa}, 3, v{fa}')
    I(f'v_add_u32 v{fa}, {SM_A0}, v{fa}')
    ids = [I(f'ds_read_b64 {vr(XPA+2*g,2)}, v{fa} offset:{16*g}') for g in range(4)]
    e.wait_ds(ids[-1])
    for g in range(4):
        for q in range(2):
            I(f'v_lshlrev_b32 v{QI+4*g+2*q}, 16, v{XPA+2*g+q}')
            I(f'v_and_b32 v{QI+4*g+2*q+1}, 0xffff0000, v{XPA+2*g+q}')

def acc_init_dnn(e):
    I = e.I
    I(f's_lshl_b32 s{sF0}, s{sI0}, 5')
    I(f's_add_u32 s{sF0}, s{sF0}, {SM_B1}')
    I(f'v_lshlrev_b32 v{fb}, 1, v{vN}')
    I(f'v_add_u32 v{fb}, s{sF0}, v{fb}')
    B = 60
    for u in range(7):
        I(f'v_mov_b32 v{B+u}, 0')
        I(f'v_mov_b32 v{W2V+u}, 0')
    ids = []
    for u in range(7):
        ids.append(I(f'ds_read_u16_d16_hi v{B+u}, v{fb} offset:{32*u}'))
        ids.append(I(f'ds_read_u16_d16_hi v{W2V+u}, v{fb} offset:{832 + 32*u}'))
    for q, val in enumerate(('0xbdd2d3e8', '0xbdd2d3e8', '0xc0135761', '0xc0135761', '1.0', '1.0')):
        I(f'v_mov_b32 v{CST+q}, {val}')
    e.wait_ds(ids[-1])
    for u in range(7):
        for r in range(4):
            I(f'v_mov_b32 v{DACC+4*u+r}, v{B+u}')

def build(debug=None, opts=None):
    global ST
    opts = opts or {}
    e = Emit(); I = e.I
    a, b, c, d = TMP, TMP + 1, TMP + 2, TMP + 3
    touch = opts.get('touch', True)
    gapL = opts.get('gapL', 10)
    sRT = sC1
    I('s_cmp_ge_u32 s2, 256')
    I('s_cbranch_scc1 L_end')
    I('s_load_dwordx16 s[4:19], s[0:1], 0')
    I(f'v_lshrrev_b32 v1, 6, v0')
    I(f'v_and_b32 v{vL}, 63, v0')
    I(f'v_readfirstlane_b32 s{sW}, v1')
    I(f's_bfe_u32 s{sSL}, s2, 0x50003')
    ST = Stamps(debug in ('stamp', 'hstamp'))
    ST(e, 'start')
    if touch:
        I(f's_getpc_b64 {sp(sX0)}')
        I(f's_lshl_b32 s{sT0}, s{sSL}, 3')
        I(f's_add_u32 s{sT0}, s{sT0}, s{sW}')
        I(f's_lshl_b32 s{sT0}, s{sT0}, 7')
        I(f's_and_b32 s{sX0}, s{sX0}, 0xffffff00')
        I(f'v_mov_b32 v{a}, s{sT0}')
        I(f'global_load_dword v{vDUM}, v{a}, {sp(sX0)}')
    I(f's_and_b32 s{sK}, s{sW}, 3')
    I(f'v_lshrrev_b32 v{a}, 5, v{vL}')
    I(f'v_and_b32 v{b}, 1, v{vL}')
    I(f'v_lshlrev_b32 v{b}, 4, v{b}')
    I(f's_movk_i32 s{sC0}, 1352')
    I(f'v_bfe_u32 v{c}, v{vL}, 1, 4')
    I(f'v_mad_u32_u24 v{b}, v{a}, s{sC0}, v{b}')
    I(f'v_xor_b32 v{c}, v{c}, v{a}')
    I(f's_mul_i32 s{sI0}, s{sK}, 7')
    I(f's_cmp_eq_u32 s{sK}, 3')
    I(f's_cselect_b32 s{sT0}, 1, 0')
    I(f's_sub_u32 s{sI0}, s{sI0}, s{sT0}')
    I(f'v_and_b32 v{a}, 1, v{c}')
    I(f'v_lshl_add_u32 v{b}, v{a}, 5, v{b}')
    I(f's_mul_i32 s{sStage}, s{sK}, {STG}')
    I(f's_mul_i32 s{sT0}, s{sK}, 208')
    I(f's_add_u32 s{sT0}, s{sT0}, {2*CIN_L}')
    I(f's_mul_i32 s{sT1}, s{sI0}, 52')
    I(f's_add_u32 s{sT1}, s{sT1}, {CIN_L}')
    I(f's_movk_i32 s{sT2}, 832')
    I(f's_cmp_ge_u32 s{sW}, 4')
    I(f's_cselect_b32 s{sSrc}, s{sT1}, s{sT0}')
    I(f's_cselect_b32 s{sRT}, 208, s{sT2}')
    I(f's_movk_i32 s{sT2}, {WS2}')
    I(f's_cselect_b32 s{sT0}, {WS1}, s{sT2}')
    I(f's_add_u32 s{sStage}, s{sStage}, s{sT0}')
    I(f'v_lshrrev_b32 v{a}, 3, v{c}')
    I(f'v_mad_u32_u24 v{b}, v{a}, s{sRT}, v{b}')
    I(f'v_bfe_u32 v{c}, v{c}, 1, 2')
    I(f'v_mad_u32_u24 v{vSO}, v{c}, 52, v{b}')
    for tm in range(1, 4):
        I(f'v_xor_b32 v{a}, {tm}, v{c}')
        I(f'v_mad_u32_u24 v{vSO+tm}, v{a}, 52, v{b}')
    I(f's_lshl_b32 s{sT0}, s2, 4')
    I(f's_lshl_b32 s{sT1}, s{sK}, 2')
    I(f's_add_u32 s{sT0}, s{sT0}, s{sT1}')
    I(f's_mul_i32 s{sT0}, s{sT0}, 104')
    I(f'v_lshrrev_b32 v{d}, 1, v{vL}')
    I(f'v_lshlrev_b32 v{d}, 2, v{d}')
    I(f'v_add_u32 v{d}, s{sT0}, v{d}')
    I(f's_movk_i32 s{sT3}, 2704')
    I(f's_mov_b32 m0, s{sStage}')
    I(f's_movk_i32 s{sT2}, 1024')
    I(f's_cmp_ge_u32 s{sW}, 4')
    I('s_waitcnt lgkmcnt(0)')
    I(f's_mov_b32 s{S_CIN}, s8'); I(f's_mov_b32 s{S_CIN+1}, s9')
    I(f's_mov_b32 s{S_CIN+2}, {3*CIN_L}'); I(f's_mov_b32 s{S_CIN+3}, 0x20000')
    I('s_cbranch_scc0 L_eU')
    mk_srd(e, S_IDX, 4, 4096 * 104)
    for bb in range(4):
        I(f'buffer_load_dword v{vIDX+bb}, v{d}, {srd(S_IDX)}, 0 offen offset:{bb*104}')
    if opts.get('ttouch', 0):
        mk_srd(e, S_TAB, 6, 3200000)
        I(f's_mul_i32 s{sX0}, s2, 98')
        I(f's_mul_i32 s{sX0+1}, s{sK}, 25')
        I(f's_add_u32 s{sX0}, s{sX0}, s{sX0+1}')
        I(f'v_add_u32 v{a}, s{sX0}, v{vL}')
        I('s_mov_b32 exec_lo, 0x1ffffff'); I('s_mov_b32 exec_hi, 0')
        I(f'v_lshlrev_b32 v{a}, 7, v{a}')
        I(f'buffer_load_dword v{vDUM}, v{a}, {srd(S_TAB)}, 0 offen')
        I('s_mov_b64 exec, -1')
    I('s_branch L_eS')
    e.label('L_eU')
    mk_srd(e, S_W1, 12, 346112)
    if touch:
        I(f's_mul_i32 s{sT0}, s{sSL}, 85')
        I(f's_mul_i32 s{sT1}, s{sK}, 22')
        I(f's_add_u32 s{sT0}, s{sT0}, s{sT1}')
        I(f'v_add_u32 v{a}, s{sT0}, v{vL}')
        I(f's_mul_i32 s{sT0}, s{sSL}, 26')
        I(f's_mul_i32 s{sT1}, s{sK}, 7')
        I(f'v_lshlrev_b32 v{a}, 7, v{a}')
        I(f's_add_u32 s{sT0}, s{sT0}, s{sT1}')
        I(f'v_add_u32 v{d}, s{sT0}, v{vL}')
        I('s_mov_b32 exec_lo, 0x3fffff'); I('s_mov_b32 exec_hi, 0')
        I(f'v_lshlrev_b32 v{d}, 7, v{d}')
        I(f'buffer_load_dword v{vDUM}, v{a}, {srd(S_W1)}, 0 offen')
        I('s_mov_b32 exec_lo, 0x7f')
        I(f'buffer_load_dword v{vDUM}, v{d}, {srd(S_CIN)}, 0 offen')
        I('s_mov_b64 exec, -1')
    e.label('L_eS')
    for t in range(13):
        I(f'buffer_load_dwordx4 v{vSO + (t & 3)}, {srd(S_CIN)}, s{sSrc} offen lds')
        if t < 12:
            I(f's_add_u32 s{sSrc}, s{sSrc}, s{sT3}')
            I(f's_add_u32 m0, m0, s{sT2}')
    ST(e, 'b0')
    I(f's_load_dwordx2 s[20:21], s[0:1], 64')
    if debug == 'hstamp':
        I('s_load_dwordx2 s[22:23], s[0:1], 72')
    elif debug:
        I('s_load_dwordx2 s[22:23], s[0:1], 80')
    I(f's_load_dword s{sBO}, s[18:19], 0')
    I(f'v_and_b32 v{vN}, 15, v{vL}')
    I(f'v_lshrrev_b32 v{vG}, 4, v{vL}')
    I(f'v_bfe_u32 v{vR4}, v{vL}, 2, 2')
    I(f'v_and_b32 v{vC4}, 3, v{vL}')
    I(f's_cmp_lt_u32 s{sW}, 4')
    I('s_cbranch_scc1 L_Upath')

    ms = ['s[72:73]', 's[74:75]', 's[76:77]', 'vcc']
    I(f's_mov_b32 s{sE52}, -1')
    I(f's_mov_b32 s{sE52+1}, 0x000fffff')
    I(f'v_lshlrev_b32 v{b}, 4, v{vG}')
    I(f'v_mad_u32_u24 v{vFO}, v{vN}, 52, v{b}')
    I(f'v_cmp_gt_u32 vcc, 10, v{vN}')
    I(f'v_add_u32 v{vFO+1}, 832, v{vFO}')
    I(f'v_mov_b32 v{c}, 0x7ff00000')
    I(f'v_cndmask_b32 v{vFO+1}, v{c}, v{vFO+1}, vcc')
    I(f's_mul_i32 s{sT0}, s{sI0}, 1352')
    F = FQ()
    g0 = f_srd(S_A0, 10, 52) + f_srd(S_B1, 14, 832) + f_srd(S_W2, 16, 832) + [f'v_lshlrev_b32 v{fe}, 4, v{vL}']
    F.add(f'v_lshrrev_b32 v{fa}, 4, v{vL}', f'v_mul_u32_u24 v{fa}, {XS}, v{fa}', f'v_lshl_add_u32 v{fa}, v{vN}, 2, v{fa}',
          f's_mul_i32 s{sF0}, s{sK}, {4*XS}', f's_add_u32 s{sF0}, s{sF0}, {XB + 832}', f'v_add_u32 v{fa}, s{sF0}, v{fa}',
          f'v_cmp_gt_u32 vcc, 8, v{vN}', f'v_mov_b32 v{fb}, 0x3f803f80', f'v_mov_b32 v{fc}, {XCNT}', f'v_mov_b32 v{fd}, 0',
          f'v_cndmask_b32 v{fb}, 0, v{fb}, vcc', f'ds_write_b32 v{fa}, v{fb}', f'ds_write_b32 v{fc}, v{fd}')
    F.add(f'v_and_b32 v{fa}, 1, v{vL}', f'v_lshlrev_b32 v{fa}, 4, v{fa}', f'v_mov_b32 v{fb}, 0x3f80', f'v_lshlrev_b32 v{fb}, v{fa}, v{fb}',
          's_mov_b32 s73, 0', 's_mov_b32 s74, 0')
    for dw in range(4):
        m0_ = (3 << (2*dw)) | (3 << (16 + 2*dw + 8))
        m1_ = (3 << (2*dw)) | ((3 << 24) if dw == 0 else 0)
        F.add(f's_mov_b32 s72, {hex(m0_)}', f'v_cndmask_b32 v{EF+dw}, 0, v{fb}, s[72:73]',
              f's_mov_b32 s75, {hex(m1_)}', f'v_cndmask_b32 v{EF+4+dw}, 0, v{fb}, s[74:75]')
    F.add(*f_common_a())
    F.add(*f_setup_cin())
    def small_dma():
        I(f's_cmp_eq_u32 s{sK}, 0'); I('s_cbranch_scc0 L_sm1')
        I('s_mov_b32 exec_lo, 15'); I('s_mov_b32 exec_hi, 0')
        I(f's_mov_b32 m0, {SM_A0}'); I('s_nop 0')
        I(f'buffer_load_dwordx4 v{fe}, {srd(S_A0)}, 0 offen lds')
        I('s_branch L_smdone')
        e.label('L_sm1')
        I(f's_mov_b64 exec, {sp(sE52)}')
        I(f's_cmp_eq_u32 s{sK}, 1'); I('s_cbranch_scc0 L_sm2')
        I(f's_mov_b32 m0, {SM_B1}'); I('s_nop 0')
        I(f'buffer_load_dwordx4 v{fe}, {srd(S_B1)}, 0 offen lds')
        I('s_branch L_smdone')
        e.label('L_sm2')
        I(f's_cmp_eq_u32 s{sK}, 2'); I('s_cbranch_scc0 L_smdone')
        I(f's_mov_b32 m0, {SM_W2}'); I('s_nop 0')
        I(f'buffer_load_dwordx4 v{fe}, {srd(S_W2)}, 0 offen lds')
        e.label('L_smdone')
        I('s_mov_b64 exec, -1')
    for x in g0: I(x)
    small_dma()
    b1_at = opts.get('b1_at', 3)
    for u in range(7):
        if u == 6:
            I(f's_cmp_ge_u32 s{sK}, 2'); I('s_cbranch_scc1 L_w0done')
        if u == b1_at:
            I(f's_waitcnt vmcnt({2*u})')
            I('s_barrier')
            ST(e, 'b1')
        I(f's_add_u32 s{sT1}, s{sT0}, {u*1352}')
        for R in range(2):
            I(f'buffer_load_dwordx4 {vr(FF+8*u+4*R,4)}, v{vFO+R}, {srd(S_CIN)}, s{sT1} offen')
    e.label('L_w0done')
    mk_srd(e, S_TAB, 6, 3200000)
    I(f'v_and_b32 v{a}, 1, v{vL}')
    I(f'v_lshlrev_b32 v{a}, 4, v{a}')
    for bb in range(4):
        I(f'v_lshl_add_u32 v{vIDX+bb}, v{vIDX+bb}, 5, v{a}')
    I(f's_mul_i32 s{sT0}, s{sK}, {4*XS}')
    I(f's_mov_b64 exec, {sp(sE52)}')
    for bb in range(4):
        I(f's_add_u32 m0, s{sT0}, {XB + bb*XS}')
        I('s_nop 0')
        I(f'buffer_load_dwordx4 v{vIDX+bb}, {srd(S_TAB)}, 0 offen lds')
    I('s_mov_b64 exec, -1')
    ST(e, 'pre1')
    F.drain(e)
    prev = None
    for u in range(7):
        if u == 6:
            I(f's_cmp_ge_u32 s{sK}, 2'); I('s_cbranch_scc1 L_plast')
        n = 2 * (5 - u) + 4 if u <= 5 else 4
        I(f's_waitcnt vmcnt({n})')
        f = FF + 8 * u
        unit(e, f, f + 4, EF, EF + 4, DD[u & 1], None if prev is None else (DD[prev & 1], prev, FR_P))
        prev = u
    unit_store(e, DD[6 & 1], 6, FR_P)
    I('s_branch L_pend')
    e.label('L_plast')
    unit_store(e, DD[5 & 1], 5, FR_P)
    e.label('L_pend')
    ST(e, 'units')
    I('s_waitcnt lgkmcnt(0)')
    ST(e, 'fold')
    I('s_barrier')
    ST(e, 'b2')
    e.ds_q = []
    if debug == 'fold':
        I('s_branch L_dbg')
    else:
        acc_init_cin(e)
        main_cin(e, debug, opts)
        I('s_branch L_join')

    e.last = {}; e.ds_q = []
    e.label('L_Upath')
    I(f's_lshl_b32 s{sT2}, s{sK}, 3')
    I(f's_add_u32 s{sT2}, s{sT2}, 52')
    I(f's_add_u32 s{sT3}, s{sT2}, 32')
    I(f's_load_dwordx16 s[{SA}:{SA+15}], s[10:11], 104')
    I(f's_load_dwordx2 s[60:61], s[10:11], s{sT2}')
    I(f's_load_dwordx2 s[62:63], s[10:11], s{sT3}')
    for j in range(2):
        I(f'v_lshl_add_u32 v{fa}, v{vG}, 2, v{vR4}')
        if j:
            I(f'v_add_u32 v{fa}, 16, v{fa}'); I(f'v_min_u32 v{fa}, 25, v{fa}')
        I(f'v_and_b32 v{fb}, 7, v{fa}'); I(f'v_lshlrev_b32 v{fb}, 5, v{fb}'); I(f'v_lshl_add_u32 v{fb}, v{fa}, 9, v{fb}')
        I(f'v_lshl_add_u32 v{fb}, v{vC4}, 3, v{fb}'); I(f'v_add_u32 v{TAD+8*j}, s{sStage}, v{fb}')
        for x in range(1, 8):
            I(f'v_xor_b32 v{TAD+8*j+x}, {x*32}, v{TAD+8*j}')
    for u in range(4, 8):
        for R in range(2): I(f'v_mov_b32 v{UD+8*u+4*R}, 0')
    for dw in range(4): I(f'v_mov_b32 v{SELA+dw}, 0')
    for x in f_common_a(): I(x)
    I(f'v_lshlrev_b32 v{a}, 4, v{vL}')
    I(f'v_add_u32 v{a}, {HB}, v{a}')
    I(f'v_cmp_gt_u32 {sp(sMN10)}, 10, v{vN}')
    I(f's_lshl_b32 s{sF0}, s{sK}, 2')
    I(f's_lshl_b32 s{sF1}, 1, s{sF0}')
    I(f's_lshl_b32 s{sF2}, s{sF1}, 16')
    I('s_waitcnt lgkmcnt(0)')
    for q in (13, 14, 15): I(f's_mov_b32 s{SA+q}, 0')
    for g in range(4):
        if g < 2:
            I(f's_mov_b32 exec_lo, s{sF1 if g == 0 else sF2}'); I('s_mov_b32 exec_hi, 0') if g == 0 else None
        else:
            I('s_mov_b32 exec_lo, 0') if g == 2 else None
            I(f's_mov_b32 exec_hi, s{sF1 if g == 2 else sF2}')
        for dw, src in enumerate((2*g, 2*g+1, 8+2*g, 9+2*g)):
            I(f'v_mov_b32 v{SELA+dw}, s{SA+src}')
    I('s_mov_b64 exec, -1')
    I(f's_cmp_le_u32 s{sK}, 2'); I('s_cselect_b32 s62, s62, 0'); I(f's_cmp_le_u32 s{sK}, 1'); I('s_cselect_b32 s63, s63, 0')
    for q in range(4):
        I(f's_lshl_b32 s{SA+2*q}, s{60+q}, 16'); I(f's_and_b32 s{SA+2*q+1}, s{60+q}, 0xffff0000')
    I('s_waitcnt vmcnt(0)')
    ST(e, 'pre1')
    def frag_reads(u, nbuf=4, off=0):
        buf = UB + 8 * (u % nbuf)
        ids = []
        for R in range(2):
            pg = 2 * u + R
            for j in range(2):
                ids.append(I(f'ds_read_b64_tr_b16 {vr(buf+4*R+2*j,2)}, v{TAD+8*j+(pg&7)} offset:{off + (pg>>3)*256}'))
        return ids
    pend = {u: frag_reads(u) for u in range(3)}
    for u in range(8):
        if u == 4:
            I(f's_cmp_eq_u32 s{sK}, 3'); I('s_cbranch_scc1 L_u2done')
        if u == 6:
            I(f's_cmp_eq_u32 s{sK}, 2'); I('s_cbranch_scc1 L_u2done')
        if u + 3 < 8:
            pend[u + 3] = frag_reads(u + 3)
        e.wait_ds(pend[u][-1])
        buf = UB + 8 * (u % 4)
        for R in range(2):
            I(f'v_mfma_f32_16x16x32_bf16 {vr(UD+8*u+4*R,4)}, {vr(SELA,4)}, {vr(buf+4*R,4)}, 0')
    e.label('L_u2done')
    I(f's_mov_b32 s{sX0}, 0xffff')
    I(f's_mov_b32 s{sX0+1}, 0')
    I(f's_lshl_b32 s{sT0}, s{sK}, 4')
    for u in range(4):
        I(f'v_cvt_pk_bf16_f32 v{HF+u}, v{UD+16*u}, v{UD+16*u+8}')
    for u in range(8):
        I(f'v_cndmask_b32 v{UD+8*u+4}, 0, v{UD+8*u+4}, {sp(sMN10)}')
    I('s_mov_b32 exec_lo, 0x04000400'); I('s_mov_b32 exec_hi, 0x04000400')
    for u in range(8):
        I(f'v_mov_b32 v{UD+8*u+4}, s{SA+u}')
    I('s_mov_b64 exec, -1')
    for u in range(4):
        I(f'v_cvt_pk_bf16_f32 v{HF+4+u}, v{UD+16*u+4}, v{UD+16*u+12}')
    I(f's_lshl_b64 exec, {sp(sX0)}, s{sT0}')
    I(f'ds_write_b128 v{a}, {vr(HF,4)}')
    I(f'ds_write_b128 v{a}, {vr(HF+4,4)} offset:1024')
    I('s_mov_b64 exec, -1')
    I('s_waitcnt lgkmcnt(0)')
    I('s_barrier')
    ST(e, 'b1')
    I(f'ds_read_b128 {vr(HF,4)}, v{a} offset:0')
    I(f'ds_read_b128 {vr(HF+4,4)}, v{a} offset:1024')
    pend = {u: frag_reads(u, off=WS1 - WS2) for u in range(3)}
    prev = None
    for u in range(7):
        if u == 6:
            I(f's_cmp_ge_u32 s{sK}, 2'); I('s_cbranch_scc1 L_tlast')
        if u + 3 < 7:
            pend[u + 3] = frag_reads(u + 3, off=WS1 - WS2)
        e.wait_ds(pend[u][-1])
        g = UB + 8 * (u % 4)
        for dw in range(4):
            I(f'v_cndmask_b32 v{g+4+dw}, 0, v{g+4+dw}, {sp(sMN10)}')
        unit(e, g, g + 4, HF, HF + 4, DD[u & 1], None if prev is None else (DD[prev & 1], prev, FR_Q))
        prev = u
    unit_store(e, DD[6 & 1], 6, FR_Q)
    I('s_branch L_tend')
    e.label('L_tlast')
    unit_store(e, DD[5 & 1], 5, FR_Q)
    e.label('L_tend')
    ST(e, 'units')
    I('s_waitcnt lgkmcnt(0)')
    e.ds_q = []
    for x in f_setup_dnn(): I(x)
    dma_step(e, 0, 'U0')
    I(f'v_mov_b32 v{vXCA}, {XCNT}')
    I(f'v_mov_b32 v{vONE}, 1')
    acc_init_dnn(e)
    I('s_waitcnt lgkmcnt(0)')
    ST(e, 'fold')
    I('s_barrier')
    ST(e, 'b2')
    e.ds_q = []
    if debug == 'fold':
        e.label('L_dbg')
        I('s_waitcnt vmcnt(0)'); I('s_barrier')
        dump_lds(e)
        return finish(e, opts)
    main_dnn(e, debug, opts)
    final(e, debug, opts)
    return finish(e, opts)

def dma_step(e, step, tag):
    I = e.I
    slot = step % 4
    I(f's_mov_b32 s{sT3}, {step*26624}')
    for u in range(7):
        if u == 6:
            I(f's_cmp_ge_u32 s{sK}, 2'); I(f's_cbranch_scc1 L_dma_{tag}')
        I(f's_add_u32 m0, s{sDma}, {slot*SLOT + u*1024}')
        I('s_nop 0')
        I(f'buffer_load_dwordx4 v{vDMA+u}, {srd(S_W1)}, s{sT3} offen lds')
    e.label(f'L_dma_{tag}')

def unit(e, X0, X1, Y0, Y1, D, prev):
    I = e.I
    mf = []
    def m(dd, A, B, first):
        mf.append(f'v_mfma_f32_16x16x32_bf16 {vr(dd,4)}, {vr(A,4)}, {vr(B,4)}, ' + ('0' if first else vr(dd, 4)))
    m(D, X0, Y0, True); m(D + 4, X1, Y0, True); m(D + 8, X1, Y1, True)
    m(D, Y0, X0, False); m(D + 4, Y1, X0, False); m(D + 8, Y1, X1, False)
    fill = []
    if prev is not None:
        PD, pu, setbase = prev
        for ti in range(3):
            fill.append(f'v_cvt_pk_bf16_f32 v{DC+2*ti}, v{PD+4*ti}, v{PD+4*ti+1}')
            fill.append(f'v_cvt_pk_bf16_f32 v{DC+2*ti+1}, v{PD+4*ti+2}, v{PD+4*ti+3}')
        for ti in range(3):
            fill.append(f'ds_write_b32 v{vWA+ti}, v{DC+2*ti} offset:{setbase + pu*16}')
            fill.append(f'ds_write_b32 v{vWB+ti}, v{DC+2*ti+1} offset:{setbase + pu*16}')
    for i in range(6):
        I(mf[i])
        for f in fill[2*i:2*i+2]:
            I(f)

def unit_store(e, D, u, setbase):
    I = e.I
    for ti in range(3):
        I(f'v_cvt_pk_bf16_f32 v{DC+2*ti}, v{D+4*ti}, v{D+4*ti+1}')
        I(f'v_cvt_pk_bf16_f32 v{DC+2*ti+1}, v{D+4*ti+2}, v{D+4*ti+3}')
    for ti in range(3):
        I(f'ds_write_b32 v{vWA+ti}, v{DC+2*ti} offset:{setbase + u*16}')
        I(f'ds_write_b32 v{vWB+ti}, v{DC+2*ti+1} offset:{setbase + u*16}')

def dump_lds(e):
    I = e.I
    I('v_mbcnt_lo_u32_b32 v1, -1, 0'); I('v_mbcnt_hi_u32_b32 v1, -1, v1')
    I(f's_lshl_b32 s{sT0}, s{sW}, 10')
    I('v_lshlrev_b32 v1, 4, v1')
    I(f'v_add_u32 v1, s{sT0}, v1')
    I(f's_mul_i32 s{sT1}, s2, {LDS_TOTAL}')
    I(f'v_add_u32 v2, s{sT1}, v1')
    I(f's_mov_b32 s{sT2}, 0')
    e.label('L_dump')
    I('ds_read_b128 v[4:7], v1')
    I('s_waitcnt lgkmcnt(0)')
    I('global_store_dwordx4 v2, v[4:7], s[22:23]')
    I('s_waitcnt vmcnt(0)')
    I('v_add_u32 v1, 8192, v1'); I('v_add_u32 v2, 8192, v2')
    I(f's_add_u32 s{sT2}, s{sT2}, 1')
    I(f's_cmp_lt_u32 s{sT2}, 20')
    e.raw('    s_cbranch_scc1 L_dump')

def main_cin(e, debug, opts):
    I = e.I
    steps = step_list()
    hs = opts.get('hsched', [3, 5, 5, 5, 5, 5, 5, 5, 5, 5, 5, 3, 0])
    assert sum(hs) == 56 and len(hs) == 13
    halves = [(s_, X_) for s_ in range(28) for X_ in range(2)]
    sc = []; si = 0
    for n in hs:
        sc.append(halves[si:si + n]); si += n
    XR = [XA, XBB]; ZZ = [ZA, ZBB]
    af_ids = {}
    def af_read(s):
        buf = AF[s & 1]
        I(f'ds_read_b128 {vr(buf,4)}, v{vAF} offset:{FR_P + s*FST}')
        af_ids[s] = I(f'ds_read_b128 {vr(buf+4,4)}, v{vAF} offset:{FR_Q + s*FST}')
    def z_half(X, s, pi):
        aa, bb = steps[s]
        mod = ' div:2' if aa == bb else ''
        t = ZT + 4 * pi
        x = XR[X]
        for qi in range(4):
            if mod: I(f'v_mul_f32_e64 v{t+qi}, v{x+4*aa+pi}, v{x+4*bb+qi}{mod}')
            else: I(f'v_mul_f32 v{t+qi}, v{x+4*aa+pi}, v{x+4*bb+qi}')
        z = ZZ[X][s & 1]
        I(f'v_cvt_pk_bf16_f32 v{z+2*pi}, v{t}, v{t+1}')
        I(f'v_cvt_pk_bf16_f32 v{z+2*pi+1}, v{t+2}, v{t+3}')
    def epilogue():
        t = TMP
        for X in range(2):
            P, Q = ACC[('P', X)], ACC[('Q', X)]
            t = TMP + 4 * X
            I(f'v_mul_f32 v{t}, v{P}, v{Q}')
            I(f'v_mul_f32 v{t+1}, v{P+12}, v{Q+12}')
            I(f'v_mul_f32 v{t+2}, v{P+1}, v{Q+1}')
            I(f'v_fmac_f32 v{t+1}, v{P+13}, v{Q+13}')
            for r in range(2, 12):
                I(f'v_fmac_f32 v{t + 2*(r&1)}, v{P+r}, v{Q+r}')
        I(f'v_cmp_gt_u32 vcc, 32, v{vL}')
        for X in range(2):
            t = TMP + 4 * X
            I(f'v_add_f32 v{t}, v{t}, v{t+2}')
        for X in range(2):
            t = TMP + 4 * X
            I(f'v_cndmask_b32 v{t+1}, 0, v{t+1}, vcc')
        for X in range(2):
            t = TMP + 4 * X
            I(f'v_add_f32 v{t}, v{t}, v{t+1}')
        t = TMP
        I(f'v_and_b32 v{t+2}, 1, v{vG}')
        I(f'v_lshlrev_b32 v{t+2}, 6, v{t+2}')
        I(f'v_lshrrev_b32 v{t+3}, 1, v{vG}')
        I(f'v_lshl_add_u32 v{t+2}, v{t+3}, 2, v{t+2}')
        I(f's_lshl_b32 s{sT0}, s{sK}, 8')
        I(f's_add_u32 s{sT0}, s{sT0}, {RED + 16}')
        I(f'v_add_u32 v{t+2}, s{sT0}, v{t+2}')
        for sh in (8, 4, 2, 1):
            for X in range(2):
                tt = TMP + 4 * X
                I(f'v_add_f32_dpp v{tt}, v{tt}, v{tt} row_ror:{sh} row_mask:0xf bank_mask:0xf')
        I(f's_mov_b32 exec_lo, 0x00010001'); I(f's_mov_b32 exec_hi, 0x00010001')
        I(f'ds_write_b32 v{t+2}, v{TMP}')
        I(f'ds_write_b32 v{t+2}, v{TMP+4} offset:128')
        I('s_mov_b64 exec, -1')
    for j in range(13):
        e.comment(f'---- CIN interval {j}')
        if j == 0:
            I('s_waitcnt vmcnt(0)')
            I('s_barrier')
        ST(e, f'it{j}')
        if j == 0:
            xa = [I(f'ds_read_b64_tr_b16 {vr(XPA+2*q,2)}, v{vTRX} offset:{128*q}') for q in range(7)]
            xb = [I(f'ds_read_b64_tr_b16 {vr(XPB+2*q,2)}, v{vTRX} offset:{2*XS + 128*q}') for q in range(7)]
            I(f'v_mov_b32 v{TMP}, {XCNT}'); I(f'v_mov_b32 v{TMP+1}, 1')
            I('s_waitcnt lgkmcnt(0)')
            I('s_mov_b64 exec, 1')
            I(f'ds_add_u32 v{TMP}, v{TMP+1}')
            I('s_mov_b64 exec, -1')
            af_read(0); af_read(1)
            for q in range(7):
                for h in range(2):
                    I(f'v_lshlrev_b32 v{XA+4*q+2*h}, 16, v{XPA+2*q+h}')
                    I(f'v_and_b32 v{XA+4*q+2*h+1}, 0xffff0000, v{XPA+2*q+h}')
            z_half(0, 0, 0); z_half(0, 0, 1)
            for q in range(7):
                for h in range(2):
                    I(f'v_lshlrev_b32 v{XBB+4*q+2*h}, 16, v{XPB+2*q+h}')
                    I(f'v_and_b32 v{XBB+4*q+2*h+1}, 0xffff0000, v{XPB+2*q+h}')
            z_half(1, 0, 0); z_half(1, 0, 1)
        for (s, X) in ([] if opts.get('no_cin') else sc[j]):
            if X == 0: e.wait_ds(af_ids[s])
            buf = AF[s & 1]
            z = ZZ[X][s & 1]
            P, Q = ACC[('P', X)], ACC[('Q', X)]
            I(f'v_mfma_f32_32x32x16_bf16 {vr(P,16)}, {vr(buf,4)}, {vr(z,4)}, ' + ('0' if s == 0 else vr(P,16)))
            if s + 1 < 28: z_half(X, s + 1, 0)
            I(f'v_mfma_f32_32x32x16_bf16 {vr(Q,16)}, {vr(buf+4,4)}, {vr(z,4)}, ' + (vr(QI,16) if s == 0 else vr(Q,16)))
            if X == 1 and s + 2 < 28: af_read(s + 2)
            if s + 1 < 28: z_half(X, s + 1, 1)
        if (not sc[j]) and j > 0 and sc[j-1]:
            epilogue()
    if sc[12]:
        epilogue()
    I('s_waitcnt lgkmcnt(0)')
    ST(e, 'gelu')

def main_dnn(e, debug, opts):
    I = e.I
    e.last = {}
    I(f's_cmp_ge_u32 s{sK}, 2')
    I('s_cselect_b64 vcc, -1, 0')
    dma_step(e, 1, 'C1')
    dma_step(e, 2, 'C2')
    def dma_one(step, u, tag, between=None):
        if u == 6: I(f's_cbranch_vccnz L_d6_{tag}')
        I(f's_add_u32 m0, s{sDma}, {(step % 4)*SLOT + u*1024}')
        if between: between()
        else: I('s_nop 0')
        I(f'buffer_load_dwordx4 v{vDMA+u}, {srd(S_W1)}, s{sT3} offen lds')
        if u == 6: e.label(f'L_d6_{tag}')
    def mf(j, u):
        I(f'v_mfma_f32_16x16x32_bf16 {vr(DACC+4*u,4)}, {vr(XF+4*j,4)}, {vr(WF[j&1]+4*u,4)}, {vr(DACC+4*u,4)}')
    plan = {j: [] for j in range(13)}
    plan[1] = [3, 4]
    for j in range(2, 10): plan[j] = [j + 3]
    order = [(st_, u) for st_ in range(3) for u in range(7)]
    tops = {}
    for j in range(13):
        tops[j] = list(order)
        order += [(st_, u) for st_ in plan[j] for u in range(7)]
    def later_count(j, cls7):
        seq = [x for x in tops[j] if cls7 or x[1] < 6]
        last = max(i for i, x in enumerate(seq) if x[0] == j)
        return len(seq) - 1 - last
    for j in range(13):
        e.comment(f'---- DNN interval {j}')
        n7, n6 = later_count(j, True), later_count(j, False)
        if n7 != n6:
            I(f's_cbranch_vccnz L_vw6_{j}')
            I(f's_waitcnt vmcnt({n7})')
            I(f's_branch L_vwd_{j}')
            e.label(f'L_vw6_{j}')
            I(f's_waitcnt vmcnt({n6})')
            e.label(f'L_vwd_{j}')
        else:
            I(f's_waitcnt vmcnt({n7})')
        if j == 0:
            I('s_waitcnt lgkmcnt(0)')
            I('s_barrier')
        ST(e, f'it{j}')
        if j == 0:
            for q in range(13):
                I(f'ds_read_b64 {vr(XF+4*q,2)}, v{vXF} offset:{64*q}')
                I(f'ds_read_b64 {vr(XF+4*q+2,2)}, v{vXF} offset:{64*q+16}')
            I('s_waitcnt lgkmcnt(0)')
            I('s_mov_b64 exec, 1')
            I(f'ds_add_u32 v{vXCA}, v{vONE}')
            I('s_mov_b64 exec, -1')
        slot = j % 4
        tb = vT + 4 * (slot >> 1)
        for u in range(7):
            if u == 6: I(f's_cbranch_vccnz L_r6_{j}')
            for jj in range(2):
                I(f'ds_read_b64_tr_b16 {vr(WF[j&1]+4*u+2*jj,2)}, v{tb+2*jj+(u&1)} offset:{(slot&1)*SLOT + (u>>1)*64}')
        e.label(f'L_r6_{j}')
        if j == 1:
            e.label('L_xspin')
            I(f'ds_read_b32 v{vXCT}, v{vXCA}')
            I('s_waitcnt lgkmcnt(0)')
            I(f'v_readfirstlane_b32 s{sT0}, v{vXCT}')
            I(f's_cmp_ge_u32 s{sT0}, 8')
            e.raw('    s_cbranch_scc0 L_xspin')
        if j >= 1:
            if j > 1: I('s_waitcnt lgkmcnt(12)')
            steps_ = [] if opts.get('no_dma') else plan[j]
            first = steps_[0] if steps_ else None
            if first is not None: I(f's_mov_b32 s{sT3}, {first*26624}')
            for u in range(7):
                if u == 6:
                    I(f's_cbranch_vccnz L_m6_{j}')
                    if first is not None:
                        I(f's_add_u32 m0, s{sDma}, {(first % 4)*SLOT + u*1024}'); mf(j - 1, u)
                        I(f'buffer_load_dwordx4 v{vDMA+u}, {srd(S_W1)}, s{sT3} offen lds')
                    else: mf(j - 1, u)
                    e.label(f'L_m6_{j}')
                elif first is not None:
                    dma_one(first, u, f'{j}', between=lambda: mf(j - 1, u))
                else:
                    mf(j - 1, u)
            for st_ in steps_[1:]:
                I(f's_mov_b32 s{sT3}, {st_*26624}')
                for u in range(7): dma_one(st_, u, f'{j}_{st_}')
    I('s_waitcnt lgkmcnt(0)')
    for u in range(7):
        if u == 6: I('s_cbranch_vccnz L_m6_end')
        mf(12, u)
    e.label('L_m6_end')
    ST(e, 'gelu')
    G = TMP
    T = TMP + 4
    C1, C0, ONE = CST, CST + 2, CST + 4
    def gelu(pairs, first):
        def each(fn):
            for k_, (x, u, h) in enumerate(pairs):
                fn(x, T + 2 * k_, u, h, k_)
        each(lambda x, t, u, h, k_: I(f'v_pk_mul_f32 {vr(t,2)}, {vr(x,2)}, {vr(x,2)}'))
        each(lambda x, t, u, h, k_: I(f'v_pk_fma_f32 {vr(t,2)}, {vr(t,2)}, {vr(C1,2)}, {vr(C0,2)}'))
        each(lambda x, t, u, h, k_: I(f'v_pk_mul_f32 {vr(t,2)}, {vr(t,2)}, {vr(x,2)}'))
        each(lambda x, t, u, h, k_: (I(f'v_exp_f32 v{t}, v{t}'), I(f'v_exp_f32 v{t+1}, v{t+1}')))
        each(lambda x, t, u, h, k_: I(f'v_pk_mul_f32 {vr(x,2)}, {vr(x,2)}, {vr(W2V + (u & ~1), 2)} op_sel:[0,{u&1}] op_sel_hi:[1,{u&1}]'))
        each(lambda x, t, u, h, k_: I(f'v_pk_add_f32 {vr(t,2)}, {vr(t,2)}, {vr(ONE,2)}'))
        each(lambda x, t, u, h, k_: (I(f'v_rcp_f32 v{t}, v{t}'), I(f'v_rcp_f32 v{t+1}, v{t+1}')))
        def last(x, t, u, h, k_):
            if first and k_ < 2: I(f'v_pk_mul_f32 {vr(G+2*h,2)}, {vr(t,2)}, {vr(x,2)}')
            else: I(f'v_pk_fma_f32 {vr(G+2*h,2)}, {vr(t,2)}, {vr(x,2)}, {vr(G+2*h,2)}')
        each(last)
    allp = [(DACC + 4*u + 2*h, u, h) for u in range(6) for h in range(2)]
    gelu(allp[0:4], True); gelu(allp[4:8], False); gelu(allp[8:12], False)
    I(f's_cmp_ge_u32 s{sK}, 2'); I(f's_cbranch_scc1 L_g6')
    gelu([(DACC + 24 + 2*h, 6, h) for h in range(2)], False)
    e.label('L_g6')
    I(f'v_lshlrev_b32 v{T}, 8, v{vG}')
    I(f's_lshl_b32 s{sT0}, s{sK}, 2')
    I(f's_add_u32 s{sT0}, s{sT0}, {RED}')
    I(f'v_add_u32 v{T}, s{sT0}, v{T}')
    for sh in (8, 4, 2, 1):
        for r in range(4):
            I(f'v_add_f32_dpp v{G+r}, v{G+r}, v{G+r} row_ror:{sh} row_mask:0xf bank_mask:0xf')
    I(f's_mov_b32 exec_lo, 0x00010001'); I(f's_mov_b32 exec_hi, 0x00010001')
    for r in range(4):
        I(f'ds_write_b32 v{T}, v{G+r} offset:{64*r}')
    I('s_mov_b64 exec, -1')
    I('s_waitcnt lgkmcnt(0)')

def final(e, debug, opts):
    I = e.I
    T = TMP + 4
    e.label('L_join')
    e.last = {}
    I('s_barrier')
    if debug == 'red':
        dump_lds(e); return
    if debug == 'stamp':
        ST(e, 'fin')
        ST.flush(e)
        open('stamp_names.txt', 'w').write(' '.join(ST.names))
        return
    if debug == 'hstamp':
        ST(e, 'fin')
        sel = opts.get('hsel', ['b0', 'pre1', 'b1', 'units', 'b2', 'it0', 'it12', 'fin'])
        I(f's_cmp_eq_u32 s2, {opts.get("hwg", 128)}'); I('s_cbranch_scc0 L_nohs')
        I(f's_and_b32 s{sT0}, s{sW}, 3'); I(f's_cmp_eq_u32 s{sT0}, 0'); I('s_cbranch_scc0 L_nohs')
        I('s_waitcnt lgkmcnt(0)')
        r0 = STAMP_SLOTS[0]
        for i, nm in enumerate(sel):
            r = STAMP_SLOTS[ST.names.index(nm)]
            I(f's_sub_u32 s{sT1}, s{r}, s{r0}')
            I(f'v_writelane_b32 v200, s{sT1}, {i}')
        I(f's_lshl_b32 s{sT0}, s{sW}, 3')
        I(f'v_lshlrev_b32 v201, 2, v{vL}')
        I(f'v_add_u32 v201, s{sT0}, v201')
        I('s_mov_b32 exec_lo, 0xff'); I('s_mov_b32 exec_hi, 0')
        I('global_store_dword v201, v200, s[22:23]')
        I('s_mov_b64 exec, -1')
        I('s_waitcnt vmcnt(0)')
        e.label('L_nohs')
    I(f's_cmp_lg_u32 s{sW}, 0'); I('s_cbranch_scc1 L_end')
    I('s_mov_b32 exec_lo, 0xffff'); I('s_mov_b32 exec_hi, 0')
    I(f'v_lshlrev_b32 v{T}, 6, v{vL}')
    I(f'v_add_u32 v{T}, {RED}, v{T}')
    I(f'ds_read_b128 {vr(8,4)}, v{T}')
    I(f'ds_read_b64 {vr(12,2)}, v{T} offset:16')
    I(f's_mov_b32 s{S_OUT}, s20'); I(f's_mov_b32 s{S_OUT+1}, s21')
    I(f's_mov_b32 s{S_OUT+2}, 8192'); I(f's_mov_b32 s{S_OUT+3}, 0x20000')
    I(f's_lshl_b32 s{sBO}, s{sBO}, 16')
    I(f's_lshl_b32 s{sT0}, s2, 5')
    I(f'v_lshlrev_b32 v{T+1}, 1, v{vL}')
    I(f'v_add_u32 v{T+1}, s{sT0}, v{T+1}')
    I('s_waitcnt lgkmcnt(0)')
    I('v_add_f32 v8, v8, v9'); I('v_add_f32 v10, v10, v11'); I('v_add_f32 v12, v12, v13')
    I('v_add_f32 v8, v8, v10')
    I(f'v_add_f32 v12, s{sBO}, v12')
    I('v_add_f32 v8, v8, v12')
    I('v_cvt_pk_bf16_f32 v8, v8, v8')
    I(f'buffer_store_short v8, v{T+1}, {srd(S_OUT)}, 0 offen')
    I('s_waitcnt vmcnt(0)')

def finish(e, opts):
    e.label('L_end')
    body = e.text()
    hdr = f"""; xDeepFM (CIN + DNN) fused kernel, generated by my own generator script.
; One workgroup = 16 batch rows, 8 waves.  CIN layers are folded at run time into two quadratic forms.
; @launch grid=(256,1,1) block=(512,1,1) lds={LDS_TOTAL}
.amdgcn_target "amdgcn-amd-amdhsa--gfx950"
.text
.globl {KN}
.p2align 8
.type {KN},@function
{KN}:
"""
    ftr = f"""    s_endpgm
.section .rodata,"a"
.p2align 6
.amdhsa_kernel {KN}
  .amdhsa_next_free_vgpr 256
  .amdhsa_next_free_sgpr 102
  .amdhsa_accum_offset 256
  .amdhsa_group_segment_fixed_size 0
  .amdhsa_kernarg_size 88
  .amdhsa_user_sgpr_count 2
  .amdhsa_user_sgpr_kernarg_segment_ptr 1
  .amdhsa_system_sgpr_workgroup_id_x 1
  .amdhsa_ieee_mode 0
.end_amdhsa_kernel
"""
    return hdr + body + ftr

if __name__ == '__main__':
    dbg = sys.argv[2] if len(sys.argv) > 2 and sys.argv[2] != 'none' else None
    opts = eval(sys.argv[3]) if len(sys.argv) > 3 else {}
    out = build(dbg, opts)
    open(sys.argv[1], 'w').write(out)
    print('wrote', sys.argv[1], len(out), 'bytes')
```

```python
import sys, os
from emit import Emit

KN = "standalone__deep_cross_xdeepfm__recsys_kernel"

FST = 848; FR_P = 0; FR_Q = 28 * FST
RB = 47616; SLOT = 26624; WROW = 832
WS2 = RB + SLOT - 4 * 13312
WS1 = RB + SLOT
STG = 13312
XB = RB + 3 * SLOT; XS = 912
HB = RB + 4 * SLOT
SM = HB + 2048; SM_A0 = SM; SM_B1 = SM + 64; SM_W2 = SM + 896
RED = SM + 1728
XCNT = RED + 1024
LDS_TOTAL = 163840
OOB_LDS = 0x40000
CIN_L = 35152
assert WS1 % 512 == 0 and 28 * FST * 2 <= RB and RED + 1024 <= LDS_TOTAL and WS2 % 512 == 0 and WS2 >= 0

S_IDX, S_TAB, S_CIN, S_W1 = 24, 28, 32, 36
S_A0, S_B1, S_W2, S_OUT = 40, 52, 56, 60
sA2 = 96
sW, sK = 64, 65
sBO = 66
sI0 = 67
sT0, sT1, sT2, sT3 = 68, 69, 70, 71
sMN10 = 78
sE52 = 80
sStage, sSrc = 82, 83
sC0, sC1, sC2 = 84, 85, 86
sX0 = 88
sF0, sF1, sF2 = 84, 85, 86
sDma = 92
sSL = 93
SA = 44
def srd(n): return f"s[{n}:{n+3}]"
def sp(n): return f"s[{n}:{n+1}]"
def vr(a, n=1): return f"v{a}" if n == 1 else f"v[{a}:{a+n-1}]"

vL = 0
TMP = 122
fa, fb, fc, fd, fe = 132, 133, 134, 135, 136
vN, vG, vR4, vC4 = 142, 143, 144, 145
vWA = 146
vWB = 149
DD = [152, 164]
DC = 176
vSO = 182
vDUM = 186
UD = 2; SELA = 66; HF = 102
TAD = 188
UB = 70
FF = 2; EF = 60; vIDX = 68; vFO = 72
XA = 2; XBB = 30
ZA = [58, 62]; ZBB = [66, 70]
ZT = 74
AF = [82, 90]
vAF = 100; vTRX = 101
XPA = 104; XPB = 152
QI = 166
ACC = {('P', 0): 192, ('Q', 0): 208, ('P', 1): 224, ('Q', 1): 240}
vDMA = 100
vT = 108
vXF = 116
WF = [2, 30]
XF = 152
DACC = 208
W2V = 236
CST = 244
vXCA = 118; vONE = 119; vXCT = 120

STAMP_SLOTS = [94, 96, 98, 100, 90, 40, 42] + list(range(44, 60, 2)) + [24, 26, 28, 30, 4, 6, 8, 10, 14, 16]
class Stamps:
    def __init__(self, on): self.on = on; self.names = []
    def __call__(self, e, name):
        if not self.on: return
        if name in self.names: i = self.names.index(name)
        else:
            i = len(self.names); self.names.append(name)
        r = STAMP_SLOTS[i]
        e.I(f's_memtime s[{r}:{r+1}]')
    def flush(self, e):
        if not self.on: return
        I = e.I
        I('s_mov_b64 exec, -1')
        I('s_waitcnt vmcnt(0) lgkmcnt(0)')
        for i in range(len(self.names)):
            I(f'v_writelane_b32 v200, s{STAMP_SLOTS[i]}, {i}')
        I('s_memrealtime s[68:69]')
        I('s_waitcnt lgkmcnt(0)')
        I('v_writelane_b32 v200, s68, 31')
        I('v_mbcnt_lo_u32_b32 v201, -1, 0'); I('v_mbcnt_hi_u32_b32 v201, -1, v201')
        I('v_lshlrev_b32 v201, 2, v201')
        I(f's_lshl_b32 s70, s2, 3'); I(f's_add_u32 s70, s70, s{sW}'); I('s_lshl_b32 s70, s70, 8')
        I('v_add_u32 v201, s70, v201')
        I('global_store_dword v201, v200, s[22:23]')
        I('s_waitcnt vmcnt(0)')
ST = Stamps(False)

def step_list():
    return [(a, b) for b in range(7) for a in range(b + 1)]

def mk_srd(e, n, lo, size, add=0):
    I = e.I
    if add:
        I(f's_add_u32 s{n}, s{lo}, {add}')
        I(f's_addc_u32 s{n+1}, s{lo+1}, 0')
    else:
        I(f's_mov_b32 s{n}, s{lo}')
        I(f's_mov_b32 s{n+1}, s{lo+1}')
    I(f's_mov_b32 s{n+2}, {size}')
    I(f's_mov_b32 s{n+3}, 0x20000')


class FQ:
    def __init__(self): self.q = []
    def add(self, *items): self.q.extend(items)
    def drain(self, e, n=10**9):
        k = 0
        while self.q and k < n:
            it = self.q.pop(0)
            if isinstance(it, list):
                for x in it: e.I(x)
                k += len(it)
            else:
                e.I(it); k += 1

def f_srd(n, lo, size):
    return [f's_mov_b32 s{n}, s{lo}', f's_mov_b32 s{n+1}, s{lo+1}', f's_mov_b32 s{n+2}, {size}', f's_mov_b32 s{n+3}, 0x20000']

def f_common_a():
    L = [f'v_bfe_u32 v{fa}, v{vN}, 1, 1', f'v_mul_u32_u24 v{fb}, 420, v{fa}', f'v_and_b32 v{fc}, 1, v{vN}',
         f'v_lshl_add_u32 v{fb}, v{fc}, 3, v{fb}', f's_lshl_b32 s{sF0}, s{sI0}, 4', f'v_lshrrev_b32 v{fc}, 2, v{vN}',
         f'v_add_u32 v{fa}, 1, v{vG}', f'v_mul_u32_u24 v{fa}, v{fa}, v{vG}', f'v_cmp_le_u32 s[72:73], v{fc}, v{vG}',
         f'v_lshrrev_b32 v{fa}, 1, v{fa}', f'v_cmp_ge_u32 s[74:75], 2, v{vG}', f'v_add_u32 v{fa}, v{fa}, v{fc}',
         f's_movk_i32 s{sF2}, {FST}', f'v_add_u32 v{fb}, s{sF0}, v{fb}', f'v_lshlrev_b32 v{fe}, 2, v{vL}',
         f'v_mad_u32_u24 v{fd}, v{fa}, s{sF2}, v{fb}', f's_and_b64 s[76:77], s[72:73], s[74:75]', f'v_add_u32 v{fe}, {OOB_LDS}, v{fe}',
         f's_movk_i32 s{sF1}, {4*FST}', f'v_cndmask_b32 v{vWA}, v{fe}, v{fd}, s[72:73]',
         f'v_mad_u32_u24 v{fd}, v{vG}, s{sF1}, v{fd}', f'v_xor_b32 v{vWB}, 4, v{vWA}', f'v_add_u32 v{fd}, {10*FST}, v{fd}',
         f'v_cndmask_b32 v{vWA+1}, v{fe}, v{fd}, s[74:75]', f'v_add_u32 v{fd}, {4*FST}, v{fd}', f'v_xor_b32 v{vWB+1}, 4, v{vWA+1}',
         f'v_cndmask_b32 v{vWA+2}, v{fe}, v{fd}, s[76:77]', f'v_xor_b32 v{vWB+2}, 4, v{vWA+2}']
    return L

def f_setup_cin():
    L = [f'v_and_b32 v{fa}, 31, v{vL}', f'v_lshlrev_b32 v{fa}, 4, v{fa}', f'v_lshrrev_b32 v{fb}, 5, v{vL}',
         f's_movk_i32 s{sF1}, 416', f'v_mad_u32_u24 v{vAF}, v{fb}, s{sF1}, v{fa}',
         f'v_lshrrev_b32 v{fb}, 1, v{vG}', f'v_and_b32 v{fc}, 1, v{vG}', f's_movk_i32 s{sF1}, {XS}',
         f'v_lshlrev_b32 v{fa}, 1, v{fb}', f'v_xor_b32 v{fa}, v{fa}, v{vR4}', f'v_lshlrev_b32 v{fa}, 5, v{fa}',
         f'v_lshl_add_u32 v{fa}, v{vC4}, 3, v{fa}', f'v_mad_u32_u24 v{fa}, v{fc}, s{sF1}, v{fa}',
         f's_mul_i32 s{sF0}, s{sK}, {4*XS}', f's_add_u32 s{sF0}, s{sF0}, {XB}', f'v_add_u32 v{vTRX}, s{sF0}, v{fa}']
    return L

def f_setup_dnn():
    sCPR, sMAG, sSWZ, sRS = 72, 73, 74, 75
    L = [f's_cmp_lt_u32 s{sK}, 2', f's_cselect_b32 s{sCPR}, 14, 12', f's_mov_b32 s{sF1}, 87382', f's_cselect_b32 s{sMAG}, 74899, s{sF1}',
         f's_cselect_b32 s{sSWZ}, 0, 2', f's_lshl_b32 s{sRS}, s{sCPR}, 4', f's_lshl_b32 s{sF0}, s{sI0}, 5', f's_movk_i32 s{sF2}, 832']
    L += [f's_sub_u32 s{sF2}, s{sF2}, s{sRS}']
    for u in range(7):
        L += [f'v_add_u32 v{fa}, {64*u}, v{vL}', f'v_mul_u32_u24 v{fc}, s{sMAG}, v{fa}', f'v_lshrrev_b32 v{fc}, 20, v{fc}',
              f'v_lshrrev_b32 v{fd}, 1, v{fc}', f'v_and_b32 v{fd}, s{sSWZ}, v{fd}', f'v_xor_b32 v{fa}, v{fa}, v{fd}',
              f'v_lshl_add_u32 v{fa}, v{fa}, 4, s{sF0}', f'v_mad_u32_u24 v{vDMA+u}, v{fc}, s{sF2}, v{fa}']
    L += [f's_lshl_b32 s{sDma}, s{sI0}, 10', f's_add_u32 s{sDma}, s{sDma}, {RB}']
    L += [f'v_lshrrev_b32 v{fb}, 1, v{vG}', f'v_and_b32 v{fc}, 1, v{vG}', f'v_lshlrev_b32 v{fa}, 4, v{fb}',
          f'v_lshl_add_u32 v{fa}, v{fc}, 2, v{fa}', f'v_add_u32 v{fa}, v{fa}, v{vR4}', f'v_mul_u32_u24 v{fa}, s{sRS}, v{fa}',
          f'v_lshl_add_u32 v{fa}, v{vC4}, 3, v{fa}', f'v_add_u32 v{fa}, s{sDma}, v{fa}',
          f's_lshl_b32 s{sF1}, s{sSWZ}, 4', f'v_lshlrev_b32 v{fd}, 5, v{fc}', f'v_and_b32 v{fd}, s{sF1}, v{fd}',
          f'v_add_u32 v{vT}, v{fa}, v{fd}', f'v_sub_u32 v{vT+1}, v{fa}, v{fd}', f'v_add_u32 v{vT+1}, 32, v{vT+1}',
          f's_lshl_b32 s{sF1}, s{sRS}, 3',
          f'v_add_u32 v{vT+2}, s{sF1}, v{vT}', f'v_add_u32 v{vT+3}, s{sF1}, v{vT+1}']
    L += [f'v_add_u32 v{vT+4+q}, {2*SLOT}, v{vT+q}' for q in range(4)]
    L += [f's_movk_i32 s{sF1}, {XS}', f'v_lshlrev_b32 v{fa}, 5, v{fb}', f'v_lshl_add_u32 v{fa}, v{fc}, 3, v{fa}',
          f'v_mad_u32_u24 v{fa}, v{vN}, s{sF1}, v{fa}', f'v_add_u32 v{vXF}, {XB}, v{fa}']
    return L

def acc_init_cin(e):
    I = e.I
    I(f'v_lshrrev_b32 v{fa}, 5, v{vL}')
    I(f'v_lshlrev_b32 v{fa}, 3, v{fa}')
    I(f'v_add_u32 v{fa}, {SM_A0}, v{fa}')
    ids = [I(f'ds_read_b64 {vr(XPA+2*g,2)}, v{fa} offset:{16*g}') for g in range(4)]
    e.wait_ds(ids[-1])
    for g in range(4):
        for q in range(2):
            I(f'v_lshlrev_b32 v{QI+4*g+2*q}, 16, v{XPA+2*g+q}')
            I(f'v_and_b32 v{QI+4*g+2*q+1}, 0xffff0000, v{XPA+2*g+q}')

def acc_init_dnn(e):
    I = e.I
    I(f's_lshl_b32 s{sF0}, s{sI0}, 5')
    I(f's_add_u32 s{sF0}, s{sF0}, {SM_B1}')
    I(f'v_lshlrev_b32 v{fb}, 1, v{vN}')
    I(f'v_add_u32 v{fb}, s{sF0}, v{fb}')
    B = 60
    for u in range(7):
        I(f'v_mov_b32 v{B+u}, 0')
        I(f'v_mov_b32 v{W2V+u}, 0')
    ids = []
    for u in range(7):
        ids.append(I(f'ds_read_u16_d16_hi v{B+u}, v{fb} offset:{32*u}'))
        ids.append(I(f'ds_read_u16_d16_hi v{W2V+u}, v{fb} offset:{832 + 32*u}'))
    for q, val in enumerate(('0xbdd2d3e8', '0xbdd2d3e8', '0xc0135761', '0xc0135761', '1.0', '1.0')):
        I(f'v_mov_b32 v{CST+q}, {val}')
    e.wait_ds(ids[-1])
    for u in range(7):
        for r in range(4):
            I(f'v_mov_b32 v{DACC+4*u+r}, v{B+u}')

def build(debug=None, opts=None):
    global ST
    opts = opts or {}
    e = Emit(); I = e.I
    a, b, c, d = TMP, TMP + 1, TMP + 2, TMP + 3
    touch = opts.get('touch', True)
    gapL = opts.get('gapL', 10)
    sRT = sC1
    I('s_cmp_ge_u32 s2, 256')
    I('s_cbranch_scc1 L_end')
    I('s_load_dwordx16 s[4:19], s[0:1], 0')
    I(f'v_lshrrev_b32 v1, 6, v0')
    I(f'v_and_b32 v{vL}, 63, v0')
    I(f'v_readfirstlane_b32 s{sW}, v1')
    I(f's_bfe_u32 s{sSL}, s2, 0x50003')
    ST = Stamps(debug in ('stamp', 'hstamp'))
    ST(e, 'start')
    if touch:
        I(f's_getpc_b64 {sp(sX0)}')
        I(f's_lshl_b32 s{sT0}, s{sSL}, 3')
        I(f's_add_u32 s{sT0}, s{sT0}, s{sW}')
        I(f's_lshl_b32 s{sT0}, s{sT0}, 7')
        I(f's_and_b32 s{sX0}, s{sX0}, 0xffffff00')
        I(f'v_mov_b32 v{a}, s{sT0}')
        I(f'global_load_dword v{vDUM}, v{a}, {sp(sX0)}')
    I(f's_and_b32 s{sK}, s{sW}, 3')
    I(f'v_lshrrev_b32 v{a}, 5, v{vL}')
    I(f'v_and_b32 v{b}, 1, v{vL}')
    I(f'v_lshlrev_b32 v{b}, 4, v{b}')
    I(f's_movk_i32 s{sC0}, 1352')
    I(f'v_bfe_u32 v{c}, v{vL}, 1, 4')
    I(f'v_mad_u32_u24 v{b}, v{a}, s{sC0}, v{b}')
    I(f'v_xor_b32 v{c}, v{c}, v{a}')
    I(f's_mul_i32 s{sI0}, s{sK}, 7')
    I(f's_cmp_eq_u32 s{sK}, 3')
    I(f's_cselect_b32 s{sT0}, 1, 0')
    I(f's_sub_u32 s{sI0}, s{sI0}, s{sT0}')
    I(f'v_and_b32 v{a}, 1, v{c}')
    I(f'v_lshl_add_u32 v{b}, v{a}, 5, v{b}')
    I(f's_mul_i32 s{sStage}, s{sK}, {STG}')
    I(f's_mul_i32 s{sT0}, s{sK}, 208')
    I(f's_add_u32 s{sT0}, s{sT0}, {2*CIN_L}')
    I(f's_mul_i32 s{sT1}, s{sI0}, 52')
    I(f's_add_u32 s{sT1}, s{sT1}, {CIN_L}')
    I(f's_movk_i32 s{sT2}, 832')
    I(f's_cmp_ge_u32 s{sW}, 4')
    I(f's_cselect_b32 s{sSrc}, s{sT1}, s{sT0}')
    I(f's_cselect_b32 s{sRT}, 208, s{sT2}')
    I(f's_movk_i32 s{sT2}, {WS2}')
    I(f's_cselect_b32 s{sT0}, {WS1}, s{sT2}')
    I(f's_add_u32 s{sStage}, s{sStage}, s{sT0}')
    I(f'v_lshrrev_b32 v{a}, 3, v{c}')
    I(f'v_mad_u32_u24 v{b}, v{a}, s{sRT}, v{b}')
    I(f'v_bfe_u32 v{c}, v{c}, 1, 2')
    I(f'v_mad_u32_u24 v{vSO}, v{c}, 52, v{b}')
    for tm in range(1, 4):
        I(f'v_xor_b32 v{a}, {tm}, v{c}')
        I(f'v_mad_u32_u24 v{vSO+tm}, v{a}, 52, v{b}')
    I(f's_lshl_b32 s{sT0}, s2, 4')
    I(f's_lshl_b32 s{sT1}, s{sK}, 2')
    I(f's_add_u32 s{sT0}, s{sT0}, s{sT1}')
    I(f's_mul_i32 s{sT0}, s{sT0}, 104')
    I(f'v_lshrrev_b32 v{d}, 1, v{vL}')
    I(f'v_lshlrev_b32 v{d}, 2, v{d}')
    I(f'v_add_u32 v{d}, s{sT0}, v{d}')
    I(f's_movk_i32 s{sT3}, 2704')
    I(f's_mov_b32 m0, s{sStage}')
    I(f's_movk_i32 s{sT2}, 1024')
    I(f's_cmp_ge_u32 s{sW}, 4')
    I('s_waitcnt lgkmcnt(0)')
    I(f's_mov_b32 s{S_CIN}, s8'); I(f's_mov_b32 s{S_CIN+1}, s9')
    I(f's_mov_b32 s{S_CIN+2}, {3*CIN_L}'); I(f's_mov_b32 s{S_CIN+3}, 0x20000')
    I('s_cbranch_scc0 L_eU')
    mk_srd(e, S_IDX, 4, 4096 * 104)
    for bb in range(4):
        I(f'buffer_load_dword v{vIDX+bb}, v{d}, {srd(S_IDX)}, 0 offen offset:{bb*104}')
    if opts.get('ttouch', 0):
        mk_srd(e, S_TAB, 6, 3200000)
        I(f's_mul_i32 s{sX0}, s2, 98')
        I(f's_mul_i32 s{sX0+1}, s{sK}, 25')
        I(f's_add_u32 s{sX0}, s{sX0}, s{sX0+1}')
        I(f'v_add_u32 v{a}, s{sX0}, v{vL}')
        I('s_mov_b32 exec_lo, 0x1ffffff'); I('s_mov_b32 exec_hi, 0')
        I(f'v_lshlrev_b32 v{a}, 7, v{a}')
        I(f'buffer_load_dword v{vDUM}, v{a}, {srd(S_TAB)}, 0 offen')
        I('s_mov_b64 exec, -1')
    I('s_branch L_eS')
    e.label('L_eU')
    mk_srd(e, S_W1, 12, 346112)
    if touch:
        I(f's_mul_i32 s{sT0}, s{sSL}, 85')
        I(f's_mul_i32 s{sT1}, s{sK}, 22')
        I(f's_add_u32 s{sT0}, s{sT0}, s{sT1}')
        I(f'v_add_u32 v{a}, s{sT0}, v{vL}')
        I(f's_mul_i32 s{sT0}, s{sSL}, 26')
        I(f's_mul_i32 s{sT1}, s{sK}, 7')
        I(f'v_lshlrev_b32 v{a}, 7, v{a}')
        I(f's_add_u32 s{sT0}, s{sT0}, s{sT1}')
        I(f'v_add_u32 v{d}, s{sT0}, v{vL}')
        I('s_mov_b32 exec_lo, 0x3fffff'); I('s_mov_b32 exec_hi, 0')
        I(f'v_lshlrev_b32 v{d}, 7, v{d}')
        I(f'buffer_load_dword v{vDUM}, v{a}, {srd(S_W1)}, 0 offen')
        I('s_mov_b32 exec_lo, 0x7f')
        I(f'buffer_load_dword v{vDUM}, v{d}, {srd(S_CIN)}, 0 offen')
        I('s_mov_b64 exec, -1')
    e.label('L_eS')
    for t in range(13):
        I(f'buffer_load_dwordx4 v{vSO + (t & 3)}, {srd(S_CIN)}, s{sSrc} offen lds')
        if t < 12:
            I(f's_add_u32 s{sSrc}, s{sSrc}, s{sT3}')
            I(f's_add_u32 m0, m0, s{sT2}')
    ST(e, 'b0')
    I(f's_load_dwordx2 s[20:21], s[0:1], 64')
    if debug == 'hstamp':
        I('s_load_dwordx2 s[22:23], s[0:1], 72')
    elif debug:
        I('s_load_dwordx2 s[22:23], s[0:1], 80')
    I(f's_load_dword s{sBO}, s[18:19], 0')
    I(f'v_and_b32 v{vN}, 15, v{vL}')
    I(f'v_lshrrev_b32 v{vG}, 4, v{vL}')
    I(f'v_bfe_u32 v{vR4}, v{vL}, 2, 2')
    I(f'v_and_b32 v{vC4}, 3, v{vL}')
    I(f's_cmp_lt_u32 s{sW}, 4')
    I('s_cbranch_scc1 L_Upath')

    ms = ['s[72:73]', 's[74:75]', 's[76:77]', 'vcc']
    I(f's_mov_b32 s{sE52}, -1')
    I(f's_mov_b32 s{sE52+1}, 0x000fffff')
    I(f'v_lshlrev_b32 v{b}, 4, v{vG}')
    I(f'v_mad_u32_u24 v{vFO}, v{vN}, 52, v{b}')
    I(f'v_cmp_gt_u32 vcc, 10, v{vN}')
    I(f'v_add_u32 v{vFO+1}, 832, v{vFO}')
    I(f'v_mov_b32 v{c}, 0x7ff00000')
    I(f'v_cndmask_b32 v{vFO+1}, v{c}, v{vFO+1}, vcc')
    I(f's_mul_i32 s{sT0}, s{sI0}, 1352')
    F = FQ()
    g0 = f_srd(S_A0, 10, 52) + f_srd(S_B1, 14, 832) + f_srd(S_W2, 16, 832) + [f'v_lshlrev_b32 v{fe}, 4, v{vL}']
    F.add(f'v_lshrrev_b32 v{fa}, 4, v{vL}', f'v_mul_u32_u24 v{fa}, {XS}, v{fa}', f'v_lshl_add_u32 v{fa}, v{vN}, 2, v{fa}',
          f's_mul_i32 s{sF0}, s{sK}, {4*XS}', f's_add_u32 s{sF0}, s{sF0}, {XB + 832}', f'v_add_u32 v{fa}, s{sF0}, v{fa}',
          f'v_cmp_gt_u32 vcc, 8, v{vN}', f'v_mov_b32 v{fb}, 0x3f803f80', f'v_mov_b32 v{fc}, {XCNT}', f'v_mov_b32 v{fd}, 0',
          f'v_cndmask_b32 v{fb}, 0, v{fb}, vcc', f'ds_write_b32 v{fa}, v{fb}', f'ds_write_b32 v{fc}, v{fd}')
    F.add(f'v_and_b32 v{fa}, 1, v{vL}', f'v_lshlrev_b32 v{fa}, 4, v{fa}', f'v_mov_b32 v{fb}, 0x3f80', f'v_lshlrev_b32 v{fb}, v{fa}, v{fb}',
          's_mov_b32 s73, 0', 's_mov_b32 s74, 0')
    for dw in range(4):
        m0_ = (3 << (2*dw)) | (3 << (16 + 2*dw + 8))
        m1_ = (3 << (2*dw)) | ((3 << 24) if dw == 0 else 0)
        F.add(f's_mov_b32 s72, {hex(m0_)}', f'v_cndmask_b32 v{EF+dw}, 0, v{fb}, s[72:73]',
              f's_mov_b32 s75, {hex(m1_)}', f'v_cndmask_b32 v{EF+4+dw}, 0, v{fb}, s[74:75]')
    F.add(*f_common_a())
    F.add(*f_setup_cin())
    def small_dma():
        I(f's_cmp_eq_u32 s{sK}, 0'); I('s_cbranch_scc0 L_sm1')
        I('s_mov_b32 exec_lo, 15'); I('s_mov_b32 exec_hi, 0')
        I(f's_mov_b32 m0, {SM_A0}'); I('s_nop 0')
        I(f'buffer_load_dwordx4 v{fe}, {srd(S_A0)}, 0 offen lds')
        I('s_branch L_smdone')
        e.label('L_sm1')
        I(f's_mov_b64 exec, {sp(sE52)}')
        I(f's_cmp_eq_u32 s{sK}, 1'); I('s_cbranch_scc0 L_sm2')
        I(f's_mov_b32 m0, {SM_B1}'); I('s_nop 0')
        I(f'buffer_load_dwordx4 v{fe}, {srd(S_B1)}, 0 offen lds')
        I('s_branch L_smdone')
        e.label('L_sm2')
        I(f's_cmp_eq_u32 s{sK}, 2'); I('s_cbranch_scc0 L_smdone')
        I(f's_mov_b32 m0, {SM_W2}'); I('s_nop 0')
        I(f'buffer_load_dwordx4 v{fe}, {srd(S_W2)}, 0 offen lds')
        e.label('L_smdone')
        I('s_mov_b64 exec, -1')
    for x in g0: I(x)
    small_dma()
    b1_at = opts.get('b1_at', 3)
    for u in range(7):
        if u == 6:
            I(f's_cmp_ge_u32 s{sK}, 2'); I('s_cbranch_scc1 L_w0done')
        if u == b1_at:
            I(f's_waitcnt vmcnt({0 if opts.get("safe_b1") else 2*u})')
            I('s_barrier')
            ST(e, 'b1')
        I(f's_add_u32 s{sT1}, s{sT0}, {u*1352}')
        for R in range(2):
            I(f'buffer_load_dwordx4 {vr(FF+8*u+4*R,4)}, v{vFO+R}, {srd(S_CIN)}, s{sT1} offen')
    e.label('L_w0done')
    mk_srd(e, S_TAB, 6, 3200000)
    I(f'v_and_b32 v{a}, 1, v{vL}')
    I(f'v_lshlrev_b32 v{a}, 4, v{a}')
    for bb in range(4):
        I(f'v_lshl_add_u32 v{vIDX+bb}, v{vIDX+bb}, 5, v{a}')
    I(f's_mul_i32 s{sT0}, s{sK}, {4*XS}')
    I(f's_mov_b64 exec, {sp(sE52)}')
    for bb in range(4):
        I(f's_add_u32 m0, s{sT0}, {XB + bb*XS}')
        I('s_nop 0')
        I(f'buffer_load_dwordx4 v{vIDX+bb}, {srd(S_TAB)}, 0 offen lds')
    I('s_mov_b64 exec, -1')
    ST(e, 'pre1')
    F.drain(e)
    prev = None
    for u in range(7):
        if u == 6:
            I(f's_cmp_ge_u32 s{sK}, 2'); I('s_cbranch_scc1 L_plast')
        n = 2 * (5 - u) + 4 if u <= 5 else 4
        I(f's_waitcnt vmcnt({0 if opts.get("safe_p") else n})')
        f = FF + 8 * u
        unit(e, f, f + 4, EF, EF + 4, DD[u & 1], None if prev is None else (DD[prev & 1], prev, FR_P))
        prev = u
    unit_store(e, DD[6 & 1], 6, FR_P)
    I('s_branch L_pend')
    e.label('L_plast')
    unit_store(e, DD[5 & 1], 5, FR_P)
    e.label('L_pend')
    ST(e, 'units')
    I('s_waitcnt lgkmcnt(0)')
    ST(e, 'fold')
    I('s_barrier')
    ST(e, 'b2')
    e.ds_q = []
    if debug == 'fold':
        I('s_branch L_dbg')
    else:
        acc_init_cin(e)
        main_cin(e, debug, opts)
        I('s_branch L_join')

    e.last = {}; e.ds_q = []
    e.label('L_Upath')
    I(f's_lshl_b32 s{sT2}, s{sK}, 3')
    I(f's_add_u32 s{sT2}, s{sT2}, 52')
    I(f's_add_u32 s{sT3}, s{sT2}, 32')
    I(f's_load_dwordx16 s[{SA}:{SA+15}], s[10:11], 104')
    I(f's_load_dwordx2 s[60:61], s[10:11], s{sT2}')
    I(f's_load_dwordx2 s[62:63], s[10:11], s{sT3}')
    for j in range(2):
        I(f'v_lshl_add_u32 v{fa}, v{vG}, 2, v{vR4}')
        if j:
            I(f'v_add_u32 v{fa}, 16, v{fa}'); I(f'v_min_u32 v{fa}, 25, v{fa}')
        I(f'v_and_b32 v{fb}, 7, v{fa}'); I(f'v_lshlrev_b32 v{fb}, 5, v{fb}'); I(f'v_lshl_add_u32 v{fb}, v{fa}, 9, v{fb}')
        I(f'v_lshl_add_u32 v{fb}, v{vC4}, 3, v{fb}'); I(f'v_add_u32 v{TAD+8*j}, s{sStage}, v{fb}')
        for x in range(1, 8):
            I(f'v_xor_b32 v{TAD+8*j+x}, {x*32}, v{TAD+8*j}')
    for u in range(4, 8):
        for R in range(2): I(f'v_mov_b32 v{UD+8*u+4*R}, 0')
    for dw in range(4): I(f'v_mov_b32 v{SELA+dw}, 0')
    for x in f_common_a(): I(x)
    I(f'v_lshlrev_b32 v{a}, 4, v{vL}')
    I(f'v_add_u32 v{a}, {HB}, v{a}')
    I(f'v_cmp_gt_u32 {sp(sMN10)}, 10, v{vN}')
    I(f's_lshl_b32 s{sF0}, s{sK}, 2')
    I(f's_lshl_b32 s{sF1}, 1, s{sF0}')
    I(f's_lshl_b32 s{sF2}, s{sF1}, 16')
    I('s_waitcnt lgkmcnt(0)')
    for q in (13, 14, 15): I(f's_mov_b32 s{SA+q}, 0')
    for g in range(4):
        if g < 2:
            I(f's_mov_b32 exec_lo, s{sF1 if g == 0 else sF2}'); I('s_mov_b32 exec_hi, 0') if g == 0 else None
        else:
            I('s_mov_b32 exec_lo, 0') if g == 2 else None
            I(f's_mov_b32 exec_hi, s{sF1 if g == 2 else sF2}')
        for dw, src in enumerate((2*g, 2*g+1, 8+2*g, 9+2*g)):
            I(f'v_mov_b32 v{SELA+dw}, s{SA+src}')
    I('s_mov_b64 exec, -1')
    I(f's_cmp_le_u32 s{sK}, 2'); I('s_cselect_b32 s62, s62, 0'); I(f's_cmp_le_u32 s{sK}, 1'); I('s_cselect_b32 s63, s63, 0')
    for q in range(4):
        I(f's_lshl_b32 s{SA+2*q}, s{60+q}, 16'); I(f's_and_b32 s{SA+2*q+1}, s{60+q}, 0xffff0000')
    I('s_waitcnt vmcnt(0)')
    ST(e, 'pre1')
    def frag_reads(u, nbuf=4, off=0):
        buf = UB + 8 * (u % nbuf)
        ids = []
        for R in range(2):
            pg = 2 * u + R
            for j in range(2):
                ids.append(I(f'ds_read_b64_tr_b16 {vr(buf+4*R+2*j,2)}, v{TAD+8*j+(pg&7)} offset:{off + (pg>>3)*256}'))
        return ids
    pend = {u: frag_reads(u) for u in range(3)}
    for u in range(8):
        if u == 4:
            I(f's_cmp_eq_u32 s{sK}, 3'); I('s_cbranch_scc1 L_u2done')
        if u == 6:
            I(f's_cmp_eq_u32 s{sK}, 2'); I('s_cbranch_scc1 L_u2done')
        if u + 3 < 8:
            pend[u + 3] = frag_reads(u + 3)
        e.wait_ds(pend[u][-1])
        buf = UB + 8 * (u % 4)
        for R in range(2):
            I(f'v_mfma_f32_16x16x32_bf16 {vr(UD+8*u+4*R,4)}, {vr(SELA,4)}, {vr(buf+4*R,4)}, 0')
    e.label('L_u2done')
    I(f's_mov_b32 s{sX0}, 0xffff')
    I(f's_mov_b32 s{sX0+1}, 0')
    I(f's_lshl_b32 s{sT0}, s{sK}, 4')
    for u in range(4):
        I(f'v_cvt_pk_bf16_f32 v{HF+u}, v{UD+16*u}, v{UD+16*u+8}')
    for u in range(8):
        I(f'v_cndmask_b32 v{UD+8*u+4}, 0, v{UD+8*u+4}, {sp(sMN10)}')
    I('s_mov_b32 exec_lo, 0x04000400'); I('s_mov_b32 exec_hi, 0x04000400')
    for u in range(8):
        I(f'v_mov_b32 v{UD+8*u+4}, s{SA+u}')
    I('s_mov_b64 exec, -1')
    for u in range(4):
        I(f'v_cvt_pk_bf16_f32 v{HF+4+u}, v{UD+16*u+4}, v{UD+16*u+12}')
    I(f's_lshl_b64 exec, {sp(sX0)}, s{sT0}')
    I(f'ds_write_b128 v{a}, {vr(HF,4)}')
    I(f'ds_write_b128 v{a}, {vr(HF+4,4)} offset:1024')
    I('s_mov_b64 exec, -1')
    I('s_waitcnt lgkmcnt(0)')
    I('s_barrier')
    ST(e, 'b1')
    I(f'ds_read_b128 {vr(HF,4)}, v{a} offset:0')
    I(f'ds_read_b128 {vr(HF+4,4)}, v{a} offset:1024')
    pend = {u: frag_reads(u, off=WS1 - WS2) for u in range(3)}
    prev = None
    for u in range(7):
        if u == 6:
            I(f's_cmp_ge_u32 s{sK}, 2'); I('s_cbranch_scc1 L_tlast')
        if u + 3 < 7:
            pend[u + 3] = frag_reads(u + 3, off=WS1 - WS2)
        e.wait_ds(pend[u][-1])
        g = UB + 8 * (u % 4)
        for dw in range(4):
            I(f'v_cndmask_b32 v{g+4+dw}, 0, v{g+4+dw}, {sp(sMN10)}')
        unit(e, g, g + 4, HF, HF + 4, DD[u & 1], None if prev is None else (DD[prev & 1], prev, FR_Q))
        prev = u
    unit_store(e, DD[6 & 1], 6, FR_Q)
    I('s_branch L_tend')
    e.label('L_tlast')
    unit_store(e, DD[5 & 1], 5, FR_Q)
    e.label('L_tend')
    ST(e, 'units')
    I('s_waitcnt lgkmcnt(0)')
    e.ds_q = []
    for x in f_setup_dnn(): I(x)
    dma_step(e, 0, 'U0')
    I(f'v_mov_b32 v{vXCA}, {XCNT}')
    I(f'v_mov_b32 v{vONE}, 1')
    acc_init_dnn(e)
    I('s_waitcnt lgkmcnt(0)')
    ST(e, 'fold')
    I('s_barrier')
    ST(e, 'b2')
    e.ds_q = []
    if debug == 'fold':
        e.label('L_dbg')
        I('s_waitcnt vmcnt(0)'); I('s_barrier')
        dump_lds(e)
        return finish(e, opts)
    main_dnn(e, debug, opts)
    final(e, debug, opts)
    return finish(e, opts)

def dma_step(e, step, tag):
    I = e.I
    slot = step % 4
    I(f's_mov_b32 s{sT3}, {step*26624}')
    for u in range(7):
        if u == 6:
            I(f's_cmp_ge_u32 s{sK}, 2'); I(f's_cbranch_scc1 L_dma_{tag}')
        I(f's_add_u32 m0, s{sDma}, {slot*SLOT + u*1024}')
        I('s_nop 0')
        I(f'buffer_load_dwordx4 v{vDMA+u}, {srd(S_W1)}, s{sT3} offen lds')
    e.label(f'L_dma_{tag}')

def unit(e, X0, X1, Y0, Y1, D, prev):
    I = e.I
    mf = []
    def m(dd, A, B, first):
        mf.append(f'v_mfma_f32_16x16x32_bf16 {vr(dd,4)}, {vr(A,4)}, {vr(B,4)}, ' + ('0' if first else vr(dd, 4)))
    m(D, X0, Y0, True); m(D + 4, X1, Y0, True); m(D + 8, X1, Y1, True)
    m(D, Y0, X0, False); m(D + 4, Y1, X0, False); m(D + 8, Y1, X1, False)
    fill = []
    if prev is not None:
        PD, pu, setbase = prev
        for ti in range(3):
            fill.append(f'v_cvt_pk_bf16_f32 v{DC+2*ti}, v{PD+4*ti}, v{PD+4*ti+1}')
            fill.append(f'v_cvt_pk_bf16_f32 v{DC+2*ti+1}, v{PD+4*ti+2}, v{PD+4*ti+3}')
        for ti in range(3):
            fill.append(f'ds_write_b32 v{vWA+ti}, v{DC+2*ti} offset:{setbase + pu*16}')
            fill.append(f'ds_write_b32 v{vWB+ti}, v{DC+2*ti+1} offset:{setbase + pu*16}')
    for i in range(6):
        I(mf[i])
        for f in fill[2*i:2*i+2]:
            I(f)

def unit_store(e, D, u, setbase):
    I = e.I
    for ti in range(3):
        I(f'v_cvt_pk_bf16_f32 v{DC+2*ti}, v{D+4*ti}, v{D+4*ti+1}')
        I(f'v_cvt_pk_bf16_f32 v{DC+2*ti+1}, v{D+4*ti+2}, v{D+4*ti+3}')
    for ti in range(3):
        I(f'ds_write_b32 v{vWA+ti}, v{DC+2*ti} offset:{setbase + u*16}')
        I(f'ds_write_b32 v{vWB+ti}, v{DC+2*ti+1} offset:{setbase + u*16}')

def dump_lds(e):
    I = e.I
    I('v_mbcnt_lo_u32_b32 v1, -1, 0'); I('v_mbcnt_hi_u32_b32 v1, -1, v1')
    I(f's_lshl_b32 s{sT0}, s{sW}, 10')
    I('v_lshlrev_b32 v1, 4, v1')
    I(f'v_add_u32 v1, s{sT0}, v1')
    I(f's_mul_i32 s{sT1}, s2, {LDS_TOTAL}')
    I(f'v_add_u32 v2, s{sT1}, v1')
    I(f's_mov_b32 s{sT2}, 0')
    e.label('L_dump')
    I('ds_read_b128 v[4:7], v1')
    I('s_waitcnt lgkmcnt(0)')
    I('global_store_dwordx4 v2, v[4:7], s[22:23]')
    I('s_waitcnt vmcnt(0)')
    I('v_add_u32 v1, 8192, v1'); I('v_add_u32 v2, 8192, v2')
    I(f's_add_u32 s{sT2}, s{sT2}, 1')
    I(f's_cmp_lt_u32 s{sT2}, 20')
    e.raw('    s_cbranch_scc1 L_dump')

def main_cin(e, debug, opts):
    I = e.I
    steps = step_list()
    hs = opts.get('hsched', [3, 5, 5, 5, 5, 5, 5, 5, 5, 5, 5, 3, 0])
    assert sum(hs) == 56 and len(hs) == 13
    halves = [(s_, X_) for s_ in range(28) for X_ in range(2)]
    sc = []; si = 0
    for n in hs:
        sc.append(halves[si:si + n]); si += n
    XR = [XA, XBB]; ZZ = [ZA, ZBB]
    af_ids = {}
    def af_read(s):
        buf = AF[s & 1]
        I(f'ds_read_b128 {vr(buf,4)}, v{vAF} offset:{FR_P + s*FST}')
        af_ids[s] = I(f'ds_read_b128 {vr(buf+4,4)}, v{vAF} offset:{FR_Q + s*FST}')
    def z_half(X, s, pi):
        aa, bb = steps[s]
        mod = ' div:2' if aa == bb else ''
        t = ZT + 4 * pi
        x = XR[X]
        for qi in range(4):
            if mod: I(f'v_mul_f32_e64 v{t+qi}, v{x+4*aa+pi}, v{x+4*bb+qi}{mod}')
            else: I(f'v_mul_f32 v{t+qi}, v{x+4*aa+pi}, v{x+4*bb+qi}')
        z = ZZ[X][s & 1]
        I(f'v_cvt_pk_bf16_f32 v{z+2*pi}, v{t}, v{t+1}')
        I(f'v_cvt_pk_bf16_f32 v{z+2*pi+1}, v{t+2}, v{t+3}')
    def epilogue():
        t = TMP
        for X in range(2):
            P, Q = ACC[('P', X)], ACC[('Q', X)]
            t = TMP + 4 * X
            I(f'v_mul_f32 v{t}, v{P}, v{Q}')
            I(f'v_mul_f32 v{t+1}, v{P+12}, v{Q+12}')
            I(f'v_mul_f32 v{t+2}, v{P+1}, v{Q+1}')
            I(f'v_fmac_f32 v{t+1}, v{P+13}, v{Q+13}')
            for r in range(2, 12):
                I(f'v_fmac_f32 v{t + 2*(r&1)}, v{P+r}, v{Q+r}')
        I(f'v_cmp_gt_u32 vcc, 32, v{vL}')
        for X in range(2):
            t = TMP + 4 * X
            I(f'v_add_f32 v{t}, v{t}, v{t+2}')
        for X in range(2):
            t = TMP + 4 * X
            I(f'v_cndmask_b32 v{t+1}, 0, v{t+1}, vcc')
        for X in range(2):
            t = TMP + 4 * X
            I(f'v_add_f32 v{t}, v{t}, v{t+1}')
        t = TMP
        I(f'v_and_b32 v{t+2}, 1, v{vG}')
        I(f'v_lshlrev_b32 v{t+2}, 6, v{t+2}')
        I(f'v_lshrrev_b32 v{t+3}, 1, v{vG}')
        I(f'v_lshl_add_u32 v{t+2}, v{t+3}, 2, v{t+2}')
        I(f's_lshl_b32 s{sT0}, s{sK}, 8')
        I(f's_add_u32 s{sT0}, s{sT0}, {RED + 16}')
        I(f'v_add_u32 v{t+2}, s{sT0}, v{t+2}')
        for sh in (8, 4, 2, 1):
            for X in range(2):
                tt = TMP + 4 * X
                I(f'v_add_f32_dpp v{tt}, v{tt}, v{tt} row_ror:{sh} row_mask:0xf bank_mask:0xf')
        I(f's_mov_b32 exec_lo, 0x00010001'); I(f's_mov_b32 exec_hi, 0x00010001')
        I(f'ds_write_b32 v{t+2}, v{TMP}')
        I(f'ds_write_b32 v{t+2}, v{TMP+4} offset:128')
        I('s_mov_b64 exec, -1')
    for j in range(13):
        e.comment(f'---- CIN interval {j}')
        if j == 0:
            I('s_waitcnt vmcnt(0)')
            I('s_barrier')
        ST(e, f'it{j}')
        if j == 0:
            xa = [I(f'ds_read_b64_tr_b16 {vr(XPA+2*q,2)}, v{vTRX} offset:{128*q}') for q in range(7)]
            xb = [I(f'ds_read_b64_tr_b16 {vr(XPB+2*q,2)}, v{vTRX} offset:{2*XS + 128*q}') for q in range(7)]
            I(f'v_mov_b32 v{TMP}, {XCNT}'); I(f'v_mov_b32 v{TMP+1}, 1')
            I('s_waitcnt lgkmcnt(0)')
            I('s_mov_b64 exec, 1')
            I(f'ds_add_u32 v{TMP}, v{TMP+1}')
            I('s_mov_b64 exec, -1')
            if opts.get('safe_x'): I('s_barrier')
            af_read(0); af_read(1)
            for q in range(7):
                for h in range(2):
                    I(f'v_lshlrev_b32 v{XA+4*q+2*h}, 16, v{XPA+2*q+h}')
                    I(f'v_and_b32 v{XA+4*q+2*h+1}, 0xffff0000, v{XPA+2*q+h}')
            z_half(0, 0, 0); z_half(0, 0, 1)
            for q in range(7):
                for h in range(2):
                    I(f'v_lshlrev_b32 v{XBB+4*q+2*h}, 16, v{XPB+2*q+h}')
                    I(f'v_and_b32 v{XBB+4*q+2*h+1}, 0xffff0000, v{XPB+2*q+h}')
            z_half(1, 0, 0); z_half(1, 0, 1)
        for (s, X) in ([] if opts.get('no_cin') else sc[j]):
            if X == 0: e.wait_ds(af_ids[s])
            buf = AF[s & 1]
            z = ZZ[X][s & 1]
            P, Q = ACC[('P', X)], ACC[('Q', X)]
            I(f'v_mfma_f32_32x32x16_bf16 {vr(P,16)}, {vr(buf,4)}, {vr(z,4)}, ' + ('0' if s == 0 else vr(P,16)))
            if s + 1 < 28: z_half(X, s + 1, 0)
            I(f'v_mfma_f32_32x32x16_bf16 {vr(Q,16)}, {vr(buf+4,4)}, {vr(z,4)}, ' + (vr(QI,16) if s == 0 else vr(Q,16)))
            if X == 1 and s + 2 < 28: af_read(s + 2)
            if s + 1 < 28: z_half(X, s + 1, 1)
        if (not sc[j]) and j > 0 and sc[j-1]:
            epilogue()
    if sc[12]:
        epilogue()
    I('s_waitcnt lgkmcnt(0)')
    ST(e, 'gelu')

def main_dnn(e, debug, opts):
    I = e.I
    e.last = {}
    I(f's_cmp_ge_u32 s{sK}, 2')
    I('s_cselect_b64 vcc, -1, 0')
    dma_step(e, 1, 'C1')
    dma_step(e, 2, 'C2')
    def dma_one(step, u, tag, between=None):
        if u == 6: I(f's_cbranch_vccnz L_d6_{tag}')
        I(f's_add_u32 m0, s{sDma}, {(step % 4)*SLOT + u*1024}')
        if between: between()
        else: I('s_nop 0')
        I(f'buffer_load_dwordx4 v{vDMA+u}, {srd(S_W1)}, s{sT3} offen lds')
        if u == 6: e.label(f'L_d6_{tag}')
    def mf(j, u):
        I(f'v_mfma_f32_16x16x32_bf16 {vr(DACC+4*u,4)}, {vr(XF+4*j,4)}, {vr(WF[j&1]+4*u,4)}, {vr(DACC+4*u,4)}')
    plan = {j: [] for j in range(13)}
    plan[1] = [3, 4]
    for j in range(2, 10): plan[j] = [j + 3]
    order = [(st_, u) for st_ in range(3) for u in range(7)]
    tops = {}
    for j in range(13):
        tops[j] = list(order)
        order += [(st_, u) for st_ in plan[j] for u in range(7)]
    def later_count(j, cls7):
        seq = [x for x in tops[j] if cls7 or x[1] < 6]
        last = max(i for i, x in enumerate(seq) if x[0] == j)
        return len(seq) - 1 - last
    for j in range(13):
        e.comment(f'---- DNN interval {j}')
        n7, n6 = later_count(j, True), later_count(j, False)
        if opts.get('safe_dv'): n7 = n6 = 0
        if n7 != n6:
            I(f's_cbranch_vccnz L_vw6_{j}')
            I(f's_waitcnt vmcnt({n7})')
            I(f's_branch L_vwd_{j}')
            e.label(f'L_vw6_{j}')
            I(f's_waitcnt vmcnt({n6})')
            e.label(f'L_vwd_{j}')
        else:
            I(f's_waitcnt vmcnt({n7})')
        if j == 0:
            I('s_waitcnt lgkmcnt(0)')
            I('s_barrier')
        ST(e, f'it{j}')
        if j == 0:
            for q in range(13):
                I(f'ds_read_b64 {vr(XF+4*q,2)}, v{vXF} offset:{64*q}')
                I(f'ds_read_b64 {vr(XF+4*q+2,2)}, v{vXF} offset:{64*q+16}')
            I('s_waitcnt lgkmcnt(0)')
            I('s_mov_b64 exec, 1')
            I(f'ds_add_u32 v{vXCA}, v{vONE}')
            I('s_mov_b64 exec, -1')
            if opts.get('safe_x'): I('s_barrier')
        slot = j % 4
        tb = vT + 4 * (slot >> 1)
        for u in range(7):
            if u == 6: I(f's_cbranch_vccnz L_r6_{j}')
            for jj in range(2):
                I(f'ds_read_b64_tr_b16 {vr(WF[j&1]+4*u+2*jj,2)}, v{tb+2*jj+(u&1)} offset:{(slot&1)*SLOT + (u>>1)*64}')
        e.label(f'L_r6_{j}')
        if j == 1:
            e.label('L_xspin')
            I(f'ds_read_b32 v{vXCT}, v{vXCA}')
            I('s_waitcnt lgkmcnt(0)')
            I(f'v_readfirstlane_b32 s{sT0}, v{vXCT}')
            I(f's_cmp_ge_u32 s{sT0}, 8')
            e.raw('    s_cbranch_scc0 L_xspin')
        if j >= 1:
            if j > 1: I('s_waitcnt lgkmcnt(0)' if opts.get('safe_dl') else 's_waitcnt lgkmcnt(12)')
            steps_ = [] if opts.get('no_dma') else plan[j]
            first = steps_[0] if steps_ else None
            if first is not None: I(f's_mov_b32 s{sT3}, {first*26624}')
            for u in range(7):
                if u == 6:
                    I(f's_cbranch_vccnz L_m6_{j}')
                    if first is not None:
                        I(f's_add_u32 m0, s{sDma}, {(first % 4)*SLOT + u*1024}'); mf(j - 1, u)
                        I(f'buffer_load_dwordx4 v{vDMA+u}, {srd(S_W1)}, s{sT3} offen lds')
                    else: mf(j - 1, u)
                    e.label(f'L_m6_{j}')
                elif first is not None:
                    dma_one(first, u, f'{j}', between=lambda: mf(j - 1, u))
                else:
                    mf(j - 1, u)
            for st_ in steps_[1:]:
                I(f's_mov_b32 s{sT3}, {st_*26624}')
                for u in range(7): dma_one(st_, u, f'{j}_{st_}')
    I('s_waitcnt lgkmcnt(0)')
    for u in range(7):
        if u == 6: I('s_cbranch_vccnz L_m6_end')
        mf(12, u)
    e.label('L_m6_end')
    ST(e, 'gelu')
    G = TMP
    T = TMP + 4
    C1, C0, ONE = CST, CST + 2, CST + 4
    def gelu(pairs, first):
        def each(fn):
            for k_, (x, u, h) in enumerate(pairs):
                fn(x, T + 2 * k_, u, h, k_)
        each(lambda x, t, u, h, k_: I(f'v_pk_mul_f32 {vr(t,2)}, {vr(x,2)}, {vr(x,2)}'))
        each(lambda x, t, u, h, k_: I(f'v_pk_fma_f32 {vr(t,2)}, {vr(t,2)}, {vr(C1,2)}, {vr(C0,2)}'))
        each(lambda x, t, u, h, k_: I(f'v_pk_mul_f32 {vr(t,2)}, {vr(t,2)}, {vr(x,2)}'))
        each(lambda x, t, u, h, k_: (I(f'v_exp_f32 v{t}, v{t}'), I(f'v_exp_f32 v{t+1}, v{t+1}')))
        each(lambda x, t, u, h, k_: I(f'v_pk_mul_f32 {vr(x,2)}, {vr(x,2)}, {vr(W2V + (u & ~1), 2)} op_sel:[0,{u&1}] op_sel_hi:[1,{u&1}]'))
        each(lambda x, t, u, h, k_: I(f'v_pk_add_f32 {vr(t,2)}, {vr(t,2)}, {vr(ONE,2)}'))
        each(lambda x, t, u, h, k_: (I(f'v_rcp_f32 v{t}, v{t}'), I(f'v_rcp_f32 v{t+1}, v{t+1}')))
        def last(x, t, u, h, k_):
            if first and k_ < 2: I(f'v_pk_mul_f32 {vr(G+2*h,2)}, {vr(t,2)}, {vr(x,2)}')
            else: I(f'v_pk_fma_f32 {vr(G+2*h,2)}, {vr(t,2)}, {vr(x,2)}, {vr(G+2*h,2)}')
        each(last)
    allp = [(DACC + 4*u + 2*h, u, h) for u in range(6) for h in range(2)]
    gelu(allp[0:4], True); gelu(allp[4:8], False); gelu(allp[8:12], False)
    I(f's_cmp_ge_u32 s{sK}, 2'); I(f's_cbranch_scc1 L_g6')
    gelu([(DACC + 24 + 2*h, 6, h) for h in range(2)], False)
    e.label('L_g6')
    I(f'v_lshlrev_b32 v{T}, 8, v{vG}')
    I(f's_lshl_b32 s{sT0}, s{sK}, 2')
    I(f's_add_u32 s{sT0}, s{sT0}, {RED}')
    I(f'v_add_u32 v{T}, s{sT0}, v{T}')
    for sh in (8, 4, 2, 1):
        for r in range(4):
            I(f'v_add_f32_dpp v{G+r}, v{G+r}, v{G+r} row_ror:{sh} row_mask:0xf bank_mask:0xf')
    I(f's_mov_b32 exec_lo, 0x00010001'); I(f's_mov_b32 exec_hi, 0x00010001')
    for r in range(4):
        I(f'ds_write_b32 v{T}, v{G+r} offset:{64*r}')
    I('s_mov_b64 exec, -1')
    I('s_waitcnt lgkmcnt(0)')

def final(e, debug, opts):
    I = e.I
    T = TMP + 4
    e.label('L_join')
    e.last = {}
    I('s_barrier')
    if debug == 'red':
        dump_lds(e); return
    if debug == 'stamp':
        ST(e, 'fin')
        ST.flush(e)
        open('stamp_names.txt', 'w').write(' '.join(ST.names))
        return
    if debug == 'hstamp':
        ST(e, 'fin')
        sel = opts.get('hsel', ['b0', 'pre1', 'b1', 'units', 'b2', 'it0', 'it12', 'fin'])
        I(f's_cmp_eq_u32 s2, {opts.get("hwg", 128)}'); I('s_cbranch_scc0 L_nohs')
        I(f's_and_b32 s{sT0}, s{sW}, 3'); I(f's_cmp_eq_u32 s{sT0}, 0'); I('s_cbranch_scc0 L_nohs')
        I('s_waitcnt lgkmcnt(0)')
        r0 = STAMP_SLOTS[0]
        for i, nm in enumerate(sel):
            r = STAMP_SLOTS[ST.names.index(nm)]
            I(f's_sub_u32 s{sT1}, s{r}, s{r0}')
            I(f'v_writelane_b32 v200, s{sT1}, {i}')
        I(f's_lshl_b32 s{sT0}, s{sW}, 3')
        I(f'v_lshlrev_b32 v201, 2, v{vL}')
        I(f'v_add_u32 v201, s{sT0}, v201')
        I('s_mov_b32 exec_lo, 0xff'); I('s_mov_b32 exec_hi, 0')
        I('global_store_dword v201, v200, s[22:23]')
        I('s_mov_b64 exec, -1')
        I('s_waitcnt vmcnt(0)')
        e.label('L_nohs')
    I(f's_cmp_lg_u32 s{sW}, 0'); I('s_cbranch_scc1 L_end')
    I('s_mov_b32 exec_lo, 0xffff'); I('s_mov_b32 exec_hi, 0')
    I(f'v_lshlrev_b32 v{T}, 6, v{vL}')
    I(f'v_add_u32 v{T}, {RED}, v{T}')
    I(f'ds_read_b128 {vr(8,4)}, v{T}')
    I(f'ds_read_b64 {vr(12,2)}, v{T} offset:16')
    if debug == 'redout':
        I('s_waitcnt lgkmcnt(0)')
        I(f's_lshl_b32 s{sT0}, s2, 9')
        I(f'v_lshlrev_b32 v20, 5, v{vL}')
        I(f'v_add_u32 v20, s{sT0}, v20')
        I('global_store_dwordx4 v20, v[8:11], s[22:23]')
        I('global_store_dwordx2 v20, v[12:13], s[22:23] offset:16')
        I('s_waitcnt vmcnt(0)')
    I(f's_mov_b32 s{S_OUT}, s20'); I(f's_mov_b32 s{S_OUT+1}, s21')
    I(f's_mov_b32 s{S_OUT+2}, 8192'); I(f's_mov_b32 s{S_OUT+3}, 0x20000')
    I(f's_lshl_b32 s{sBO}, s{sBO}, 16')
    I(f's_lshl_b32 s{sT0}, s2, 5')
    I(f'v_lshlrev_b32 v{T+1}, 1, v{vL}')
    I(f'v_add_u32 v{T+1}, s{sT0}, v{T+1}')
    I('s_waitcnt lgkmcnt(0)')
    I('v_add_f32 v8, v8, v9'); I('v_add_f32 v10, v10, v11'); I('v_add_f32 v12, v12, v13')
    I('v_add_f32 v8, v8, v10')
    I(f'v_add_f32 v12, s{sBO}, v12')
    I('v_add_f32 v8, v8, v12')
    I('v_cvt_pk_bf16_f32 v8, v8, v8')
    I(f'buffer_store_short v8, v{T+1}, {srd(S_OUT)}, 0 offen')
    I('s_waitcnt vmcnt(0)')

def finish(e, opts):
    e.label('L_end')
    body = e.text()
    hdr = f"""; xDeepFM (CIN + DNN) fused kernel, generated by my own generator script.
; One workgroup = 16 batch rows, 8 waves.  CIN layers are folded at run time into two quadratic forms.
; @launch grid=(256,1,1) block=(512,1,1) lds={LDS_TOTAL}
.amdgcn_target "amdgcn-amd-amdhsa--gfx950"
.text
.globl {KN}
.p2align 8
.type {KN},@function
{KN}:
"""
    ftr = f"""    s_endpgm
.section .rodata,"a"
.p2align 6
.amdhsa_kernel {KN}
  .amdhsa_next_free_vgpr 256
  .amdhsa_next_free_sgpr 102
  .amdhsa_accum_offset 256
  .amdhsa_group_segment_fixed_size 0
  .amdhsa_kernarg_size 88
  .amdhsa_user_sgpr_count 2
  .amdhsa_user_sgpr_kernarg_segment_ptr 1
  .amdhsa_system_sgpr_workgroup_id_x 1
  .amdhsa_ieee_mode 0
.end_amdhsa_kernel
"""
    return hdr + body + ftr

if __name__ == '__main__':
    dbg = sys.argv[2] if len(sys.argv) > 2 and sys.argv[2] != 'none' else None
    opts = eval(sys.argv[3]) if len(sys.argv) > 3 else {}
    out = build(dbg, opts)
    open(sys.argv[1], 'w').write(out)
    print('wrote', sys.argv[1], len(out), 'bytes')
```

```python
import sys, os
from emit import Emit

KN = "standalone__deep_cross_xdeepfm__recsys_kernel"

FST = 848; FR_P = 0; FR_Q = 28 * FST
RB = 47616; SLOT = 26624; WROW = 832
WS2 = RB + SLOT - 4 * 13312
WS1 = RB + SLOT
STG = 13312
XB = RB + 3 * SLOT; XS = 912
HB = RB + 4 * SLOT
SM = HB + 2048; SM_A0 = SM; SM_B1 = SM + 64; SM_W2 = SM + 896
RED = SM + 1728
XCNT = RED + 1024
LDS_TOTAL = 163840
OOB_LDS = 0x40000
CIN_L = 35152
assert WS1 % 512 == 0 and 28 * FST * 2 <= RB and RED + 1024 <= LDS_TOTAL and WS2 % 512 == 0 and WS2 >= 0

S_IDX, S_TAB, S_CIN, S_W1 = 24, 28, 32, 36
S_A0, S_B1, S_W2, S_OUT = 40, 52, 56, 60
sA2 = 96
sW, sK = 64, 65
sBO = 66
sI0 = 67
sT0, sT1, sT2, sT3 = 68, 69, 70, 71
sMN10 = 78
sE52 = 80
sStage, sSrc = 82, 83
sC0, sC1, sC2 = 84, 85, 86
sX0 = 88
sF0, sF1, sF2 = 84, 85, 86
sDma = 92
sSL = 93
SA = 44
def srd(n): return f"s[{n}:{n+3}]"
def sp(n): return f"s[{n}:{n+1}]"
def vr(a, n=1): return f"v{a}" if n == 1 else f"v[{a}:{a+n-1}]"

vL = 0
TMP = 122
fa, fb, fc, fd, fe = 132, 133, 134, 135, 136
vN, vG, vR4, vC4 = 142, 143, 144, 145
vWA = 146
vWB = 149
DD = [152, 164]
DC = 176
vSO = 182
vDUM = 186
UD = 2; SELA = 66; HF = 102
TAD = 188
UB = 70
FF = 2; EF = 60; vIDX = 68; vFO = 72
XA = 2; XBB = 30
ZA = [58, 62]; ZBB = [66, 70]
ZT = 74
AF = [82, 90]
vAF = 100; vTRX = 101
XPA = 104; XPB = 152
QI = 166
ACC = {('P', 0): 192, ('Q', 0): 208, ('P', 1): 224, ('Q', 1): 240}
vDMA = 100
vT = 108
vXF = 116
WF = [2, 30]
XF = 152
DACC = 208
W2V = 236
CST = 244
vXCA = 118; vONE = 119; vXCT = 120

STAMP_SLOTS = [94, 96, 98, 100, 90, 40, 42] + list(range(44, 60, 2)) + [24, 26, 28, 30, 4, 6, 8, 10, 14, 16]
class Stamps:
    def __init__(self, on): self.on = on; self.names = []
    def __call__(self, e, name):
        if not self.on: return
        if name in self.names: i = self.names.index(name)
        else:
            i = len(self.names); self.names.append(name)
        r = STAMP_SLOTS[i]
        e.I(f's_memtime s[{r}:{r+1}]')
    def flush(self, e):
        if not self.on: return
        I = e.I
        I('s_mov_b64 exec, -1')
        I('s_waitcnt vmcnt(0) lgkmcnt(0)')
        for i in range(len(self.names)):
            I(f'v_writelane_b32 v200, s{STAMP_SLOTS[i]}, {i}')
        I('s_memrealtime s[68:69]')
        I('s_waitcnt lgkmcnt(0)')
        I('v_writelane_b32 v200, s68, 31')
        I('v_mbcnt_lo_u32_b32 v201, -1, 0'); I('v_mbcnt_hi_u32_b32 v201, -1, v201')
        I('v_lshlrev_b32 v201, 2, v201')
        I(f's_lshl_b32 s70, s2, 3'); I(f's_add_u32 s70, s70, s{sW}'); I('s_lshl_b32 s70, s70, 8')
        I('v_add_u32 v201, s70, v201')
        I('global_store_dword v201, v200, s[22:23]')
        I('s_waitcnt vmcnt(0)')
ST = Stamps(False)

def step_list():
    return [(a, b) for b in range(7) for a in range(b + 1)]

def mk_srd(e, n, lo, size, add=0):
    I = e.I
    if add:
        I(f's_add_u32 s{n}, s{lo}, {add}')
        I(f's_addc_u32 s{n+1}, s{lo+1}, 0')
    else:
        I(f's_mov_b32 s{n}, s{lo}')
        I(f's_mov_b32 s{n+1}, s{lo+1}')
    I(f's_mov_b32 s{n+2}, {size}')
    I(f's_mov_b32 s{n+3}, 0x20000')


class FQ:
    def __init__(self): self.q = []
    def add(self, *items): self.q.extend(items)
    def drain(self, e, n=10**9):
        k = 0
        while self.q and k < n:
            it = self.q.pop(0)
            if isinstance(it, list):
                for x in it: e.I(x)
                k += len(it)
            else:
                e.I(it); k += 1

def f_srd(n, lo, size):
    return [f's_mov_b32 s{n}, s{lo}', f's_mov_b32 s{n+1}, s{lo+1}', f's_mov_b32 s{n+2}, {size}', f's_mov_b32 s{n+3}, 0x20000']

def f_common_a():
    L = [f'v_bfe_u32 v{fa}, v{vN}, 1, 1', f'v_mul_u32_u24 v{fb}, 420, v{fa}', f'v_and_b32 v{fc}, 1, v{vN}',
         f'v_lshl_add_u32 v{fb}, v{fc}, 3, v{fb}', f's_lshl_b32 s{sF0}, s{sI0}, 4', f'v_lshrrev_b32 v{fc}, 2, v{vN}',
         f'v_add_u32 v{fa}, 1, v{vG}', f'v_mul_u32_u24 v{fa}, v{fa}, v{vG}', f'v_cmp_le_u32 s[72:73], v{fc}, v{vG}',
         f'v_lshrrev_b32 v{fa}, 1, v{fa}', f'v_cmp_ge_u32 s[74:75], 2, v{vG}', f'v_add_u32 v{fa}, v{fa}, v{fc}',
         f's_movk_i32 s{sF2}, {FST}', f'v_add_u32 v{fb}, s{sF0}, v{fb}', f'v_lshlrev_b32 v{fe}, 2, v{vL}',
         f'v_mad_u32_u24 v{fd}, v{fa}, s{sF2}, v{fb}', f's_and_b64 s[76:77], s[72:73], s[74:75]', f'v_add_u32 v{fe}, {OOB_LDS}, v{fe}',
         f's_movk_i32 s{sF1}, {4*FST}', f'v_cndmask_b32 v{vWA}, v{fe}, v{fd}, s[72:73]',
         f'v_mad_u32_u24 v{fd}, v{vG}, s{sF1}, v{fd}', f'v_xor_b32 v{vWB}, 4, v{vWA}', f'v_add_u32 v{fd}, {10*FST}, v{fd}',
         f'v_cndmask_b32 v{vWA+1}, v{fe}, v{fd}, s[74:75]', f'v_add_u32 v{fd}, {4*FST}, v{fd}', f'v_xor_b32 v{vWB+1}, 4, v{vWA+1}',
         f'v_cndmask_b32 v{vWA+2}, v{fe}, v{fd}, s[76:77]', f'v_xor_b32 v{vWB+2}, 4, v{vWA+2}']
    return L

def f_setup_cin():
    L = [f'v_and_b32 v{fa}, 31, v{vL}', f'v_lshlrev_b32 v{fa}, 4, v{fa}', f'v_lshrrev_b32 v{fb}, 5, v{vL}',
         f's_movk_i32 s{sF1}, 416', f'v_mad_u32_u24 v{vAF}, v{fb}, s{sF1}, v{fa}',
         f'v_lshrrev_b32 v{fb}, 1, v{vG}', f'v_and_b32 v{fc}, 1, v{vG}', f's_movk_i32 s{sF1}, {XS}',
         f'v_lshlrev_b32 v{fa}, 1, v{fb}', f'v_xor_b32 v{fa}, v{fa}, v{vR4}', f'v_lshlrev_b32 v{fa}, 5, v{fa}',
         f'v_lshl_add_u32 v{fa}, v{vC4}, 3, v{fa}', f'v_mad_u32_u24 v{fa}, v{fc}, s{sF1}, v{fa}',
         f's_mul_i32 s{sF0}, s{sK}, {4*XS}', f's_add_u32 s{sF0}, s{sF0}, {XB}', f'v_add_u32 v{vTRX}, s{sF0}, v{fa}']
    return L

def f_setup_dnn():
    sCPR, sMAG, sSWZ, sRS = 72, 73, 74, 75
    L = [f's_cmp_lt_u32 s{sK}, 2', f's_cselect_b32 s{sCPR}, 14, 12', f's_mov_b32 s{sF1}, 87382', f's_cselect_b32 s{sMAG}, 74899, s{sF1}',
         f's_cselect_b32 s{sSWZ}, 0, 2', f's_lshl_b32 s{sRS}, s{sCPR}, 4', f's_lshl_b32 s{sF0}, s{sI0}, 5', f's_movk_i32 s{sF2}, 832']
    L += [f's_sub_u32 s{sF2}, s{sF2}, s{sRS}']
    for u in range(7):
        L += [f'v_add_u32 v{fa}, {64*u}, v{vL}', f'v_mul_u32_u24 v{fc}, s{sMAG}, v{fa}', f'v_lshrrev_b32 v{fc}, 20, v{fc}',
              f'v_lshrrev_b32 v{fd}, 1, v{fc}', f'v_and_b32 v{fd}, s{sSWZ}, v{fd}', f'v_xor_b32 v{fa}, v{fa}, v{fd}',
              f'v_lshl_add_u32 v{fa}, v{fa}, 4, s{sF0}', f'v_mad_u32_u24 v{vDMA+u}, v{fc}, s{sF2}, v{fa}']
    L += [f's_lshl_b32 s{sDma}, s{sI0}, 10', f's_add_u32 s{sDma}, s{sDma}, {RB}']
    L += [f'v_lshrrev_b32 v{fb}, 1, v{vG}', f'v_and_b32 v{fc}, 1, v{vG}', f'v_lshlrev_b32 v{fa}, 4, v{fb}',
          f'v_lshl_add_u32 v{fa}, v{fc}, 2, v{fa}', f'v_add_u32 v{fa}, v{fa}, v{vR4}', f'v_mul_u32_u24 v{fa}, s{sRS}, v{fa}',
          f'v_lshl_add_u32 v{fa}, v{vC4}, 3, v{fa}', f'v_add_u32 v{fa}, s{sDma}, v{fa}',
          f's_lshl_b32 s{sF1}, s{sSWZ}, 4', f'v_lshlrev_b32 v{fd}, 5, v{fc}', f'v_and_b32 v{fd}, s{sF1}, v{fd}',
          f'v_add_u32 v{vT}, v{fa}, v{fd}', f'v_sub_u32 v{vT+1}, v{fa}, v{fd}', f'v_add_u32 v{vT+1}, 32, v{vT+1}',
          f's_lshl_b32 s{sF1}, s{sRS}, 3',
          f'v_add_u32 v{vT+2}, s{sF1}, v{vT}', f'v_add_u32 v{vT+3}, s{sF1}, v{vT+1}']
    L += [f'v_add_u32 v{vT+4+q}, {2*SLOT}, v{vT+q}' for q in range(4)]
    L += [f's_movk_i32 s{sF1}, {XS}', f'v_lshlrev_b32 v{fa}, 5, v{fb}', f'v_lshl_add_u32 v{fa}, v{fc}, 3, v{fa}',
          f'v_mad_u32_u24 v{fa}, v{vN}, s{sF1}, v{fa}', f'v_add_u32 v{vXF}, {XB}, v{fa}']
    return L

def acc_init_cin(e):
    I = e.I
    I(f'v_lshrrev_b32 v{fa}, 5, v{vL}')
    I(f'v_lshlrev_b32 v{fa}, 3, v{fa}')
    I(f'v_add_u32 v{fa}, {SM_A0}, v{fa}')
    ids = [I(f'ds_read_b64 {vr(XPA+2*g,2)}, v{fa} offset:{16*g}') for g in range(4)]
    e.wait_ds(ids[-1])
    for g in range(4):
        for q in range(2):
            I(f'v_lshlrev_b32 v{QI+4*g+2*q}, 16, v{XPA+2*g+q}')
            I(f'v_and_b32 v{QI+4*g+2*q+1}, 0xffff0000, v{XPA+2*g+q}')

def acc_init_dnn(e):
    I = e.I
    I(f's_lshl_b32 s{sF0}, s{sI0}, 5')
    I(f's_add_u32 s{sF0}, s{sF0}, {SM_B1}')
    I(f'v_lshlrev_b32 v{fb}, 1, v{vN}')
    I(f'v_add_u32 v{fb}, s{sF0}, v{fb}')
    B = 60
    for u in range(7):
        I(f'v_mov_b32 v{B+u}, 0')
        I(f'v_mov_b32 v{W2V+u}, 0')
    ids = []
    for u in range(7):
        ids.append(I(f'ds_read_u16_d16_hi v{B+u}, v{fb} offset:{32*u}'))
        ids.append(I(f'ds_read_u16_d16_hi v{W2V+u}, v{fb} offset:{832 + 32*u}'))
    for q, val in enumerate(('0xbdd2d3e8', '0xbdd2d3e8', '0xc0135761', '0xc0135761', '1.0', '1.0')):
        I(f'v_mov_b32 v{CST+q}, {val}')
    e.wait_ds(ids[-1])
    for u in range(7):
        for r in range(4):
            I(f'v_mov_b32 v{DACC+4*u+r}, v{B+u}')

def build(debug=None, opts=None):
    global ST
    opts = opts or {}
    e = Emit(); I = e.I
    a, b, c, d = TMP, TMP + 1, TMP + 2, TMP + 3
    touch = opts.get('touch', True)
    gapL = opts.get('gapL', 10)
    sRT = sC1
    I('s_cmp_ge_u32 s2, 256')
    I('s_cbranch_scc1 L_end')
    I('s_load_dwordx16 s[4:19], s[0:1], 0')
    I(f'v_lshrrev_b32 v1, 6, v0')
    I(f'v_and_b32 v{vL}, 63, v0')
    I(f'v_readfirstlane_b32 s{sW}, v1')
    I(f's_bfe_u32 s{sSL}, s2, 0x50003')
    ST = Stamps(debug in ('stamp', 'hstamp'))
    ST(e, 'start')
    if touch:
        I(f's_getpc_b64 {sp(sX0)}')
        I(f's_lshl_b32 s{sT0}, s{sSL}, 3')
        I(f's_add_u32 s{sT0}, s{sT0}, s{sW}')
        I(f's_lshl_b32 s{sT0}, s{sT0}, 7')
        I(f's_and_b32 s{sX0}, s{sX0}, 0xffffff00')
        I(f'v_mov_b32 v{a}, s{sT0}')
        I(f'global_load_dword v{vDUM}, v{a}, {sp(sX0)}')
    I(f's_and_b32 s{sK}, s{sW}, 3')
    I(f'v_lshrrev_b32 v{a}, 5, v{vL}')
    I(f'v_and_b32 v{b}, 1, v{vL}')
    I(f'v_lshlrev_b32 v{b}, 4, v{b}')
    I(f's_movk_i32 s{sC0}, 1352')
    I(f'v_bfe_u32 v{c}, v{vL}, 1, 4')
    I(f'v_mad_u32_u24 v{b}, v{a}, s{sC0}, v{b}')
    I(f'v_xor_b32 v{c}, v{c}, v{a}')
    I(f's_mul_i32 s{sI0}, s{sK}, 7')
    I(f's_cmp_eq_u32 s{sK}, 3')
    I(f's_cselect_b32 s{sT0}, 1, 0')
    I(f's_sub_u32 s{sI0}, s{sI0}, s{sT0}')
    I(f'v_and_b32 v{a}, 1, v{c}')
    I(f'v_lshl_add_u32 v{b}, v{a}, 5, v{b}')
    I(f's_mul_i32 s{sStage}, s{sK}, {STG}')
    I(f's_mul_i32 s{sT0}, s{sK}, 208')
    I(f's_add_u32 s{sT0}, s{sT0}, {2*CIN_L}')
    I(f's_mul_i32 s{sT1}, s{sI0}, 52')
    I(f's_add_u32 s{sT1}, s{sT1}, {CIN_L}')
    I(f's_movk_i32 s{sT2}, 832')
    I(f's_cmp_ge_u32 s{sW}, 4')
    I(f's_cselect_b32 s{sSrc}, s{sT1}, s{sT0}')
    I(f's_cselect_b32 s{sRT}, 208, s{sT2}')
    I(f's_movk_i32 s{sT2}, {WS2}')
    I(f's_cselect_b32 s{sT0}, {WS1}, s{sT2}')
    I(f's_add_u32 s{sStage}, s{sStage}, s{sT0}')
    I(f'v_lshrrev_b32 v{a}, 3, v{c}')
    I(f'v_mad_u32_u24 v{b}, v{a}, s{sRT}, v{b}')
    I(f'v_bfe_u32 v{c}, v{c}, 1, 2')
    I(f'v_mad_u32_u24 v{vSO}, v{c}, 52, v{b}')
    for tm in range(1, 4):
        I(f'v_xor_b32 v{a}, {tm}, v{c}')
        I(f'v_mad_u32_u24 v{vSO+tm}, v{a}, 52, v{b}')
    I(f's_lshl_b32 s{sT0}, s2, 4')
    I(f's_lshl_b32 s{sT1}, s{sK}, 2')
    I(f's_add_u32 s{sT0}, s{sT0}, s{sT1}')
    I(f's_mul_i32 s{sT0}, s{sT0}, 104')
    I(f'v_lshrrev_b32 v{d}, 1, v{vL}')
    I(f'v_lshlrev_b32 v{d}, 2, v{d}')
    I(f'v_add_u32 v{d}, s{sT0}, v{d}')
    I(f's_movk_i32 s{sT3}, 2704')
    I(f's_mov_b32 m0, s{sStage}')
    I(f's_movk_i32 s{sT2}, 1024')
    I(f's_cmp_ge_u32 s{sW}, 4')
    I('s_waitcnt lgkmcnt(0)')
    I(f's_mov_b32 s{S_CIN}, s8'); I(f's_mov_b32 s{S_CIN+1}, s9')
    I(f's_mov_b32 s{S_CIN+2}, {3*CIN_L}'); I(f's_mov_b32 s{S_CIN+3}, 0x20000')
    I('s_cbranch_scc0 L_eU')
    mk_srd(e, S_IDX, 4, 4096 * 104)
    for bb in range(4):
        I(f'buffer_load_dword v{vIDX+bb}, v{d}, {srd(S_IDX)}, 0 offen offset:{bb*104}')
    if opts.get('ttouch', 0):
        mk_srd(e, S_TAB, 6, 3200000)
        I(f's_mul_i32 s{sX0}, s2, 98')
        I(f's_mul_i32 s{sX0+1}, s{sK}, 25')
        I(f's_add_u32 s{sX0}, s{sX0}, s{sX0+1}')
        I(f'v_add_u32 v{a}, s{sX0}, v{vL}')
        I('s_mov_b32 exec_lo, 0x1ffffff'); I('s_mov_b32 exec_hi, 0')
        I(f'v_lshlrev_b32 v{a}, 7, v{a}')
        I(f'buffer_load_dword v{vDUM}, v{a}, {srd(S_TAB)}, 0 offen')
        I('s_mov_b64 exec, -1')
    I('s_branch L_eS')
    e.label('L_eU')
    mk_srd(e, S_W1, 12, 346112)
    if touch:
        I(f's_mul_i32 s{sT0}, s{sSL}, 85')
        I(f's_mul_i32 s{sT1}, s{sK}, 22')
        I(f's_add_u32 s{sT0}, s{sT0}, s{sT1}')
        I(f'v_add_u32 v{a}, s{sT0}, v{vL}')
        I(f's_mul_i32 s{sT0}, s{sSL}, 26')
        I(f's_mul_i32 s{sT1}, s{sK}, 7')
        I(f'v_lshlrev_b32 v{a}, 7, v{a}')
        I(f's_add_u32 s{sT0}, s{sT0}, s{sT1}')
        I(f'v_add_u32 v{d}, s{sT0}, v{vL}')
        I('s_mov_b32 exec_lo, 0x3fffff'); I('s_mov_b32 exec_hi, 0')
        I(f'v_lshlrev_b32 v{d}, 7, v{d}')
        I(f'buffer_load_dword v{vDUM}, v{a}, {srd(S_W1)}, 0 offen')
        I('s_mov_b32 exec_lo, 0x7f')
        I(f'buffer_load_dword v{vDUM}, v{d}, {srd(S_CIN)}, 0 offen')
        I('s_mov_b64 exec, -1')
    e.label('L_eS')
    for t in range(13):
        I(f'buffer_load_dwordx4 v{vSO + (t & 3)}, {srd(S_CIN)}, s{sSrc} offen lds')
        if t < 12:
            I(f's_add_u32 s{sSrc}, s{sSrc}, s{sT3}')
            I(f's_add_u32 m0, m0, s{sT2}')
    ST(e, 'b0')
    I(f's_load_dwordx2 s[20:21], s[0:1], 64')
    if debug == 'hstamp':
        I('s_load_dwordx2 s[22:23], s[0:1], 72')
    elif debug:
        I('s_load_dwordx2 s[22:23], s[0:1], 80')
    I(f's_load_dword s{sBO}, s[18:19], 0')
    I(f'v_and_b32 v{vN}, 15, v{vL}')
    I(f'v_lshrrev_b32 v{vG}, 4, v{vL}')
    I(f'v_bfe_u32 v{vR4}, v{vL}, 2, 2')
    I(f'v_and_b32 v{vC4}, 3, v{vL}')
    I(f's_cmp_lt_u32 s{sW}, 4')
    I('s_cbranch_scc1 L_Upath')

    ms = ['s[72:73]', 's[74:75]', 's[76:77]', 'vcc']
    I(f's_mov_b32 s{sE52}, -1')
    I(f's_mov_b32 s{sE52+1}, 0x000fffff')
    I(f'v_lshlrev_b32 v{b}, 4, v{vG}')
    I(f'v_mad_u32_u24 v{vFO}, v{vN}, 52, v{b}')
    I(f'v_cmp_gt_u32 vcc, 10, v{vN}')
    I(f'v_add_u32 v{vFO+1}, 832, v{vFO}')
    I(f'v_mov_b32 v{c}, 0x7ff00000')
    I(f'v_cndmask_b32 v{vFO+1}, v{c}, v{vFO+1}, vcc')
    I(f's_mul_i32 s{sT0}, s{sI0}, 1352')
    F = FQ()
    g0 = f_srd(S_A0, 10, 52) + f_srd(S_B1, 14, 832) + f_srd(S_W2, 16, 832) + [f'v_lshlrev_b32 v{fe}, 4, v{vL}']
    F.add(f'v_lshrrev_b32 v{fa}, 4, v{vL}', f'v_mul_u32_u24 v{fa}, {XS}, v{fa}', f'v_lshl_add_u32 v{fa}, v{vN}, 2, v{fa}',
          f's_mul_i32 s{sF0}, s{sK}, {4*XS}', f's_add_u32 s{sF0}, s{sF0}, {XB + 832}', f'v_add_u32 v{fa}, s{sF0}, v{fa}',
          f'v_cmp_gt_u32 vcc, 8, v{vN}', f'v_mov_b32 v{fb}, 0x3f803f80', f'v_mov_b32 v{fc}, {XCNT}', f'v_mov_b32 v{fd}, 0',
          f'v_cndmask_b32 v{fb}, 0, v{fb}, vcc', f'ds_write_b32 v{fa}, v{fb}', f'ds_write_b32 v{fc}, v{fd}')
    F.add(f'v_and_b32 v{fa}, 1, v{vL}', f'v_lshlrev_b32 v{fa}, 4, v{fa}', f'v_mov_b32 v{fb}, 0x3f80', f'v_lshlrev_b32 v{fb}, v{fa}, v{fb}',
          's_mov_b32 s73, 0', 's_mov_b32 s74, 0')
    for dw in range(4):
        m0_ = (3 << (2*dw)) | (3 << (16 + 2*dw + 8))
        m1_ = (3 << (2*dw)) | ((3 << 24) if dw == 0 else 0)
        F.add(f's_mov_b32 s72, {hex(m0_)}', f'v_cndmask_b32 v{EF+dw}, 0, v{fb}, s[72:73]',
              f's_mov_b32 s75, {hex(m1_)}', f'v_cndmask_b32 v{EF+4+dw}, 0, v{fb}, s[74:75]')
    F.add(*f_common_a())
    F.add(*f_setup_cin())
    def small_dma():
        I(f's_cmp_eq_u32 s{sK}, 0'); I('s_cbranch_scc0 L_sm1')
        I('s_mov_b32 exec_lo, 15'); I('s_mov_b32 exec_hi, 0')
        I(f's_mov_b32 m0, {SM_A0}'); I('s_nop 0')
        I(f'buffer_load_dwordx4 v{fe}, {srd(S_A0)}, 0 offen lds')
        I('s_branch L_smdone')
        e.label('L_sm1')
        I(f's_mov_b64 exec, {sp(sE52)}')
        I(f's_cmp_eq_u32 s{sK}, 1'); I('s_cbranch_scc0 L_sm2')
        I(f's_mov_b32 m0, {SM_B1}'); I('s_nop 0')
        I(f'buffer_load_dwordx4 v{fe}, {srd(S_B1)}, 0 offen lds')
        I('s_branch L_smdone')
        e.label('L_sm2')
        I(f's_cmp_eq_u32 s{sK}, 2'); I('s_cbranch_scc0 L_smdone')
        I(f's_mov_b32 m0, {SM_W2}'); I('s_nop 0')
        I(f'buffer_load_dwordx4 v{fe}, {srd(S_W2)}, 0 offen lds')
        e.label('L_smdone')
        I('s_mov_b64 exec, -1')
    for x in g0: I(x)
    small_dma()
    b1_at = opts.get('b1_at', 3)
    for u in range(7):
        if u == 6:
            I(f's_cmp_ge_u32 s{sK}, 2'); I('s_cbranch_scc1 L_w0done')
        if u == b1_at:
            I(f's_waitcnt vmcnt({0 if opts.get("safe_b1") else 2*u})')
            I('s_barrier')
            ST(e, 'b1')
        I(f's_add_u32 s{sT1}, s{sT0}, {u*1352}')
        for R in range(2):
            I(f'buffer_load_dwordx4 {vr(FF+8*u+4*R,4)}, v{vFO+R}, {srd(S_CIN)}, s{sT1} offen')
    e.label('L_w0done')
    mk_srd(e, S_TAB, 6, 3200000)
    I(f'v_and_b32 v{a}, 1, v{vL}')
    I(f'v_lshlrev_b32 v{a}, 4, v{a}')
    for bb in range(4):
        I(f'v_lshl_add_u32 v{vIDX+bb}, v{vIDX+bb}, 5, v{a}')
    I(f's_mul_i32 s{sT0}, s{sK}, {4*XS}')
    I(f's_mov_b64 exec, {sp(sE52)}')
    for bb in range(4):
        I(f's_add_u32 m0, s{sT0}, {XB + bb*XS}')
        I('s_nop 0')
        I(f'buffer_load_dwordx4 v{vIDX+bb}, {srd(S_TAB)}, 0 offen lds')
    I('s_mov_b64 exec, -1')
    ST(e, 'pre1')
    F.drain(e)
    prev = None
    for u in range(7):
        if u == 6:
            I(f's_cmp_ge_u32 s{sK}, 2'); I('s_cbranch_scc1 L_plast')
        n = 2 * (5 - u) + 4 if u <= 5 else 4
        I(f's_waitcnt vmcnt({0 if opts.get("safe_p") else n})')
        f = FF + 8 * u
        unit(e, f, f + 4, EF, EF + 4, DD[u & 1], None if prev is None else (DD[prev & 1], prev, FR_P))
        prev = u
    unit_store(e, DD[6 & 1], 6, FR_P)
    I('s_branch L_pend')
    e.label('L_plast')
    unit_store(e, DD[5 & 1], 5, FR_P)
    e.label('L_pend')
    ST(e, 'units')
    I('s_waitcnt lgkmcnt(0)')
    ST(e, 'fold')
    I('s_barrier')
    ST(e, 'b2')
    e.ds_q = []
    if debug == 'fold':
        I('s_branch L_dbg')
    else:
        acc_init_cin(e)
        main_cin(e, debug, opts)
        I('s_branch L_join')

    e.last = {}; e.ds_q = []
    e.label('L_Upath')
    I(f's_lshl_b32 s{sT2}, s{sK}, 3')
    I(f's_add_u32 s{sT2}, s{sT2}, 52')
    I(f's_add_u32 s{sT3}, s{sT2}, 32')
    I(f's_load_dwordx16 s[{SA}:{SA+15}], s[10:11], 104')
    I(f's_load_dwordx2 s[60:61], s[10:11], s{sT2}')
    I(f's_load_dwordx2 s[62:63], s[10:11], s{sT3}')
    for j in range(2):
        I(f'v_lshl_add_u32 v{fa}, v{vG}, 2, v{vR4}')
        if j:
            I(f'v_add_u32 v{fa}, 16, v{fa}'); I(f'v_min_u32 v{fa}, 25, v{fa}')
        I(f'v_and_b32 v{fb}, 7, v{fa}'); I(f'v_lshlrev_b32 v{fb}, 5, v{fb}'); I(f'v_lshl_add_u32 v{fb}, v{fa}, 9, v{fb}')
        I(f'v_lshl_add_u32 v{fb}, v{vC4}, 3, v{fb}'); I(f'v_add_u32 v{TAD+8*j}, s{sStage}, v{fb}')
        for x in range(1, 8):
            I(f'v_xor_b32 v{TAD+8*j+x}, {x*32}, v{TAD+8*j}')
    for u in range(4, 8):
        for R in range(2): I(f'v_mov_b32 v{UD+8*u+4*R}, 0')
    for dw in range(4): I(f'v_mov_b32 v{SELA+dw}, 0')
    for x in f_common_a(): I(x)
    I(f'v_lshlrev_b32 v{a}, 4, v{vL}')
    I(f'v_add_u32 v{a}, {HB}, v{a}')
    I(f'v_cmp_gt_u32 {sp(sMN10)}, 10, v{vN}')
    I(f's_lshl_b32 s{sF0}, s{sK}, 2')
    I(f's_lshl_b32 s{sF1}, 1, s{sF0}')
    I(f's_lshl_b32 s{sF2}, s{sF1}, 16')
    I('s_waitcnt lgkmcnt(0)')
    for q in (13, 14, 15): I(f's_mov_b32 s{SA+q}, 0')
    for g in range(4):
        if g < 2:
            I(f's_mov_b32 exec_lo, s{sF1 if g == 0 else sF2}'); I('s_mov_b32 exec_hi, 0') if g == 0 else None
        else:
            I('s_mov_b32 exec_lo, 0') if g == 2 else None
            I(f's_mov_b32 exec_hi, s{sF1 if g == 2 else sF2}')
        for dw, src in enumerate((2*g, 2*g+1, 8+2*g, 9+2*g)):
            I(f'v_mov_b32 v{SELA+dw}, s{SA+src}')
    I('s_mov_b64 exec, -1')
    I(f's_cmp_le_u32 s{sK}, 2'); I('s_cselect_b32 s62, s62, 0'); I(f's_cmp_le_u32 s{sK}, 1'); I('s_cselect_b32 s63, s63, 0')
    for q in range(4):
        I(f's_lshl_b32 s{SA+2*q}, s{60+q}, 16'); I(f's_and_b32 s{SA+2*q+1}, s{60+q}, 0xffff0000')
    I('s_waitcnt vmcnt(0)')
    ST(e, 'pre1')
    def frag_reads(u, nbuf=4, off=0):
        buf = UB + 8 * (u % nbuf)
        ids = []
        for R in range(2):
            pg = 2 * u + R
            for j in range(2):
                ids.append(I(f'ds_read_b64_tr_b16 {vr(buf+4*R+2*j,2)}, v{TAD+8*j+(pg&7)} offset:{off + (pg>>3)*256}'))
        return ids
    pend = {u: frag_reads(u) for u in range(3)}
    for u in range(8):
        if u == 4:
            I(f's_cmp_eq_u32 s{sK}, 3'); I('s_cbranch_scc1 L_u2done')
        if u == 6:
            I(f's_cmp_eq_u32 s{sK}, 2'); I('s_cbranch_scc1 L_u2done')
        if u + 3 < 8:
            pend[u + 3] = frag_reads(u + 3)
        e.wait_ds(pend[u][-1])
        buf = UB + 8 * (u % 4)
        for R in range(2):
            I(f'v_mfma_f32_16x16x32_bf16 {vr(UD+8*u+4*R,4)}, {vr(SELA,4)}, {vr(buf+4*R,4)}, 0')
    e.label('L_u2done')
    I(f's_mov_b32 s{sX0}, 0xffff')
    I(f's_mov_b32 s{sX0+1}, 0')
    I(f's_lshl_b32 s{sT0}, s{sK}, 4')
    for u in range(4):
        I(f'v_cvt_pk_bf16_f32 v{HF+u}, v{UD+16*u}, v{UD+16*u+8}')
    for u in range(8):
        I(f'v_cndmask_b32 v{UD+8*u+4}, 0, v{UD+8*u+4}, {sp(sMN10)}')
    I('s_mov_b32 exec_lo, 0x04000400'); I('s_mov_b32 exec_hi, 0x04000400')
    for u in range(8):
        I(f'v_mov_b32 v{UD+8*u+4}, s{SA+u}')
    I('s_mov_b64 exec, -1')
    for u in range(4):
        I(f'v_cvt_pk_bf16_f32 v{HF+4+u}, v{UD+16*u+4}, v{UD+16*u+12}')
    I(f's_lshl_b64 exec, {sp(sX0)}, s{sT0}')
    I(f'ds_write_b128 v{a}, {vr(HF,4)}')
    I(f'ds_write_b128 v{a}, {vr(HF+4,4)} offset:1024')
    I('s_mov_b64 exec, -1')
    I('s_waitcnt lgkmcnt(0)')
    I('s_barrier')
    ST(e, 'b1')
    I(f'ds_read_b128 {vr(HF,4)}, v{a} offset:0')
    I(f'ds_read_b128 {vr(HF+4,4)}, v{a} offset:1024')
    pend = {u: frag_reads(u, off=WS1 - WS2) for u in range(3)}
    prev = None
    for u in range(7):
        if u == 6:
            I(f's_cmp_ge_u32 s{sK}, 2'); I('s_cbranch_scc1 L_tlast')
        if u + 3 < 7:
            pend[u + 3] = frag_reads(u + 3, off=WS1 - WS2)
        e.wait_ds(pend[u][-1])
        g = UB + 8 * (u % 4)
        for dw in range(4):
            I(f'v_cndmask_b32 v{g+4+dw}, 0, v{g+4+dw}, {sp(sMN10)}')
        unit(e, g, g + 4, HF, HF + 4, DD[u & 1], None if prev is None else (DD[prev & 1], prev, FR_Q))
        prev = u
    unit_store(e, DD[6 & 1], 6, FR_Q)
    I('s_branch L_tend')
    e.label('L_tlast')
    unit_store(e, DD[5 & 1], 5, FR_Q)
    e.label('L_tend')
    ST(e, 'units')
    I('s_waitcnt lgkmcnt(0)')
    e.ds_q = []
    for x in f_setup_dnn(): I(x)
    dma_step(e, 0, 'U0')
    I(f'v_mov_b32 v{vXCA}, {XCNT}')
    I(f'v_mov_b32 v{vONE}, 1')
    acc_init_dnn(e)
    I('s_waitcnt lgkmcnt(0)')
    ST(e, 'fold')
    I('s_barrier')
    ST(e, 'b2')
    e.ds_q = []
    if debug == 'fold':
        e.label('L_dbg')
        I('s_waitcnt vmcnt(0)'); I('s_barrier')
        dump_lds(e)
        return finish(e, opts)
    main_dnn(e, debug, opts)
    final(e, debug, opts)
    return finish(e, opts)

def dma_step(e, step, tag):
    I = e.I
    slot = step % 4
    I(f's_mov_b32 s{sT3}, {step*26624}')
    for u in range(7):
        if u == 6:
            I(f's_cmp_ge_u32 s{sK}, 2'); I(f's_cbranch_scc1 L_dma_{tag}')
        I(f's_add_u32 m0, s{sDma}, {slot*SLOT + u*1024}')
        I('s_nop 0')
        I(f'buffer_load_dwordx4 v{vDMA+u}, {srd(S_W1)}, s{sT3} offen lds')
    e.label(f'L_dma_{tag}')

def unit(e, X0, X1, Y0, Y1, D, prev):
    I = e.I
    mf = []
    def m(dd, A, B, first):
        mf.append(f'v_mfma_f32_16x16x32_bf16 {vr(dd,4)}, {vr(A,4)}, {vr(B,4)}, ' + ('0' if first else vr(dd, 4)))
    m(D, X0, Y0, True); m(D + 4, X1, Y0, True); m(D + 8, X1, Y1, True)
    m(D, Y0, X0, False); m(D + 4, Y1, X0, False); m(D + 8, Y1, X1, False)
    fill = []
    if prev is not None:
        PD, pu, setbase = prev
        for ti in range(3):
            fill.append(f'v_cvt_pk_bf16_f32 v{DC+2*ti}, v{PD+4*ti}, v{PD+4*ti+1}')
            fill.append(f'v_cvt_pk_bf16_f32 v{DC+2*ti+1}, v{PD+4*ti+2}, v{PD+4*ti+3}')
        for ti in range(3):
            fill.append(f'ds_write_b32 v{vWA+ti}, v{DC+2*ti} offset:{setbase + pu*16}')
            fill.append(f'ds_write_b32 v{vWB+ti}, v{DC+2*ti+1} offset:{setbase + pu*16}')
    for i in range(6):
        I(mf[i])
        for f in fill[2*i:2*i+2]:
            I(f)

def unit_store(e, D, u, setbase):
    I = e.I
    for ti in range(3):
        I(f'v_cvt_pk_bf16_f32 v{DC+2*ti}, v{D+4*ti}, v{D+4*ti+1}')
        I(f'v_cvt_pk_bf16_f32 v{DC+2*ti+1}, v{D+4*ti+2}, v{D+4*ti+3}')
    for ti in range(3):
        I(f'ds_write_b32 v{vWA+ti}, v{DC+2*ti} offset:{setbase + u*16}')
        I(f'ds_write_b32 v{vWB+ti}, v{DC+2*ti+1} offset:{setbase + u*16}')

def dump_lds(e):
    I = e.I
    I('v_mbcnt_lo_u32_b32 v1, -1, 0'); I('v_mbcnt_hi_u32_b32 v1, -1, v1')
    I(f's_lshl_b32 s{sT0}, s{sW}, 10')
    I('v_lshlrev_b32 v1, 4, v1')
    I(f'v_add_u32 v1, s{sT0}, v1')
    I(f's_mul_i32 s{sT1}, s2, {LDS_TOTAL}')
    I(f'v_add_u32 v2, s{sT1}, v1')
    I(f's_mov_b32 s{sT2}, 0')
    e.label('L_dump')
    I('ds_read_b128 v[4:7], v1')
    I('s_waitcnt lgkmcnt(0)')
    I('global_store_dwordx4 v2, v[4:7], s[22:23]')
    I('s_waitcnt vmcnt(0)')
    I('v_add_u32 v1, 8192, v1'); I('v_add_u32 v2, 8192, v2')
    I(f's_add_u32 s{sT2}, s{sT2}, 1')
    I(f's_cmp_lt_u32 s{sT2}, 20')
    e.raw('    s_cbranch_scc1 L_dump')

def main_cin(e, debug, opts):
    I = e.I
    steps = step_list()
    hs = opts.get('hsched', [3, 5, 5, 5, 5, 5, 5, 5, 5, 5, 5, 3, 0])
    assert sum(hs) == 56 and len(hs) == 13
    halves = [(s_, X_) for s_ in range(28) for X_ in range(2)]
    sc = []; si = 0
    for n in hs:
        sc.append(halves[si:si + n]); si += n
    XR = [XA, XBB]; ZZ = [ZA, ZBB]
    af_ids = {}
    def af_read(s):
        buf = AF[s & 1]
        I(f'ds_read_b128 {vr(buf,4)}, v{vAF} offset:{FR_P + s*FST}')
        af_ids[s] = I(f'ds_read_b128 {vr(buf+4,4)}, v{vAF} offset:{FR_Q + s*FST}')
    def z_half(X, s, pi):
        aa, bb = steps[s]
        mod = ' div:2' if aa == bb else ''
        t = ZT + 4 * pi
        x = XR[X]
        for qi in range(4):
            if mod: I(f'v_mul_f32_e64 v{t+qi}, v{x+4*aa+pi}, v{x+4*bb+qi}{mod}')
            else: I(f'v_mul_f32 v{t+qi}, v{x+4*aa+pi}, v{x+4*bb+qi}')
        z = ZZ[X][s & 1]
        I(f'v_cvt_pk_bf16_f32 v{z+2*pi}, v{t}, v{t+1}')
        I(f'v_cvt_pk_bf16_f32 v{z+2*pi+1}, v{t+2}, v{t+3}')
    def epilogue():
        t = TMP
        for X in range(2):
            P, Q = ACC[('P', X)], ACC[('Q', X)]
            t = TMP + 4 * X
            I(f'v_mul_f32 v{t}, v{P}, v{Q}')
            I(f'v_mul_f32 v{t+1}, v{P+12}, v{Q+12}')
            I(f'v_mul_f32 v{t+2}, v{P+1}, v{Q+1}')
            I(f'v_fmac_f32 v{t+1}, v{P+13}, v{Q+13}')
            for r in range(2, 12):
                I(f'v_fmac_f32 v{t + 2*(r&1)}, v{P+r}, v{Q+r}')
        I(f'v_cmp_gt_u32 vcc, 32, v{vL}')
        for X in range(2):
            t = TMP + 4 * X
            I(f'v_add_f32 v{t}, v{t}, v{t+2}')
        for X in range(2):
            t = TMP + 4 * X
            I(f'v_cndmask_b32 v{t+1}, 0, v{t+1}, vcc')
        for X in range(2):
            t = TMP + 4 * X
            I(f'v_add_f32 v{t}, v{t}, v{t+1}')
        t = TMP
        I(f'v_and_b32 v{t+2}, 1, v{vG}')
        I(f'v_lshlrev_b32 v{t+2}, 6, v{t+2}')
        I(f'v_lshrrev_b32 v{t+3}, 1, v{vG}')
        I(f'v_lshl_add_u32 v{t+2}, v{t+3}, 2, v{t+2}')
        I(f's_lshl_b32 s{sT0}, s{sK}, 8')
        I(f's_add_u32 s{sT0}, s{sT0}, {RED + 16}')
        I(f'v_add_u32 v{t+2}, s{sT0}, v{t+2}')
        for sh in (8, 4, 2, 1):
            for X in range(2):
                tt = TMP + 4 * X
                I(f'v_add_f32_dpp v{tt}, v{tt}, v{tt} row_ror:{sh} row_mask:0xf bank_mask:0xf')
        I(f's_mov_b32 exec_lo, 0x00010001'); I(f's_mov_b32 exec_hi, 0x00010001')
        I(f'ds_write_b32 v{t+2}, v{TMP}')
        I(f'ds_write_b32 v{t+2}, v{TMP+4} offset:128')
        I('s_mov_b64 exec, -1')
    for j in range(13):
        e.comment(f'---- CIN interval {j}')
        if j == 0:
            I('s_waitcnt vmcnt(0)')
            I('s_barrier')
        ST(e, f'it{j}')
        if j == 0:
            xa = [I(f'ds_read_b64_tr_b16 {vr(XPA+2*q,2)}, v{vTRX} offset:{128*q}') for q in range(7)]
            xb = [I(f'ds_read_b64_tr_b16 {vr(XPB+2*q,2)}, v{vTRX} offset:{2*XS + 128*q}') for q in range(7)]
            I(f'v_mov_b32 v{TMP}, {XCNT}'); I(f'v_mov_b32 v{TMP+1}, 1')
            I('s_waitcnt lgkmcnt(0)')
            I('s_mov_b64 exec, 1')
            I(f'ds_add_u32 v{TMP}, v{TMP+1}')
            I('s_mov_b64 exec, -1')
            if opts.get('safe_x'): I('s_barrier')
            af_read(0); af_read(1)
            for q in range(7):
                for h in range(2):
                    I(f'v_lshlrev_b32 v{XA+4*q+2*h}, 16, v{XPA+2*q+h}')
                    I(f'v_and_b32 v{XA+4*q+2*h+1}, 0xffff0000, v{XPA+2*q+h}')
            z_half(0, 0, 0); z_half(0, 0, 1)
            for q in range(7):
                for h in range(2):
                    I(f'v_lshlrev_b32 v{XBB+4*q+2*h}, 16, v{XPB+2*q+h}')
                    I(f'v_and_b32 v{XBB+4*q+2*h+1}, 0xffff0000, v{XPB+2*q+h}')
            z_half(1, 0, 0); z_half(1, 0, 1)
        for (s, X) in ([] if opts.get('no_cin') else sc[j]):
            if X == 0: e.wait_ds(af_ids[s])
            buf = AF[s & 1]
            z = ZZ[X][s & 1]
            P, Q = ACC[('P', X)], ACC[('Q', X)]
            I(f'v_mfma_f32_32x32x16_bf16 {vr(P,16)}, {vr(buf,4)}, {vr(z,4)}, ' + ('0' if s == 0 else vr(P,16)))
            if s + 1 < 28: z_half(X, s + 1, 0)
            I(f'v_mfma_f32_32x32x16_bf16 {vr(Q,16)}, {vr(buf+4,4)}, {vr(z,4)}, ' + (vr(QI,16) if s == 0 else vr(Q,16)))
            if X == 1 and s + 2 < 28: af_read(s + 2)
            if s + 1 < 28: z_half(X, s + 1, 1)
        if (not sc[j]) and j > 0 and sc[j-1]:
            epilogue()
    if sc[12]:
        epilogue()
    I('s_waitcnt lgkmcnt(0)')
    ST(e, 'gelu')

def main_dnn(e, debug, opts):
    I = e.I
    e.last = {}
    I(f's_cmp_ge_u32 s{sK}, 2')
    I('s_cselect_b64 vcc, -1, 0')
    dma_step(e, 1, 'C1')
    dma_step(e, 2, 'C2')
    def dma_one(step, u, tag, between=None):
        if u == 6: I(f's_cbranch_vccnz L_d6_{tag}')
        I(f's_add_u32 m0, s{sDma}, {(step % 4)*SLOT + u*1024}')
        if between: between()
        else: I('s_nop 0')
        I(f'buffer_load_dwordx4 v{vDMA+u}, {srd(S_W1)}, s{sT3} offen lds')
        if u == 6: e.label(f'L_d6_{tag}')
    def mf(j, u):
        I(f'v_mfma_f32_16x16x32_bf16 {vr(DACC+4*u,4)}, {vr(XF+4*j,4)}, {vr(WF[j&1]+4*u,4)}, {vr(DACC+4*u,4)}')
    plan = {j: [] for j in range(13)}
    plan[1] = [3, 4]
    for j in range(2, 10): plan[j] = [j + 3]
    order = [(st_, u) for st_ in range(3) for u in range(7)]
    tops = {}
    for j in range(13):
        tops[j] = list(order)
        order += [(st_, u) for st_ in plan[j] for u in range(7)]
    def later_count(j, cls7):
        seq = [x for x in tops[j] if cls7 or x[1] < 6]
        last = max(i for i, x in enumerate(seq) if x[0] == j)
        return len(seq) - 1 - last
    for j in range(13):
        e.comment(f'---- DNN interval {j}')
        n7, n6 = later_count(j, True), later_count(j, False)
        if opts.get('safe_dv'): n7 = n6 = 0
        mg = opts.get('vm_margin', 0)
        n7 = max(0, n7 - mg); n6 = max(0, n6 - mg)
        nopd = opts.get('vm_nop', 0)
        if n7 != n6:
            I(f's_cbranch_vccnz L_vw6_{j}')
            I(f's_waitcnt vmcnt({n7})')
            I(f's_branch L_vwd_{j}')
            e.label(f'L_vw6_{j}')
            I(f's_waitcnt vmcnt({n6})')
            e.label(f'L_vwd_{j}')
        else:
            I(f's_waitcnt vmcnt({n7})')
        for _ in range(nopd): I('s_nop 15')
        if j == 0:
            I('s_waitcnt lgkmcnt(0)')
            I('s_barrier')
        ST(e, f'it{j}')
        if j == 0:
            for q in range(13):
                I(f'ds_read_b64 {vr(XF+4*q,2)}, v{vXF} offset:{64*q}')
                I(f'ds_read_b64 {vr(XF+4*q+2,2)}, v{vXF} offset:{64*q+16}')
            I('s_waitcnt lgkmcnt(0)')
            I('s_mov_b64 exec, 1')
            I(f'ds_add_u32 v{vXCA}, v{vONE}')
            I('s_mov_b64 exec, -1')
            if opts.get('safe_x'): I('s_barrier')
        slot = j % 4
        tb = vT + 4 * (slot >> 1)
        for u in range(7):
            if u == 6: I(f's_cbranch_vccnz L_r6_{j}')
            for jj in range(2):
                I(f'ds_read_b64_tr_b16 {vr(WF[j&1]+4*u+2*jj,2)}, v{tb+2*jj+(u&1)} offset:{(slot&1)*SLOT + (u>>1)*64}')
        e.label(f'L_r6_{j}')
        if j == 1:
            e.label('L_xspin')
            I(f'ds_read_b32 v{vXCT}, v{vXCA}')
            I('s_waitcnt lgkmcnt(0)')
            I(f'v_readfirstlane_b32 s{sT0}, v{vXCT}')
            I(f's_cmp_ge_u32 s{sT0}, 8')
            e.raw('    s_cbranch_scc0 L_xspin')
        if j >= 1:
            if j > 1: I('s_waitcnt lgkmcnt(0)' if opts.get('safe_dl') else 's_waitcnt lgkmcnt(12)')
            steps_ = [] if opts.get('no_dma') else plan[j]
            first = steps_[0] if steps_ else None
            if first is not None: I(f's_mov_b32 s{sT3}, {first*26624}')
            for u in range(7):
                if u == 6:
                    I(f's_cbranch_vccnz L_m6_{j}')
                    if first is not None:
                        I(f's_add_u32 m0, s{sDma}, {(first % 4)*SLOT + u*1024}'); mf(j - 1, u)
                        I(f'buffer_load_dwordx4 v{vDMA+u}, {srd(S_W1)}, s{sT3} offen lds')
                    else: mf(j - 1, u)
                    e.label(f'L_m6_{j}')
                elif first is not None:
                    dma_one(first, u, f'{j}', between=lambda: mf(j - 1, u))
                else:
                    mf(j - 1, u)
            for st_ in steps_[1:]:
                I(f's_mov_b32 s{sT3}, {st_*26624}')
                for u in range(7): dma_one(st_, u, f'{j}_{st_}')
    I('s_waitcnt lgkmcnt(0)')
    for u in range(7):
        if u == 6: I('s_cbranch_vccnz L_m6_end')
        mf(12, u)
    e.label('L_m6_end')
    ST(e, 'gelu')
    G = TMP
    T = TMP + 4
    C1, C0, ONE = CST, CST + 2, CST + 4
    def gelu(pairs, first):
        def each(fn):
            for k_, (x, u, h) in enumerate(pairs):
                fn(x, T + 2 * k_, u, h, k_)
        each(lambda x, t, u, h, k_: I(f'v_pk_mul_f32 {vr(t,2)}, {vr(x,2)}, {vr(x,2)}'))
        each(lambda x, t, u, h, k_: I(f'v_pk_fma_f32 {vr(t,2)}, {vr(t,2)}, {vr(C1,2)}, {vr(C0,2)}'))
        each(lambda x, t, u, h, k_: I(f'v_pk_mul_f32 {vr(t,2)}, {vr(t,2)}, {vr(x,2)}'))
        each(lambda x, t, u, h, k_: (I(f'v_exp_f32 v{t}, v{t}'), I(f'v_exp_f32 v{t+1}, v{t+1}')))
        each(lambda x, t, u, h, k_: I(f'v_pk_mul_f32 {vr(x,2)}, {vr(x,2)}, {vr(W2V + (u & ~1), 2)} op_sel:[0,{u&1}] op_sel_hi:[1,{u&1}]'))
        each(lambda x, t, u, h, k_: I(f'v_pk_add_f32 {vr(t,2)}, {vr(t,2)}, {vr(ONE,2)}'))
        each(lambda x, t, u, h, k_: (I(f'v_rcp_f32 v{t}, v{t}'), I(f'v_rcp_f32 v{t+1}, v{t+1}')))
        def last(x, t, u, h, k_):
            if first and k_ < 2: I(f'v_pk_mul_f32 {vr(G+2*h,2)}, {vr(t,2)}, {vr(x,2)}')
            else: I(f'v_pk_fma_f32 {vr(G+2*h,2)}, {vr(t,2)}, {vr(x,2)}, {vr(G+2*h,2)}')
        each(last)
    allp = [(DACC + 4*u + 2*h, u, h) for u in range(6) for h in range(2)]
    gelu(allp[0:4], True); gelu(allp[4:8], False); gelu(allp[8:12], False)
    I(f's_cmp_ge_u32 s{sK}, 2'); I(f's_cbranch_scc1 L_g6')
    gelu([(DACC + 24 + 2*h, 6, h) for h in range(2)], False)
    e.label('L_g6')
    I(f'v_lshlrev_b32 v{T}, 8, v{vG}')
    I(f's_lshl_b32 s{sT0}, s{sK}, 2')
    I(f's_add_u32 s{sT0}, s{sT0}, {RED}')
    I(f'v_add_u32 v{T}, s{sT0}, v{T}')
    for sh in (8, 4, 2, 1):
        for r in range(4):
            I(f'v_add_f32_dpp v{G+r}, v{G+r}, v{G+r} row_ror:{sh} row_mask:0xf bank_mask:0xf')
    I(f's_mov_b32 exec_lo, 0x00010001'); I(f's_mov_b32 exec_hi, 0x00010001')
    for r in range(4):
        I(f'ds_write_b32 v{T}, v{G+r} offset:{64*r}')
    I('s_mov_b64 exec, -1')
    I('s_waitcnt lgkmcnt(0)')

def final(e, debug, opts):
    I = e.I
    T = TMP + 4
    e.label('L_join')
    e.last = {}
    if opts.get('delay_end'):
        I(f's_mov_b32 s{sT0}, 0')
        e.label('L_dly')
        for _ in range(8): I('s_nop 15')
        I(f's_add_u32 s{sT0}, s{sT0}, 1')
        I(f's_cmp_lt_u32 s{sT0}, {opts["delay_end"]}')
        e.raw('    s_cbranch_scc1 L_dly')
    I('s_barrier')
    if debug == 'red':
        dump_lds(e); return
    if debug == 'stamp':
        ST(e, 'fin')
        ST.flush(e)
        open('stamp_names.txt', 'w').write(' '.join(ST.names))
        return
    if debug == 'hstamp':
        ST(e, 'fin')
        sel = opts.get('hsel', ['b0', 'pre1', 'b1', 'units', 'b2', 'it0', 'it12', 'fin'])
        I(f's_cmp_eq_u32 s2, {opts.get("hwg", 128)}'); I('s_cbranch_scc0 L_nohs')
        I(f's_and_b32 s{sT0}, s{sW}, 3'); I(f's_cmp_eq_u32 s{sT0}, 0'); I('s_cbranch_scc0 L_nohs')
        I('s_waitcnt lgkmcnt(0)')
        r0 = STAMP_SLOTS[0]
        for i, nm in enumerate(sel):
            r = STAMP_SLOTS[ST.names.index(nm)]
            I(f's_sub_u32 s{sT1}, s{r}, s{r0}')
            I(f'v_writelane_b32 v200, s{sT1}, {i}')
        I(f's_lshl_b32 s{sT0}, s{sW}, 3')
        I(f'v_lshlrev_b32 v201, 2, v{vL}')
        I(f'v_add_u32 v201, s{sT0}, v201')
        I('s_mov_b32 exec_lo, 0xff'); I('s_mov_b32 exec_hi, 0')
        I('global_store_dword v201, v200, s[22:23]')
        I('s_mov_b64 exec, -1')
        I('s_waitcnt vmcnt(0)')
        e.label('L_nohs')
    I(f's_cmp_lg_u32 s{sW}, 0'); I('s_cbranch_scc1 L_end')
    I('s_mov_b32 exec_lo, 0xffff'); I('s_mov_b32 exec_hi, 0')
    I(f'v_lshlrev_b32 v{T}, 6, v{vL}')
    I(f'v_add_u32 v{T}, {RED}, v{T}')
    I(f'ds_read_b128 {vr(8,4)}, v{T}')
    I(f'ds_read_b64 {vr(12,2)}, v{T} offset:16')
    if debug == 'redout':
        I('s_waitcnt lgkmcnt(0)')
        I(f's_lshl_b32 s{sT0}, s2, 9')
        I(f'v_lshlrev_b32 v20, 5, v{vL}')
        I(f'v_add_u32 v20, s{sT0}, v20')
        I('global_store_dwordx4 v20, v[8:11], s[22:23]')
        I('global_store_dwordx2 v20, v[12:13], s[22:23] offset:16')
        I('s_waitcnt vmcnt(0)')
    I(f's_mov_b32 s{S_OUT}, s20'); I(f's_mov_b32 s{S_OUT+1}, s21')
    I(f's_mov_b32 s{S_OUT+2}, 8192'); I(f's_mov_b32 s{S_OUT+3}, 0x20000')
    I(f's_lshl_b32 s{sBO}, s{sBO}, 16')
    I(f's_lshl_b32 s{sT0}, s2, 5')
    I(f'v_lshlrev_b32 v{T+1}, 1, v{vL}')
    I(f'v_add_u32 v{T+1}, s{sT0}, v{T+1}')
    I('s_waitcnt lgkmcnt(0)')
    I('v_add_f32 v8, v8, v9'); I('v_add_f32 v10, v10, v11'); I('v_add_f32 v12, v12, v13')
    I('v_add_f32 v8, v8, v10')
    I(f'v_add_f32 v12, s{sBO}, v12')
    I('v_add_f32 v8, v8, v12')
    I('v_cvt_pk_bf16_f32 v8, v8, v8')
    I(f'buffer_store_short v8, v{T+1}, {srd(S_OUT)}, 0 offen')
    I('s_waitcnt vmcnt(0)')

def finish(e, opts):
    e.label('L_end')
    body = e.text()
    hdr = f"""; xDeepFM (CIN + DNN) fused kernel, generated by my own generator script.
; One workgroup = 16 batch rows, 8 waves.  CIN layers are folded at run time into two quadratic forms.
; @launch grid=(256,1,1) block=(512,1,1) lds={LDS_TOTAL}
.amdgcn_target "amdgcn-amd-amdhsa--gfx950"
.text
.globl {KN}
.p2align 8
.type {KN},@function
{KN}:
"""
    ftr = f"""    s_endpgm
.section .rodata,"a"
.p2align 6
.amdhsa_kernel {KN}
  .amdhsa_next_free_vgpr 256
  .amdhsa_next_free_sgpr 102
  .amdhsa_accum_offset 256
  .amdhsa_group_segment_fixed_size 0
  .amdhsa_kernarg_size 88
  .amdhsa_user_sgpr_count 2
  .amdhsa_user_sgpr_kernarg_segment_ptr 1
  .amdhsa_system_sgpr_workgroup_id_x 1
  .amdhsa_ieee_mode 0
.end_amdhsa_kernel
"""
    return hdr + body + ftr

if __name__ == '__main__':
    dbg = sys.argv[2] if len(sys.argv) > 2 and sys.argv[2] != 'none' else None
    opts = eval(sys.argv[3]) if len(sys.argv) > 3 else {}
    out = build(dbg, opts)
    open(sys.argv[1], 'w').write(out)
    print('wrote', sys.argv[1], len(out), 'bytes')
```

```python
import sys, os
from emit import Emit

KN = "standalone__deep_cross_xdeepfm__recsys_kernel"

FST = 848; FR_P = 0; FR_Q = 28 * FST
RB = 47616; SLOT = 26624; WROW = 832
WS2 = RB + SLOT - 4 * 13312
WS1 = RB + SLOT
STG = 13312
XB = RB + 3 * SLOT; XS = 912
HB = RB + 4 * SLOT
SM = HB + 2048; SM_A0 = SM; SM_B1 = SM + 64; SM_W2 = SM + 896
RED = SM + 1728
XCNT = RED + 1024
LDS_TOTAL = 163840
OOB_LDS = 0x40000
CIN_L = 35152
assert WS1 % 512 == 0 and 28 * FST * 2 <= RB and RED + 1024 <= LDS_TOTAL and WS2 % 512 == 0 and WS2 >= 0

S_IDX, S_TAB, S_CIN, S_W1 = 24, 28, 32, 36
S_A0, S_B1, S_W2, S_OUT = 40, 52, 56, 60
sA2 = 96
sW, sK = 64, 65
sBO = 66
sI0 = 67
sT0, sT1, sT2, sT3 = 68, 69, 70, 71
sMN10 = 78
sE52 = 80
sStage, sSrc = 82, 83
sC0, sC1, sC2 = 84, 85, 86
sX0 = 88
sF0, sF1, sF2 = 84, 85, 86
sDma = 92
sSL = 93
SA = 44
def srd(n): return f"s[{n}:{n+3}]"
def sp(n): return f"s[{n}:{n+1}]"
def vr(a, n=1): return f"v{a}" if n == 1 else f"v[{a}:{a+n-1}]"

vL = 0
TMP = 122
fa, fb, fc, fd, fe = 132, 133, 134, 135, 136
vN, vG, vR4, vC4 = 142, 143, 144, 145
vWA = 146
vWB = 149
DD = [152, 164]
DC = 176
vSO = 182
vDUM = 186
UD = 2; SELA = 66; HF = 102
TAD = 188
UB = 70
FF = 2; EF = 60; vIDX = 68; vFO = 72
XA = 2; XBB = 30
ZA = [58, 62]; ZBB = [66, 70]
ZT = 74
AF = [82, 90]
vAF = 100; vTRX = 101
XPA = 104; XPB = 152
QI = 166
ACC = {('P', 0): 192, ('Q', 0): 208, ('P', 1): 224, ('Q', 1): 240}
vDMA = 100
vT = 108
vXF = 116
WF = [2, 30]
XF = 152
DACC = 208
W2V = 236
CST = 244
vXCA = 118; vONE = 119; vXCT = 120

STAMP_SLOTS = [94, 96, 98, 100, 90, 40, 42] + list(range(44, 60, 2)) + [24, 26, 28, 30, 4, 6, 8, 10, 14, 16]
class Stamps:
    def __init__(self, on): self.on = on; self.names = []
    def __call__(self, e, name):
        if not self.on: return
        if name in self.names: i = self.names.index(name)
        else:
            i = len(self.names); self.names.append(name)
        r = STAMP_SLOTS[i]
        e.I(f's_memtime s[{r}:{r+1}]')
    def flush(self, e):
        if not self.on: return
        I = e.I
        I('s_mov_b64 exec, -1')
        I('s_waitcnt vmcnt(0) lgkmcnt(0)')
        for i in range(len(self.names)):
            I(f'v_writelane_b32 v200, s{STAMP_SLOTS[i]}, {i}')
        I('s_memrealtime s[68:69]')
        I('s_waitcnt lgkmcnt(0)')
        I('v_writelane_b32 v200, s68, 31')
        I('v_mbcnt_lo_u32_b32 v201, -1, 0'); I('v_mbcnt_hi_u32_b32 v201, -1, v201')
        I('v_lshlrev_b32 v201, 2, v201')
        I(f's_lshl_b32 s70, s2, 3'); I(f's_add_u32 s70, s70, s{sW}'); I('s_lshl_b32 s70, s70, 8')
        I('v_add_u32 v201, s70, v201')
        I('global_store_dword v201, v200, s[22:23]')
        I('s_waitcnt vmcnt(0)')
ST = Stamps(False)

def step_list():
    return [(a, b) for b in range(7) for a in range(b + 1)]

def mk_srd(e, n, lo, size, add=0):
    I = e.I
    if add:
        I(f's_add_u32 s{n}, s{lo}, {add}')
        I(f's_addc_u32 s{n+1}, s{lo+1}, 0')
    else:
        I(f's_mov_b32 s{n}, s{lo}')
        I(f's_mov_b32 s{n+1}, s{lo+1}')
    I(f's_mov_b32 s{n+2}, {size}')
    I(f's_mov_b32 s{n+3}, 0x20000')


class FQ:
    def __init__(self): self.q = []
    def add(self, *items): self.q.extend(items)
    def drain(self, e, n=10**9):
        k = 0
        while self.q and k < n:
            it = self.q.pop(0)
            if isinstance(it, list):
                for x in it: e.I(x)
                k += len(it)
            else:
                e.I(it); k += 1

def f_srd(n, lo, size):
    return [f's_mov_b32 s{n}, s{lo}', f's_mov_b32 s{n+1}, s{lo+1}', f's_mov_b32 s{n+2}, {size}', f's_mov_b32 s{n+3}, 0x20000']

def f_common_a():
    L = [f'v_bfe_u32 v{fa}, v{vN}, 1, 1', f'v_mul_u32_u24 v{fb}, 420, v{fa}', f'v_and_b32 v{fc}, 1, v{vN}',
         f'v_lshl_add_u32 v{fb}, v{fc}, 3, v{fb}', f's_lshl_b32 s{sF0}, s{sI0}, 4', f'v_lshrrev_b32 v{fc}, 2, v{vN}',
         f'v_add_u32 v{fa}, 1, v{vG}', f'v_mul_u32_u24 v{fa}, v{fa}, v{vG}', f'v_cmp_le_u32 s[72:73], v{fc}, v{vG}',
         f'v_lshrrev_b32 v{fa}, 1, v{fa}', f'v_cmp_ge_u32 s[74:75], 2, v{vG}', f'v_add_u32 v{fa}, v{fa}, v{fc}',
         f's_movk_i32 s{sF2}, {FST}', f'v_add_u32 v{fb}, s{sF0}, v{fb}', f'v_lshlrev_b32 v{fe}, 2, v{vL}',
         f'v_mad_u32_u24 v{fd}, v{fa}, s{sF2}, v{fb}', f's_and_b64 s[76:77], s[72:73], s[74:75]', f'v_add_u32 v{fe}, {OOB_LDS}, v{fe}',
         f's_movk_i32 s{sF1}, {4*FST}', f'v_cndmask_b32 v{vWA}, v{fe}, v{fd}, s[72:73]',
         f'v_mad_u32_u24 v{fd}, v{vG}, s{sF1}, v{fd}', f'v_xor_b32 v{vWB}, 4, v{vWA}', f'v_add_u32 v{fd}, {10*FST}, v{fd}',
         f'v_cndmask_b32 v{vWA+1}, v{fe}, v{fd}, s[74:75]', f'v_add_u32 v{fd}, {4*FST}, v{fd}', f'v_xor_b32 v{vWB+1}, 4, v{vWA+1}',
         f'v_cndmask_b32 v{vWA+2}, v{fe}, v{fd}, s[76:77]', f'v_xor_b32 v{vWB+2}, 4, v{vWA+2}']
    return L

def f_setup_cin():
    L = [f'v_and_b32 v{fa}, 31, v{vL}', f'v_lshlrev_b32 v{fa}, 4, v{fa}', f'v_lshrrev_b32 v{fb}, 5, v{vL}',
         f's_movk_i32 s{sF1}, 416', f'v_mad_u32_u24 v{vAF}, v{fb}, s{sF1}, v{fa}',
         f'v_lshrrev_b32 v{fb}, 1, v{vG}', f'v_and_b32 v{fc}, 1, v{vG}', f's_movk_i32 s{sF1}, {XS}',
         f'v_lshlrev_b32 v{fa}, 1, v{fb}', f'v_xor_b32 v{fa}, v{fa}, v{vR4}', f'v_lshlrev_b32 v{fa}, 5, v{fa}',
         f'v_lshl_add_u32 v{fa}, v{vC4}, 3, v{fa}', f'v_mad_u32_u24 v{fa}, v{fc}, s{sF1}, v{fa}',
         f's_mul_i32 s{sF0}, s{sK}, {4*XS}', f's_add_u32 s{sF0}, s{sF0}, {XB}', f'v_add_u32 v{vTRX}, s{sF0}, v{fa}']
    return L

def f_setup_dnn():
    sCPR, sMAG, sSWZ, sRS = 72, 73, 74, 75
    L = [f's_cmp_lt_u32 s{sK}, 2', f's_cselect_b32 s{sCPR}, 14, 12', f's_mov_b32 s{sF1}, 87382', f's_cselect_b32 s{sMAG}, 74899, s{sF1}',
         f's_cselect_b32 s{sSWZ}, 0, 2', f's_lshl_b32 s{sRS}, s{sCPR}, 4', f's_lshl_b32 s{sF0}, s{sI0}, 5', f's_movk_i32 s{sF2}, 832']
    L += [f's_sub_u32 s{sF2}, s{sF2}, s{sRS}']
    for u in range(7):
        L += [f'v_add_u32 v{fa}, {64*u}, v{vL}', f'v_mul_u32_u24 v{fc}, s{sMAG}, v{fa}', f'v_lshrrev_b32 v{fc}, 20, v{fc}',
              f'v_lshrrev_b32 v{fd}, 1, v{fc}', f'v_and_b32 v{fd}, s{sSWZ}, v{fd}', f'v_xor_b32 v{fa}, v{fa}, v{fd}',
              f'v_lshl_add_u32 v{fa}, v{fa}, 4, s{sF0}', f'v_mad_u32_u24 v{vDMA+u}, v{fc}, s{sF2}, v{fa}']
    L += [f's_lshl_b32 s{sDma}, s{sI0}, 10', f's_add_u32 s{sDma}, s{sDma}, {RB}']
    L += [f'v_lshrrev_b32 v{fb}, 1, v{vG}', f'v_and_b32 v{fc}, 1, v{vG}', f'v_lshlrev_b32 v{fa}, 4, v{fb}',
          f'v_lshl_add_u32 v{fa}, v{fc}, 2, v{fa}', f'v_add_u32 v{fa}, v{fa}, v{vR4}', f'v_mul_u32_u24 v{fa}, s{sRS}, v{fa}',
          f'v_lshl_add_u32 v{fa}, v{vC4}, 3, v{fa}', f'v_add_u32 v{fa}, s{sDma}, v{fa}',
          f's_lshl_b32 s{sF1}, s{sSWZ}, 4', f'v_lshlrev_b32 v{fd}, 5, v{fc}', f'v_and_b32 v{fd}, s{sF1}, v{fd}',
          f'v_add_u32 v{vT}, v{fa}, v{fd}', f'v_sub_u32 v{vT+1}, v{fa}, v{fd}', f'v_add_u32 v{vT+1}, 32, v{vT+1}',
          f's_lshl_b32 s{sF1}, s{sRS}, 3',
          f'v_add_u32 v{vT+2}, s{sF1}, v{vT}', f'v_add_u32 v{vT+3}, s{sF1}, v{vT+1}']
    L += [f'v_add_u32 v{vT+4+q}, {2*SLOT}, v{vT+q}' for q in range(4)]
    L += [f's_movk_i32 s{sF1}, {XS}', f'v_lshlrev_b32 v{fa}, 5, v{fb}', f'v_lshl_add_u32 v{fa}, v{fc}, 3, v{fa}',
          f'v_mad_u32_u24 v{fa}, v{vN}, s{sF1}, v{fa}', f'v_add_u32 v{vXF}, {XB}, v{fa}']
    return L

def acc_init_cin(e):
    I = e.I
    I(f'v_lshrrev_b32 v{fa}, 5, v{vL}')
    I(f'v_lshlrev_b32 v{fa}, 3, v{fa}')
    I(f'v_add_u32 v{fa}, {SM_A0}, v{fa}')
    ids = [I(f'ds_read_b64 {vr(XPA+2*g,2)}, v{fa} offset:{16*g}') for g in range(4)]
    e.wait_ds(ids[-1])
    for g in range(4):
        for q in range(2):
            I(f'v_lshlrev_b32 v{QI+4*g+2*q}, 16, v{XPA+2*g+q}')
            I(f'v_and_b32 v{QI+4*g+2*q+1}, 0xffff0000, v{XPA+2*g+q}')

def acc_init_dnn(e):
    I = e.I
    I(f's_lshl_b32 s{sF0}, s{sI0}, 5')
    I(f's_add_u32 s{sF0}, s{sF0}, {SM_B1}')
    I(f'v_lshlrev_b32 v{fb}, 1, v{vN}')
    I(f'v_add_u32 v{fb}, s{sF0}, v{fb}')
    B = 60
    for u in range(7):
        I(f'v_mov_b32 v{B+u}, 0')
        I(f'v_mov_b32 v{W2V+u}, 0')
    ids = []
    for u in range(7):
        ids.append(I(f'ds_read_u16_d16_hi v{B+u}, v{fb} offset:{32*u}'))
        ids.append(I(f'ds_read_u16_d16_hi v{W2V+u}, v{fb} offset:{832 + 32*u}'))
    for q, val in enumerate(('0xbdd2d3e8', '0xbdd2d3e8', '0xc0135761', '0xc0135761', '1.0', '1.0')):
        I(f'v_mov_b32 v{CST+q}, {val}')
    e.wait_ds(ids[-1])
    for u in range(7):
        for r in range(4):
            I(f'v_mov_b32 v{DACC+4*u+r}, v{B+u}')

def build(debug=None, opts=None):
    global ST
    opts = opts or {}
    e = Emit(); I = e.I
    a, b, c, d = TMP, TMP + 1, TMP + 2, TMP + 3
    touch = opts.get('touch', True)
    gapL = opts.get('gapL', 10)
    sRT = sC1
    I('s_cmp_ge_u32 s2, 256')
    I('s_cbranch_scc1 L_end')
    I('s_load_dwordx16 s[4:19], s[0:1], 0')
    I(f'v_lshrrev_b32 v1, 6, v0')
    I(f'v_and_b32 v{vL}, 63, v0')
    I(f'v_readfirstlane_b32 s{sW}, v1')
    I(f's_bfe_u32 s{sSL}, s2, 0x50003')
    ST = Stamps(debug in ('stamp', 'hstamp'))
    ST(e, 'start')
    if touch:
        I(f's_getpc_b64 {sp(sX0)}')
        I(f's_lshl_b32 s{sT0}, s{sSL}, 3')
        I(f's_add_u32 s{sT0}, s{sT0}, s{sW}')
        I(f's_lshl_b32 s{sT0}, s{sT0}, 7')
        I(f's_and_b32 s{sX0}, s{sX0}, 0xffffff00')
        I(f'v_mov_b32 v{a}, s{sT0}')
        I(f'global_load_dword v{vDUM}, v{a}, {sp(sX0)}')
    I(f's_and_b32 s{sK}, s{sW}, 3')
    I(f'v_lshrrev_b32 v{a}, 5, v{vL}')
    I(f'v_and_b32 v{b}, 1, v{vL}')
    I(f'v_lshlrev_b32 v{b}, 4, v{b}')
    I(f's_movk_i32 s{sC0}, 1352')
    I(f'v_bfe_u32 v{c}, v{vL}, 1, 4')
    I(f'v_mad_u32_u24 v{b}, v{a}, s{sC0}, v{b}')
    I(f'v_xor_b32 v{c}, v{c}, v{a}')
    I(f's_mul_i32 s{sI0}, s{sK}, 7')
    I(f's_cmp_eq_u32 s{sK}, 3')
    I(f's_cselect_b32 s{sT0}, 1, 0')
    I(f's_sub_u32 s{sI0}, s{sI0}, s{sT0}')
    I(f'v_and_b32 v{a}, 1, v{c}')
    I(f'v_lshl_add_u32 v{b}, v{a}, 5, v{b}')
    I(f's_mul_i32 s{sStage}, s{sK}, {STG}')
    I(f's_mul_i32 s{sT0}, s{sK}, 208')
    I(f's_add_u32 s{sT0}, s{sT0}, {2*CIN_L}')
    I(f's_mul_i32 s{sT1}, s{sI0}, 52')
    I(f's_add_u32 s{sT1}, s{sT1}, {CIN_L}')
    I(f's_movk_i32 s{sT2}, 832')
    I(f's_cmp_ge_u32 s{sW}, 4')
    I(f's_cselect_b32 s{sSrc}, s{sT1}, s{sT0}')
    I(f's_cselect_b32 s{sRT}, 208, s{sT2}')
    I(f's_movk_i32 s{sT2}, {WS2}')
    I(f's_cselect_b32 s{sT0}, {WS1}, s{sT2}')
    I(f's_add_u32 s{sStage}, s{sStage}, s{sT0}')
    I(f'v_lshrrev_b32 v{a}, 3, v{c}')
    I(f'v_mad_u32_u24 v{b}, v{a}, s{sRT}, v{b}')
    I(f'v_bfe_u32 v{c}, v{c}, 1, 2')
    I(f'v_mad_u32_u24 v{vSO}, v{c}, 52, v{b}')
    for tm in range(1, 4):
        I(f'v_xor_b32 v{a}, {tm}, v{c}')
        I(f'v_mad_u32_u24 v{vSO+tm}, v{a}, 52, v{b}')
    I(f's_lshl_b32 s{sT0}, s2, 4')
    I(f's_lshl_b32 s{sT1}, s{sK}, 2')
    I(f's_add_u32 s{sT0}, s{sT0}, s{sT1}')
    I(f's_mul_i32 s{sT0}, s{sT0}, 104')
    I(f'v_lshrrev_b32 v{d}, 1, v{vL}')
    I(f'v_lshlrev_b32 v{d}, 2, v{d}')
    I(f'v_add_u32 v{d}, s{sT0}, v{d}')
    I(f's_movk_i32 s{sT3}, 2704')
    I(f's_mov_b32 m0, s{sStage}')
    I(f's_movk_i32 s{sT2}, 1024')
    I(f's_cmp_ge_u32 s{sW}, 4')
    I('s_waitcnt lgkmcnt(0)')
    I(f's_mov_b32 s{S_CIN}, s8'); I(f's_mov_b32 s{S_CIN+1}, s9')
    I(f's_mov_b32 s{S_CIN+2}, {3*CIN_L}'); I(f's_mov_b32 s{S_CIN+3}, 0x20000')
    I('s_cbranch_scc0 L_eU')
    mk_srd(e, S_IDX, 4, 4096 * 104)
    for bb in range(4):
        I(f'buffer_load_dword v{vIDX+bb}, v{d}, {srd(S_IDX)}, 0 offen offset:{bb*104}')
    if opts.get('ttouch', 0):
        mk_srd(e, S_TAB, 6, 3200000)
        I(f's_mul_i32 s{sX0}, s2, 98')
        I(f's_mul_i32 s{sX0+1}, s{sK}, 25')
        I(f's_add_u32 s{sX0}, s{sX0}, s{sX0+1}')
        I(f'v_add_u32 v{a}, s{sX0}, v{vL}')
        I('s_mov_b32 exec_lo, 0x1ffffff'); I('s_mov_b32 exec_hi, 0')
        I(f'v_lshlrev_b32 v{a}, 7, v{a}')
        I(f'buffer_load_dword v{vDUM}, v{a}, {srd(S_TAB)}, 0 offen')
        I('s_mov_b64 exec, -1')
    I('s_branch L_eS')
    e.label('L_eU')
    mk_srd(e, S_W1, 12, 346112)
    if touch:
        I(f's_mul_i32 s{sT0}, s{sSL}, 85')
        I(f's_mul_i32 s{sT1}, s{sK}, 22')
        I(f's_add_u32 s{sT0}, s{sT0}, s{sT1}')
        I(f'v_add_u32 v{a}, s{sT0}, v{vL}')
        I(f's_mul_i32 s{sT0}, s{sSL}, 26')
        I(f's_mul_i32 s{sT1}, s{sK}, 7')
        I(f'v_lshlrev_b32 v{a}, 7, v{a}')
        I(f's_add_u32 s{sT0}, s{sT0}, s{sT1}')
        I(f'v_add_u32 v{d}, s{sT0}, v{vL}')
        I('s_mov_b32 exec_lo, 0x3fffff'); I('s_mov_b32 exec_hi, 0')
        I(f'v_lshlrev_b32 v{d}, 7, v{d}')
        I(f'buffer_load_dword v{vDUM}, v{a}, {srd(S_W1)}, 0 offen')
        I('s_mov_b32 exec_lo, 0x7f')
        I(f'buffer_load_dword v{vDUM}, v{d}, {srd(S_CIN)}, 0 offen')
        I('s_mov_b64 exec, -1')
    e.label('L_eS')
    for t in range(13):
        I(f'buffer_load_dwordx4 v{vSO + (t & 3)}, {srd(S_CIN)}, s{sSrc} offen lds')
        if t < 12:
            I(f's_add_u32 s{sSrc}, s{sSrc}, s{sT3}')
            I(f's_add_u32 m0, m0, s{sT2}')
    ST(e, 'b0')
    I(f's_load_dwordx2 s[20:21], s[0:1], 64')
    if debug == 'hstamp':
        I('s_load_dwordx2 s[22:23], s[0:1], 72')
    elif debug:
        I('s_load_dwordx2 s[22:23], s[0:1], 80')
    I(f's_load_dword s{sBO}, s[18:19], 0')
    I(f'v_and_b32 v{vN}, 15, v{vL}')
    I(f'v_lshrrev_b32 v{vG}, 4, v{vL}')
    I(f'v_bfe_u32 v{vR4}, v{vL}, 2, 2')
    I(f'v_and_b32 v{vC4}, 3, v{vL}')
    I(f's_cmp_lt_u32 s{sW}, 4')
    I('s_cbranch_scc1 L_Upath')

    ms = ['s[72:73]', 's[74:75]', 's[76:77]', 'vcc']
    I(f's_mov_b32 s{sE52}, -1')
    I(f's_mov_b32 s{sE52+1}, 0x000fffff')
    I(f'v_lshlrev_b32 v{b}, 4, v{vG}')
    I(f'v_mad_u32_u24 v{vFO}, v{vN}, 52, v{b}')
    I(f'v_cmp_gt_u32 vcc, 10, v{vN}')
    I(f'v_add_u32 v{vFO+1}, 832, v{vFO}')
    I(f'v_mov_b32 v{c}, 0x7ff00000')
    I(f'v_cndmask_b32 v{vFO+1}, v{c}, v{vFO+1}, vcc')
    I(f's_mul_i32 s{sT0}, s{sI0}, 1352')
    F = FQ()
    g0 = f_srd(S_A0, 10, 52) + f_srd(S_B1, 14, 832) + f_srd(S_W2, 16, 832) + [f'v_lshlrev_b32 v{fe}, 4, v{vL}']
    F.add(f'v_lshrrev_b32 v{fa}, 4, v{vL}', f'v_mul_u32_u24 v{fa}, {XS}, v{fa}', f'v_lshl_add_u32 v{fa}, v{vN}, 2, v{fa}',
          f's_mul_i32 s{sF0}, s{sK}, {4*XS}', f's_add_u32 s{sF0}, s{sF0}, {XB + 832}', f'v_add_u32 v{fa}, s{sF0}, v{fa}',
          f'v_cmp_gt_u32 vcc, 8, v{vN}', f'v_mov_b32 v{fb}, 0x3f803f80', f'v_mov_b32 v{fc}, {XCNT}', f'v_mov_b32 v{fd}, 0',
          f'v_cndmask_b32 v{fb}, 0, v{fb}, vcc', f'ds_write_b32 v{fa}, v{fb}', f'ds_write_b32 v{fc}, v{fd}')
    F.add(f'v_and_b32 v{fa}, 1, v{vL}', f'v_lshlrev_b32 v{fa}, 4, v{fa}', f'v_mov_b32 v{fb}, 0x3f80', f'v_lshlrev_b32 v{fb}, v{fa}, v{fb}',
          's_mov_b32 s73, 0', 's_mov_b32 s74, 0')
    for dw in range(4):
        m0_ = (3 << (2*dw)) | (3 << (16 + 2*dw + 8))
        m1_ = (3 << (2*dw)) | ((3 << 24) if dw == 0 else 0)
        F.add(f's_mov_b32 s72, {hex(m0_)}', f'v_cndmask_b32 v{EF+dw}, 0, v{fb}, s[72:73]',
              f's_mov_b32 s75, {hex(m1_)}', f'v_cndmask_b32 v{EF+4+dw}, 0, v{fb}, s[74:75]')
    F.add(*f_common_a())
    F.add(*f_setup_cin())
    def small_dma():
        I(f's_cmp_eq_u32 s{sK}, 0'); I('s_cbranch_scc0 L_sm1')
        I('s_mov_b32 exec_lo, 15'); I('s_mov_b32 exec_hi, 0')
        I(f's_mov_b32 m0, {SM_A0}'); I('s_nop 0')
        I(f'buffer_load_dwordx4 v{fe}, {srd(S_A0)}, 0 offen lds')
        I('s_branch L_smdone')
        e.label('L_sm1')
        I(f's_mov_b64 exec, {sp(sE52)}')
        I(f's_cmp_eq_u32 s{sK}, 1'); I('s_cbranch_scc0 L_sm2')
        I(f's_mov_b32 m0, {SM_B1}'); I('s_nop 0')
        I(f'buffer_load_dwordx4 v{fe}, {srd(S_B1)}, 0 offen lds')
        I('s_branch L_smdone')
        e.label('L_sm2')
        I(f's_cmp_eq_u32 s{sK}, 2'); I('s_cbranch_scc0 L_smdone')
        I(f's_mov_b32 m0, {SM_W2}'); I('s_nop 0')
        I(f'buffer_load_dwordx4 v{fe}, {srd(S_W2)}, 0 offen lds')
        e.label('L_smdone')
        I('s_mov_b64 exec, -1')
    for x in g0: I(x)
    small_dma()
    b1_at = opts.get('b1_at', 3)
    for u in range(7):
        if u == 6:
            I(f's_cmp_ge_u32 s{sK}, 2'); I('s_cbranch_scc1 L_w0done')
        if u == b1_at:
            I(f's_waitcnt vmcnt({0 if opts.get("safe_b1") else max(0, 2*u - 3)})')
            I('s_barrier')
            ST(e, 'b1')
        I(f's_add_u32 s{sT1}, s{sT0}, {u*1352}')
        for R in range(2):
            I(f'buffer_load_dwordx4 {vr(FF+8*u+4*R,4)}, v{vFO+R}, {srd(S_CIN)}, s{sT1} offen')
    e.label('L_w0done')
    mk_srd(e, S_TAB, 6, 3200000)
    I(f'v_and_b32 v{a}, 1, v{vL}')
    I(f'v_lshlrev_b32 v{a}, 4, v{a}')
    for bb in range(4):
        I(f'v_lshl_add_u32 v{vIDX+bb}, v{vIDX+bb}, 5, v{a}')
    I(f's_mul_i32 s{sT0}, s{sK}, {4*XS}')
    I(f's_mov_b64 exec, {sp(sE52)}')
    for bb in range(4):
        I(f's_add_u32 m0, s{sT0}, {XB + bb*XS}')
        I('s_nop 0')
        I(f'buffer_load_dwordx4 v{vIDX+bb}, {srd(S_TAB)}, 0 offen lds')
    I('s_mov_b64 exec, -1')
    ST(e, 'pre1')
    F.drain(e)
    prev = None
    for u in range(7):
        if u == 6:
            I(f's_cmp_ge_u32 s{sK}, 2'); I('s_cbranch_scc1 L_plast')
        n = 2 * (5 - u) + 4 if u <= 5 else 4
        I(f's_waitcnt vmcnt({0 if opts.get("safe_p") else n})')
        f = FF + 8 * u
        unit(e, f, f + 4, EF, EF + 4, DD[u & 1], None if prev is None else (DD[prev & 1], prev, FR_P))
        prev = u
    unit_store(e, DD[6 & 1], 6, FR_P)
    I('s_branch L_pend')
    e.label('L_plast')
    unit_store(e, DD[5 & 1], 5, FR_P)
    e.label('L_pend')
    ST(e, 'units')
    I('s_waitcnt lgkmcnt(0)')
    ST(e, 'fold')
    I('s_barrier')
    ST(e, 'b2')
    e.ds_q = []
    if debug == 'fold':
        I('s_branch L_dbg')
    else:
        acc_init_cin(e)
        main_cin(e, debug, opts)
        I('s_branch L_join')

    e.last = {}; e.ds_q = []
    e.label('L_Upath')
    I(f's_lshl_b32 s{sT2}, s{sK}, 3')
    I(f's_add_u32 s{sT2}, s{sT2}, 52')
    I(f's_add_u32 s{sT3}, s{sT2}, 32')
    I(f's_load_dwordx16 s[{SA}:{SA+15}], s[10:11], 104')
    I(f's_load_dwordx2 s[60:61], s[10:11], s{sT2}')
    I(f's_load_dwordx2 s[62:63], s[10:11], s{sT3}')
    for j in range(2):
        I(f'v_lshl_add_u32 v{fa}, v{vG}, 2, v{vR4}')
        if j:
            I(f'v_add_u32 v{fa}, 16, v{fa}'); I(f'v_min_u32 v{fa}, 25, v{fa}')
        I(f'v_and_b32 v{fb}, 7, v{fa}'); I(f'v_lshlrev_b32 v{fb}, 5, v{fb}'); I(f'v_lshl_add_u32 v{fb}, v{fa}, 9, v{fb}')
        I(f'v_lshl_add_u32 v{fb}, v{vC4}, 3, v{fb}'); I(f'v_add_u32 v{TAD+8*j}, s{sStage}, v{fb}')
        for x in range(1, 8):
            I(f'v_xor_b32 v{TAD+8*j+x}, {x*32}, v{TAD+8*j}')
    for u in range(4, 8):
        for R in range(2): I(f'v_mov_b32 v{UD+8*u+4*R}, 0')
    for dw in range(4): I(f'v_mov_b32 v{SELA+dw}, 0')
    I(f'v_lshlrev_b32 v{a}, 4, v{vL}')
    I(f'v_add_u32 v{a}, {HB}, v{a}')
    I(f'v_cmp_gt_u32 {sp(sMN10)}, 10, v{vN}')
    I(f's_lshl_b32 s{sF0}, s{sK}, 2')
    I(f's_lshl_b32 s{sF1}, 1, s{sF0}')
    I(f's_lshl_b32 s{sF2}, s{sF1}, 16')
    I('s_waitcnt lgkmcnt(0)')
    for q in (13, 14, 15): I(f's_mov_b32 s{SA+q}, 0')
    for g in range(4):
        if g < 2:
            I(f's_mov_b32 exec_lo, s{sF1 if g == 0 else sF2}'); I('s_mov_b32 exec_hi, 0') if g == 0 else None
        else:
            I('s_mov_b32 exec_lo, 0') if g == 2 else None
            I(f's_mov_b32 exec_hi, s{sF1 if g == 2 else sF2}')
        for dw, src in enumerate((2*g, 2*g+1, 8+2*g, 9+2*g)):
            I(f'v_mov_b32 v{SELA+dw}, s{SA+src}')
    I('s_mov_b64 exec, -1')
    I(f's_cmp_le_u32 s{sK}, 2'); I('s_cselect_b32 s62, s62, 0'); I(f's_cmp_le_u32 s{sK}, 1'); I('s_cselect_b32 s63, s63, 0')
    for q in range(4):
        I(f's_lshl_b32 s{SA+2*q}, s{60+q}, 16'); I(f's_and_b32 s{SA+2*q+1}, s{60+q}, 0xffff0000')
    I('s_waitcnt vmcnt(0)')
    ST(e, 'pre1')
    for x in f_common_a(): I(x)
    def frag_reads(u, nbuf=4, off=0):
        buf = UB + 8 * (u % nbuf)
        ids = []
        for R in range(2):
            pg = 2 * u + R
            for j in range(2):
                ids.append(I(f'ds_read_b64_tr_b16 {vr(buf+4*R+2*j,2)}, v{TAD+8*j+(pg&7)} offset:{off + (pg>>3)*256}'))
        return ids
    pend = {u: frag_reads(u) for u in range(3)}
    for u in range(8):
        if u == 4:
            I(f's_cmp_eq_u32 s{sK}, 3'); I('s_cbranch_scc1 L_u2done')
        if u == 6:
            I(f's_cmp_eq_u32 s{sK}, 2'); I('s_cbranch_scc1 L_u2done')
        if u + 3 < 8:
            pend[u + 3] = frag_reads(u + 3)
        e.wait_ds(pend[u][-1])
        buf = UB + 8 * (u % 4)
        for R in range(2):
            I(f'v_mfma_f32_16x16x32_bf16 {vr(UD+8*u+4*R,4)}, {vr(SELA,4)}, {vr(buf+4*R,4)}, 0')
    e.label('L_u2done')
    I(f's_mov_b32 s{sX0}, 0xffff')
    I(f's_mov_b32 s{sX0+1}, 0')
    I(f's_lshl_b32 s{sT0}, s{sK}, 4')
    for u in range(4):
        I(f'v_cvt_pk_bf16_f32 v{HF+u}, v{UD+16*u}, v{UD+16*u+8}')
    for u in range(8):
        I(f'v_cndmask_b32 v{UD+8*u+4}, 0, v{UD+8*u+4}, {sp(sMN10)}')
    I('s_mov_b32 exec_lo, 0x04000400'); I('s_mov_b32 exec_hi, 0x04000400')
    for u in range(8):
        I(f'v_mov_b32 v{UD+8*u+4}, s{SA+u}')
    I('s_mov_b64 exec, -1')
    for u in range(4):
        I(f'v_cvt_pk_bf16_f32 v{HF+4+u}, v{UD+16*u+4}, v{UD+16*u+12}')
    I(f's_lshl_b64 exec, {sp(sX0)}, s{sT0}')
    I(f'ds_write_b128 v{a}, {vr(HF,4)}')
    I(f'ds_write_b128 v{a}, {vr(HF+4,4)} offset:1024')
    I('s_mov_b64 exec, -1')
    I('s_waitcnt lgkmcnt(0)')
    I('s_barrier')
    ST(e, 'b1')
    I(f'ds_read_b128 {vr(HF,4)}, v{a} offset:0')
    I(f'ds_read_b128 {vr(HF+4,4)}, v{a} offset:1024')
    pend = {u: frag_reads(u, off=WS1 - WS2) for u in range(3)}
    prev = None
    for u in range(7):
        if u == 6:
            I(f's_cmp_ge_u32 s{sK}, 2'); I('s_cbranch_scc1 L_tlast')
        if u + 3 < 7:
            pend[u + 3] = frag_reads(u + 3, off=WS1 - WS2)
        e.wait_ds(pend[u][-1])
        g = UB + 8 * (u % 4)
        for dw in range(4):
            I(f'v_cndmask_b32 v{g+4+dw}, 0, v{g+4+dw}, {sp(sMN10)}')
        unit(e, g, g + 4, HF, HF + 4, DD[u & 1], None if prev is None else (DD[prev & 1], prev, FR_Q))
        prev = u
    unit_store(e, DD[6 & 1], 6, FR_Q)
    I('s_branch L_tend')
    e.label('L_tlast')
    unit_store(e, DD[5 & 1], 5, FR_Q)
    e.label('L_tend')
    ST(e, 'units')
    I('s_waitcnt lgkmcnt(0)')
    e.ds_q = []
    for x in f_setup_dnn(): I(x)
    dma_step(e, 0, 'U0')
    I(f'v_mov_b32 v{vXCA}, {XCNT}')
    I(f'v_mov_b32 v{vONE}, 1')
    acc_init_dnn(e)
    I('s_waitcnt lgkmcnt(0)')
    ST(e, 'fold')
    I('s_barrier')
    ST(e, 'b2')
    e.ds_q = []
    if debug == 'fold':
        e.label('L_dbg')
        I('s_waitcnt vmcnt(0)'); I('s_barrier')
        dump_lds(e)
        return finish(e, opts)
    main_dnn(e, debug, opts)
    final(e, debug, opts)
    return finish(e, opts)

def dma_step(e, step, tag):
    I = e.I
    slot = step % 4
    I(f's_mov_b32 s{sT3}, {step*26624}')
    for u in range(7):
        if u == 6:
            I(f's_cmp_ge_u32 s{sK}, 2'); I(f's_cbranch_scc1 L_dma_{tag}')
        I(f's_add_u32 m0, s{sDma}, {slot*SLOT + u*1024}')
        I('s_nop 0')
        I(f'buffer_load_dwordx4 v{vDMA+u}, {srd(S_W1)}, s{sT3} offen lds')
    e.label(f'L_dma_{tag}')

def unit(e, X0, X1, Y0, Y1, D, prev):
    I = e.I
    mf = []
    def m(dd, A, B, first):
        mf.append(f'v_mfma_f32_16x16x32_bf16 {vr(dd,4)}, {vr(A,4)}, {vr(B,4)}, ' + ('0' if first else vr(dd, 4)))
    m(D, X0, Y0, True); m(D + 4, X1, Y0, True); m(D + 8, X1, Y1, True)
    m(D, Y0, X0, False); m(D + 4, Y1, X0, False); m(D + 8, Y1, X1, False)
    fill = []
    if prev is not None:
        PD, pu, setbase = prev
        for ti in range(3):
            fill.append(f'v_cvt_pk_bf16_f32 v{DC+2*ti}, v{PD+4*ti}, v{PD+4*ti+1}')
            fill.append(f'v_cvt_pk_bf16_f32 v{DC+2*ti+1}, v{PD+4*ti+2}, v{PD+4*ti+3}')
        for ti in range(3):
            fill.append(f'ds_write_b32 v{vWA+ti}, v{DC+2*ti} offset:{setbase + pu*16}')
            fill.append(f'ds_write_b32 v{vWB+ti}, v{DC+2*ti+1} offset:{setbase + pu*16}')
    for i in range(6):
        I(mf[i])
        for f in fill[2*i:2*i+2]:
            I(f)

def unit_store(e, D, u, setbase):
    I = e.I
    for ti in range(3):
        I(f'v_cvt_pk_bf16_f32 v{DC+2*ti}, v{D+4*ti}, v{D+4*ti+1}')
        I(f'v_cvt_pk_bf16_f32 v{DC+2*ti+1}, v{D+4*ti+2}, v{D+4*ti+3}')
    for ti in range(3):
        I(f'ds_write_b32 v{vWA+ti}, v{DC+2*ti} offset:{setbase + u*16}')
        I(f'ds_write_b32 v{vWB+ti}, v{DC+2*ti+1} offset:{setbase + u*16}')

def dump_lds(e):
    I = e.I
    I('v_mbcnt_lo_u32_b32 v1, -1, 0'); I('v_mbcnt_hi_u32_b32 v1, -1, v1')
    I(f's_lshl_b32 s{sT0}, s{sW}, 10')
    I('v_lshlrev_b32 v1, 4, v1')
    I(f'v_add_u32 v1, s{sT0}, v1')
    I(f's_mul_i32 s{sT1}, s2, {LDS_TOTAL}')
    I(f'v_add_u32 v2, s{sT1}, v1')
    I(f's_mov_b32 s{sT2}, 0')
    e.label('L_dump')
    I('ds_read_b128 v[4:7], v1')
    I('s_waitcnt lgkmcnt(0)')
    I('global_store_dwordx4 v2, v[4:7], s[22:23]')
    I('s_waitcnt vmcnt(0)')
    I('v_add_u32 v1, 8192, v1'); I('v_add_u32 v2, 8192, v2')
    I(f's_add_u32 s{sT2}, s{sT2}, 1')
    I(f's_cmp_lt_u32 s{sT2}, 20')
    e.raw('    s_cbranch_scc1 L_dump')

def main_cin(e, debug, opts):
    I = e.I
    steps = step_list()
    hs = opts.get('hsched', [3, 5, 5, 5, 5, 5, 5, 5, 5, 5, 5, 3, 0])
    assert sum(hs) == 56 and len(hs) == 13
    halves = [(s_, X_) for s_ in range(28) for X_ in range(2)]
    sc = []; si = 0
    for n in hs:
        sc.append(halves[si:si + n]); si += n
    XR = [XA, XBB]; ZZ = [ZA, ZBB]
    af_ids = {}
    def af_read(s):
        buf = AF[s & 1]
        I(f'ds_read_b128 {vr(buf,4)}, v{vAF} offset:{FR_P + s*FST}')
        af_ids[s] = I(f'ds_read_b128 {vr(buf+4,4)}, v{vAF} offset:{FR_Q + s*FST}')
    def z_half(X, s, pi):
        aa, bb = steps[s]
        mod = ' div:2' if aa == bb else ''
        t = ZT + 4 * pi
        x = XR[X]
        for qi in range(4):
            if mod: I(f'v_mul_f32_e64 v{t+qi}, v{x+4*aa+pi}, v{x+4*bb+qi}{mod}')
            else: I(f'v_mul_f32 v{t+qi}, v{x+4*aa+pi}, v{x+4*bb+qi}')
        z = ZZ[X][s & 1]
        I(f'v_cvt_pk_bf16_f32 v{z+2*pi}, v{t}, v{t+1}')
        I(f'v_cvt_pk_bf16_f32 v{z+2*pi+1}, v{t+2}, v{t+3}')
    def epilogue():
        t = TMP
        for X in range(2):
            P, Q = ACC[('P', X)], ACC[('Q', X)]
            t = TMP + 4 * X
            I(f'v_mul_f32 v{t}, v{P}, v{Q}')
            I(f'v_mul_f32 v{t+1}, v{P+12}, v{Q+12}')
            I(f'v_mul_f32 v{t+2}, v{P+1}, v{Q+1}')
            I(f'v_fmac_f32 v{t+1}, v{P+13}, v{Q+13}')
            for r in range(2, 12):
                I(f'v_fmac_f32 v{t + 2*(r&1)}, v{P+r}, v{Q+r}')
        I(f'v_cmp_gt_u32 vcc, 32, v{vL}')
        for X in range(2):
            t = TMP + 4 * X
            I(f'v_add_f32 v{t}, v{t}, v{t+2}')
        for X in range(2):
            t = TMP + 4 * X
            I(f'v_cndmask_b32 v{t+1}, 0, v{t+1}, vcc')
        for X in range(2):
            t = TMP + 4 * X
            I(f'v_add_f32 v{t}, v{t}, v{t+1}')
        t = TMP
        I(f'v_and_b32 v{t+2}, 1, v{vG}')
        I(f'v_lshlrev_b32 v{t+2}, 6, v{t+2}')
        I(f'v_lshrrev_b32 v{t+3}, 1, v{vG}')
        I(f'v_lshl_add_u32 v{t+2}, v{t+3}, 2, v{t+2}')
        I(f's_lshl_b32 s{sT0}, s{sK}, 8')
        I(f's_add_u32 s{sT0}, s{sT0}, {RED + 16}')
        I(f'v_add_u32 v{t+2}, s{sT0}, v{t+2}')
        for sh in (8, 4, 2, 1):
            for X in range(2):
                tt = TMP + 4 * X
                I(f'v_add_f32_dpp v{tt}, v{tt}, v{tt} row_ror:{sh} row_mask:0xf bank_mask:0xf')
        I(f's_mov_b32 exec_lo, 0x00010001'); I(f's_mov_b32 exec_hi, 0x00010001')
        I(f'ds_write_b32 v{t+2}, v{TMP}')
        I(f'ds_write_b32 v{t+2}, v{TMP+4} offset:128')
        I('s_mov_b64 exec, -1')
    for j in range(13):
        e.comment(f'---- CIN interval {j}')
        if j == 0:
            I('s_waitcnt vmcnt(0)')
            I('s_nop 15')
            I('s_barrier')
        ST(e, f'it{j}')
        if j == 0:
            xa = [I(f'ds_read_b64_tr_b16 {vr(XPA+2*q,2)}, v{vTRX} offset:{128*q}') for q in range(7)]
            xb = [I(f'ds_read_b64_tr_b16 {vr(XPB+2*q,2)}, v{vTRX} offset:{2*XS + 128*q}') for q in range(7)]
            I(f'v_mov_b32 v{TMP}, {XCNT}'); I(f'v_mov_b32 v{TMP+1}, 1')
            I('s_waitcnt lgkmcnt(0)')
            I('s_mov_b64 exec, 1')
            I(f'ds_add_u32 v{TMP}, v{TMP+1}')
            I('s_mov_b64 exec, -1')
            if opts.get('safe_x'): I('s_barrier')
            af_read(0); af_read(1)
            for q in range(7):
                for h in range(2):
                    I(f'v_lshlrev_b32 v{XA+4*q+2*h}, 16, v{XPA+2*q+h}')
                    I(f'v_and_b32 v{XA+4*q+2*h+1}, 0xffff0000, v{XPA+2*q+h}')
            z_half(0, 0, 0); z_half(0, 0, 1)
            for q in range(7):
                for h in range(2):
                    I(f'v_lshlrev_b32 v{XBB+4*q+2*h}, 16, v{XPB+2*q+h}')
                    I(f'v_and_b32 v{XBB+4*q+2*h+1}, 0xffff0000, v{XPB+2*q+h}')
            z_half(1, 0, 0); z_half(1, 0, 1)
        for (s, X) in ([] if opts.get('no_cin') else sc[j]):
            if X == 0: e.wait_ds(af_ids[s])
            buf = AF[s & 1]
            z = ZZ[X][s & 1]
            P, Q = ACC[('P', X)], ACC[('Q', X)]
            I(f'v_mfma_f32_32x32x16_bf16 {vr(P,16)}, {vr(buf,4)}, {vr(z,4)}, ' + ('0' if s == 0 else vr(P,16)))
            if s + 1 < 28: z_half(X, s + 1, 0)
            I(f'v_mfma_f32_32x32x16_bf16 {vr(Q,16)}, {vr(buf+4,4)}, {vr(z,4)}, ' + (vr(QI,16) if s == 0 else vr(Q,16)))
            if X == 1 and s + 2 < 28: af_read(s + 2)
            if s + 1 < 28: z_half(X, s + 1, 1)
        if (not sc[j]) and j > 0 and sc[j-1]:
            epilogue()
    if sc[12]:
        epilogue()
    I('s_waitcnt lgkmcnt(0)')
    ST(e, 'gelu')

def main_dnn(e, debug, opts):
    I = e.I
    e.last = {}
    I(f's_cmp_ge_u32 s{sK}, 2')
    I('s_cselect_b64 vcc, -1, 0')
    dma_step(e, 1, 'C1')
    dma_step(e, 2, 'C2')
    def dma_one(step, u, tag, between=None):
        if u == 6: I(f's_cbranch_vccnz L_d6_{tag}')
        I(f's_add_u32 m0, s{sDma}, {(step % 4)*SLOT + u*1024}')
        if between: between()
        else: I('s_nop 0')
        I(f'buffer_load_dwordx4 v{vDMA+u}, {srd(S_W1)}, s{sT3} offen lds')
        if u == 6: e.label(f'L_d6_{tag}')
    def mf(j, u):
        I(f'v_mfma_f32_16x16x32_bf16 {vr(DACC+4*u,4)}, {vr(XF+4*j,4)}, {vr(WF[j&1]+4*u,4)}, {vr(DACC+4*u,4)}')
    plan = {j: [] for j in range(13)}
    plan[1] = [3, 4]
    for j in range(2, 10): plan[j] = [j + 3]
    order = [(st_, u) for st_ in range(3) for u in range(7)]
    tops = {}
    for j in range(13):
        tops[j] = list(order)
        order += [(st_, u) for st_ in plan[j] for u in range(7)]
    def later_count(j, cls7):
        seq = [x for x in tops[j] if cls7 or x[1] < 6]
        jj_ = min(j + 1, 12)
        last = max(i for i, x in enumerate(seq) if x[0] == jj_)
        return len(seq) - 1 - last
    for j in range(13):
        e.comment(f'---- DNN interval {j}')
        n7, n6 = later_count(j, True), later_count(j, False)
        if opts.get('safe_dv'): n7 = n6 = 0
        mg = opts.get('vm_margin', 0)
        n7 = max(0, n7 - mg); n6 = max(0, n6 - mg)
        nopd = opts.get('vm_nop', 0)
        if n7 != n6:
            I(f's_cbranch_vccnz L_vw6_{j}')
            I(f's_waitcnt vmcnt({n7})')
            I(f's_branch L_vwd_{j}')
            e.label(f'L_vw6_{j}')
            I(f's_waitcnt vmcnt({n6})')
            e.label(f'L_vwd_{j}')
        else:
            I(f's_waitcnt vmcnt({n7})')
        for _ in range(nopd): I('s_nop 15')
        if j == 0:
            I('s_waitcnt lgkmcnt(0)')
            I('s_barrier')
        ST(e, f'it{j}')
        if j == 0:
            for q in range(13):
                I(f'ds_read_b64 {vr(XF+4*q,2)}, v{vXF} offset:{64*q}')
                I(f'ds_read_b64 {vr(XF+4*q+2,2)}, v{vXF} offset:{64*q+16}')
            I('s_waitcnt lgkmcnt(0)')
            I('s_mov_b64 exec, 1')
            I(f'ds_add_u32 v{vXCA}, v{vONE}')
            I('s_mov_b64 exec, -1')
            if opts.get('safe_x'): I('s_barrier')
        slot = j % 4
        tb = vT + 4 * (slot >> 1)
        for u in range(7):
            if u == 6: I(f's_cbranch_vccnz L_r6_{j}')
            for jj in range(2):
                I(f'ds_read_b64_tr_b16 {vr(WF[j&1]+4*u+2*jj,2)}, v{tb+2*jj+(u&1)} offset:{(slot&1)*SLOT + (u>>1)*64}')
        e.label(f'L_r6_{j}')
        if j == 1:
            e.label('L_xspin')
            I(f'ds_read_b32 v{vXCT}, v{vXCA}')
            I('s_waitcnt lgkmcnt(0)')
            I(f'v_readfirstlane_b32 s{sT0}, v{vXCT}')
            I(f's_cmp_ge_u32 s{sT0}, 8')
            e.raw('    s_cbranch_scc0 L_xspin')
        if j >= 1:
            if j > 1: I('s_waitcnt lgkmcnt(0)' if opts.get('safe_dl') else 's_waitcnt lgkmcnt(12)')
            steps_ = [] if opts.get('no_dma') else plan[j]
            first = steps_[0] if steps_ else None
            if first is not None: I(f's_mov_b32 s{sT3}, {first*26624}')
            for u in range(7):
                if u == 6:
                    I(f's_cbranch_vccnz L_m6_{j}')
                    if first is not None:
                        I(f's_add_u32 m0, s{sDma}, {(first % 4)*SLOT + u*1024}'); mf(j - 1, u)
                        I(f'buffer_load_dwordx4 v{vDMA+u}, {srd(S_W1)}, s{sT3} offen lds')
                    else: mf(j - 1, u)
                    e.label(f'L_m6_{j}')
                elif first is not None:
                    dma_one(first, u, f'{j}', between=lambda: mf(j - 1, u))
                else:
                    mf(j - 1, u)
            for st_ in steps_[1:]:
                I(f's_mov_b32 s{sT3}, {st_*26624}')
                for u in range(7): dma_one(st_, u, f'{j}_{st_}')
    I('s_waitcnt lgkmcnt(0)')
    for u in range(7):
        if u == 6: I('s_cbranch_vccnz L_m6_end')
        mf(12, u)
    e.label('L_m6_end')
    ST(e, 'gelu')
    G = TMP
    T = TMP + 4
    C1, C0, ONE = CST, CST + 2, CST + 4
    def gelu(pairs, first):
        def each(fn):
            for k_, (x, u, h) in enumerate(pairs):
                fn(x, T + 2 * k_, u, h, k_)
        each(lambda x, t, u, h, k_: I(f'v_pk_mul_f32 {vr(t,2)}, {vr(x,2)}, {vr(x,2)}'))
        each(lambda x, t, u, h, k_: I(f'v_pk_fma_f32 {vr(t,2)}, {vr(t,2)}, {vr(C1,2)}, {vr(C0,2)}'))
        each(lambda x, t, u, h, k_: I(f'v_pk_mul_f32 {vr(t,2)}, {vr(t,2)}, {vr(x,2)}'))
        each(lambda x, t, u, h, k_: (I(f'v_exp_f32 v{t}, v{t}'), I(f'v_exp_f32 v{t+1}, v{t+1}')))
        each(lambda x, t, u, h, k_: I(f'v_pk_mul_f32 {vr(x,2)}, {vr(x,2)}, {vr(W2V + (u & ~1), 2)} op_sel:[0,{u&1}] op_sel_hi:[1,{u&1}]'))
        each(lambda x, t, u, h, k_: I(f'v_pk_add_f32 {vr(t,2)}, {vr(t,2)}, {vr(ONE,2)}'))
        each(lambda x, t, u, h, k_: (I(f'v_rcp_f32 v{t}, v{t}'), I(f'v_rcp_f32 v{t+1}, v{t+1}')))
        def last(x, t, u, h, k_):
            if first and k_ < 2: I(f'v_pk_mul_f32 {vr(G+2*h,2)}, {vr(t,2)}, {vr(x,2)}')
            else: I(f'v_pk_fma_f32 {vr(G+2*h,2)}, {vr(t,2)}, {vr(x,2)}, {vr(G+2*h,2)}')
        each(last)
    allp = [(DACC + 4*u + 2*h, u, h) for u in range(6) for h in range(2)]
    gelu(allp[0:4], True); gelu(allp[4:8], False); gelu(allp[8:12], False)
    I(f's_cmp_ge_u32 s{sK}, 2'); I(f's_cbranch_scc1 L_g6')
    gelu([(DACC + 24 + 2*h, 6, h) for h in range(2)], False)
    e.label('L_g6')
    I(f'v_lshlrev_b32 v{T}, 8, v{vG}')
    I(f's_lshl_b32 s{sT0}, s{sK}, 2')
    I(f's_add_u32 s{sT0}, s{sT0}, {RED}')
    I(f'v_add_u32 v{T}, s{sT0}, v{T}')
    for sh in (8, 4, 2, 1):
        for r in range(4):
            I(f'v_add_f32_dpp v{G+r}, v{G+r}, v{G+r} row_ror:{sh} row_mask:0xf bank_mask:0xf')
    I(f's_mov_b32 exec_lo, 0x00010001'); I(f's_mov_b32 exec_hi, 0x00010001')
    for r in range(4):
        I(f'ds_write_b32 v{T}, v{G+r} offset:{64*r}')
    I('s_mov_b64 exec, -1')
    I('s_waitcnt lgkmcnt(0)')

def final(e, debug, opts):
    I = e.I
    T = TMP + 4
    e.label('L_join')
    e.last = {}
    if opts.get('delay_end'):
        I(f's_mov_b32 s{sT0}, 0')
        e.label('L_dly')
        for _ in range(8): I('s_nop 15')
        I(f's_add_u32 s{sT0}, s{sT0}, 1')
        I(f's_cmp_lt_u32 s{sT0}, {opts["delay_end"]}')
        e.raw('    s_cbranch_scc1 L_dly')
    I('s_barrier')
    if debug == 'red':
        dump_lds(e); return
    if debug == 'stamp':
        ST(e, 'fin')
        ST.flush(e)
        open('stamp_names.txt', 'w').write(' '.join(ST.names))
        return
    if debug == 'hstamp':
        ST(e, 'fin')
        sel = opts.get('hsel', ['b0', 'pre1', 'b1', 'units', 'b2', 'it0', 'it12', 'fin'])
        I(f's_cmp_eq_u32 s2, {opts.get("hwg", 128)}'); I('s_cbranch_scc0 L_nohs')
        I(f's_and_b32 s{sT0}, s{sW}, 3'); I(f's_cmp_eq_u32 s{sT0}, 0'); I('s_cbranch_scc0 L_nohs')
        I('s_waitcnt lgkmcnt(0)')
        r0 = STAMP_SLOTS[0]
        for i, nm in enumerate(sel):
            r = STAMP_SLOTS[ST.names.index(nm)]
            I(f's_sub_u32 s{sT1}, s{r}, s{r0}')
            I(f'v_writelane_b32 v200, s{sT1}, {i}')
        I(f's_lshl_b32 s{sT0}, s{sW}, 3')
        I(f'v_lshlrev_b32 v201, 2, v{vL}')
        I(f'v_add_u32 v201, s{sT0}, v201')
        I('s_mov_b32 exec_lo, 0xff'); I('s_mov_b32 exec_hi, 0')
        I('global_store_dword v201, v200, s[22:23]')
        I('s_mov_b64 exec, -1')
        I('s_waitcnt vmcnt(0)')
        e.label('L_nohs')
    I(f's_cmp_lg_u32 s{sW}, 0'); I('s_cbranch_scc1 L_end')
    I('s_mov_b32 exec_lo, 0xffff'); I('s_mov_b32 exec_hi, 0')
    I(f'v_lshlrev_b32 v{T}, 6, v{vL}')
    I(f'v_add_u32 v{T}, {RED}, v{T}')
    I(f'ds_read_b128 {vr(8,4)}, v{T}')
    I(f'ds_read_b64 {vr(12,2)}, v{T} offset:16')
    if debug == 'redout':
        I('s_waitcnt lgkmcnt(0)')
        I(f's_lshl_b32 s{sT0}, s2, 9')
        I(f'v_lshlrev_b32 v20, 5, v{vL}')
        I(f'v_add_u32 v20, s{sT0}, v20')
        I('global_store_dwordx4 v20, v[8:11], s[22:23]')
        I('global_store_dwordx2 v20, v[12:13], s[22:23] offset:16')
        I('s_waitcnt vmcnt(0)')
    I(f's_mov_b32 s{S_OUT}, s20'); I(f's_mov_b32 s{S_OUT+1}, s21')
    I(f's_mov_b32 s{S_OUT+2}, 8192'); I(f's_mov_b32 s{S_OUT+3}, 0x20000')
    I(f's_lshl_b32 s{sBO}, s{sBO}, 16')
    I(f's_lshl_b32 s{sT0}, s2, 5')
    I(f'v_lshlrev_b32 v{T+1}, 1, v{vL}')
    I(f'v_add_u32 v{T+1}, s{sT0}, v{T+1}')
    I('s_waitcnt lgkmcnt(0)')
    I('v_add_f32 v8, v8, v9'); I('v_add_f32 v10, v10, v11'); I('v_add_f32 v12, v12, v13')
    I('v_add_f32 v8, v8, v10')
    I(f'v_add_f32 v12, s{sBO}, v12')
    I('v_add_f32 v8, v8, v12')
    I('v_cvt_pk_bf16_f32 v8, v8, v8')
    I(f'buffer_store_short v8, v{T+1}, {srd(S_OUT)}, 0 offen')
    I('s_waitcnt vmcnt(0)')

def finish(e, opts):
    e.label('L_end')
    body = e.text()
    hdr = f"""; xDeepFM (CIN + DNN) fused kernel, generated by my own generator script.
; One workgroup = 16 batch rows, 8 waves.  CIN layers are folded at run time into two quadratic forms.
; @launch grid=(256,1,1) block=(512,1,1) lds={LDS_TOTAL}
.amdgcn_target "amdgcn-amd-amdhsa--gfx950"
.text
.globl {KN}
.p2align 8
.type {KN},@function
{KN}:
"""
    ftr = f"""    s_endpgm
.section .rodata,"a"
.p2align 6
.amdhsa_kernel {KN}
  .amdhsa_next_free_vgpr 256
  .amdhsa_next_free_sgpr 102
  .amdhsa_accum_offset 256
  .amdhsa_group_segment_fixed_size 0
  .amdhsa_kernarg_size 88
  .amdhsa_user_sgpr_count 2
  .amdhsa_user_sgpr_kernarg_segment_ptr 1
  .amdhsa_system_sgpr_workgroup_id_x 1
  .amdhsa_ieee_mode 0
.end_amdhsa_kernel
"""
    return hdr + body + ftr

if __name__ == '__main__':
    dbg = sys.argv[2] if len(sys.argv) > 2 and sys.argv[2] != 'none' else None
    opts = eval(sys.argv[3]) if len(sys.argv) > 3 else {}
    out = build(dbg, opts)
    open(sys.argv[1], 'w').write(out)
    print('wrote', sys.argv[1], len(out), 'bytes')
```

```python
import sys, os
from emit import Emit

KN = "standalone__deep_cross_xdeepfm__recsys_kernel"

FST = 848; FR_P = 0; FR_Q = 28 * FST
RB = 47616; SLOT = 26624; WROW = 832
WS2 = RB + SLOT - 4 * 13312
WS1 = RB + SLOT
STG = 13312
XB = RB + 3 * SLOT; XS = 912
HB = RB + 4 * SLOT
SM = HB + 2048; SM_A0 = SM; SM_B1 = SM + 64; SM_W2 = SM + 896
RED = SM + 1728
XCNT = RED + 1024
LDS_TOTAL = 163840
OOB_LDS = 0x40000
CIN_L = 35152
assert WS1 % 512 == 0 and 28 * FST * 2 <= RB and RED + 1024 <= LDS_TOTAL and WS2 % 512 == 0 and WS2 >= 0

S_IDX, S_TAB, S_CIN, S_W1 = 24, 28, 32, 36
S_A0, S_B1, S_W2, S_OUT = 40, 52, 56, 60
sA2 = 96
sW, sK = 64, 65
sBO = 66
sI0 = 67
sT0, sT1, sT2, sT3 = 68, 69, 70, 71
sMN10 = 78
sE52 = 80
sStage, sSrc = 82, 83
sC0, sC1, sC2 = 84, 85, 86
sX0 = 88
sF0, sF1, sF2 = 84, 85, 86
sDma = 92
sSL = 93
SA = 44
def srd(n): return f"s[{n}:{n+3}]"
def sp(n): return f"s[{n}:{n+1}]"
def vr(a, n=1): return f"v{a}" if n == 1 else f"v[{a}:{a+n-1}]"

vL = 0
TMP = 122
fa, fb, fc, fd, fe = 132, 133, 134, 135, 136
vN, vG, vR4, vC4 = 142, 143, 144, 145
vWA = 146
vWB = 149
DD = [152, 164]
DC = 176
vSO = 182
vDUM = 186
UD = 2; SELA = 212; HF = 204
TAD = 188
UB = 68
FF = 2; EF = 60; vIDX = 68; vFO = 72
XA = 2; XBB = 30
ZA = [58, 62]; ZBB = [66, 70]
ZT = 74
AF = [82, 90]
vAF = 100; vTRX = 101
XPA = 104; XPB = 152
QI = 166
ACC = {('P', 0): 192, ('Q', 0): 208, ('P', 1): 224, ('Q', 1): 240}
vDMA = 100
vT = 108
vXF = 116
WF = [2, 30]
XF = 152
DACC = 208
W2V = 236
CST = 244
vXCA = 118; vONE = 119; vXCT = 120

STAMP_SLOTS = [94, 96, 98, 100, 90, 40, 42] + list(range(44, 60, 2)) + [24, 26, 28, 30, 4, 6, 8, 10, 14, 16, 12, 18]
class Stamps:
    def __init__(self, on): self.on = on; self.names = []
    def __call__(self, e, name):
        if not self.on: return
        if name in self.names: i = self.names.index(name)
        else:
            i = len(self.names); self.names.append(name)
        r = STAMP_SLOTS[i]
        e.I(f's_memtime s[{r}:{r+1}]')
    def flush(self, e):
        if not self.on: return
        I = e.I
        I('s_mov_b64 exec, -1')
        I('s_waitcnt vmcnt(0) lgkmcnt(0)')
        for i in range(len(self.names)):
            I(f'v_writelane_b32 v200, s{STAMP_SLOTS[i]}, {i}')
        I('s_memrealtime s[68:69]')
        I('s_waitcnt lgkmcnt(0)')
        I('v_writelane_b32 v200, s68, 31')
        I('v_mbcnt_lo_u32_b32 v201, -1, 0'); I('v_mbcnt_hi_u32_b32 v201, -1, v201')
        I('v_lshlrev_b32 v201, 2, v201')
        I(f's_lshl_b32 s70, s2, 3'); I(f's_add_u32 s70, s70, s{sW}'); I('s_lshl_b32 s70, s70, 8')
        I('v_add_u32 v201, s70, v201')
        I('global_store_dword v201, v200, s[22:23]')
        I('s_waitcnt vmcnt(0)')
ST = Stamps(False)

def step_list():
    return [(a, b) for b in range(7) for a in range(b + 1)]

def mk_srd(e, n, lo, size, add=0):
    I = e.I
    if add:
        I(f's_add_u32 s{n}, s{lo}, {add}')
        I(f's_addc_u32 s{n+1}, s{lo+1}, 0')
    else:
        I(f's_mov_b32 s{n}, s{lo}')
        I(f's_mov_b32 s{n+1}, s{lo+1}')
    I(f's_mov_b32 s{n+2}, {size}')
    I(f's_mov_b32 s{n+3}, 0x20000')


class FQ:
    def __init__(self): self.q = []
    def add(self, *items): self.q.extend(items)
    def drain(self, e, n=10**9):
        k = 0
        while self.q and k < n:
            it = self.q.pop(0)
            if isinstance(it, list):
                for x in it: e.I(x)
                k += len(it)
            else:
                e.I(it); k += 1

def f_srd(n, lo, size):
    return [f's_mov_b32 s{n}, s{lo}', f's_mov_b32 s{n+1}, s{lo+1}', f's_mov_b32 s{n+2}, {size}', f's_mov_b32 s{n+3}, 0x20000']

def f_common_a():
    L = [f'v_bfe_u32 v{fa}, v{vN}, 1, 1', f'v_mul_u32_u24 v{fb}, 420, v{fa}', f'v_and_b32 v{fc}, 1, v{vN}',
         f'v_lshl_add_u32 v{fb}, v{fc}, 3, v{fb}', f's_lshl_b32 s{sF0}, s{sI0}, 4', f'v_lshrrev_b32 v{fc}, 2, v{vN}',
         f'v_add_u32 v{fa}, 1, v{vG}', f'v_mul_u32_u24 v{fa}, v{fa}, v{vG}', f'v_cmp_le_u32 s[72:73], v{fc}, v{vG}',
         f'v_lshrrev_b32 v{fa}, 1, v{fa}', f'v_cmp_ge_u32 s[74:75], 2, v{vG}', f'v_add_u32 v{fa}, v{fa}, v{fc}',
         f's_movk_i32 s{sF2}, {FST}', f'v_add_u32 v{fb}, s{sF0}, v{fb}', f'v_lshlrev_b32 v{fe}, 2, v{vL}',
         f'v_mad_u32_u24 v{fd}, v{fa}, s{sF2}, v{fb}', f's_and_b64 s[76:77], s[72:73], s[74:75]', f'v_add_u32 v{fe}, {OOB_LDS}, v{fe}',
         f's_movk_i32 s{sF1}, {4*FST}', f'v_cndmask_b32 v{vWA}, v{fe}, v{fd}, s[72:73]',
         f'v_mad_u32_u24 v{fd}, v{vG}, s{sF1}, v{fd}', f'v_xor_b32 v{vWB}, 4, v{vWA}', f'v_add_u32 v{fd}, {10*FST}, v{fd}',
         f'v_cndmask_b32 v{vWA+1}, v{fe}, v{fd}, s[74:75]', f'v_add_u32 v{fd}, {4*FST}, v{fd}', f'v_xor_b32 v{vWB+1}, 4, v{vWA+1}',
         f'v_cndmask_b32 v{vWA+2}, v{fe}, v{fd}, s[76:77]', f'v_xor_b32 v{vWB+2}, 4, v{vWA+2}']
    return L

def f_setup_cin():
    L = [f'v_and_b32 v{fa}, 31, v{vL}', f'v_lshlrev_b32 v{fa}, 4, v{fa}', f'v_lshrrev_b32 v{fb}, 5, v{vL}',
         f's_movk_i32 s{sF1}, 416', f'v_mad_u32_u24 v{vAF}, v{fb}, s{sF1}, v{fa}',
         f'v_lshrrev_b32 v{fb}, 1, v{vG}', f'v_and_b32 v{fc}, 1, v{vG}', f's_movk_i32 s{sF1}, {XS}',
         f'v_lshlrev_b32 v{fa}, 1, v{fb}', f'v_xor_b32 v{fa}, v{fa}, v{vR4}', f'v_lshlrev_b32 v{fa}, 5, v{fa}',
         f'v_lshl_add_u32 v{fa}, v{vC4}, 3, v{fa}', f'v_mad_u32_u24 v{fa}, v{fc}, s{sF1}, v{fa}',
         f's_mul_i32 s{sF0}, s{sK}, {4*XS}', f's_add_u32 s{sF0}, s{sF0}, {XB}', f'v_add_u32 v{vTRX}, s{sF0}, v{fa}']
    return L

def f_setup_dnn():
    sCPR, sMAG, sSWZ, sRS = 72, 73, 74, 75
    L = [f's_cmp_lt_u32 s{sK}, 2', f's_cselect_b32 s{sCPR}, 14, 12', f's_mov_b32 s{sF1}, 87382', f's_cselect_b32 s{sMAG}, 74899, s{sF1}',
         f's_cselect_b32 s{sSWZ}, 0, 2', f's_lshl_b32 s{sRS}, s{sCPR}, 4', f's_lshl_b32 s{sF0}, s{sI0}, 5', f's_movk_i32 s{sF2}, 832']
    L += [f's_sub_u32 s{sF2}, s{sF2}, s{sRS}']
    for u in range(7):
        L += [f'v_add_u32 v{fa}, {64*u}, v{vL}', f'v_mul_u32_u24 v{fc}, s{sMAG}, v{fa}', f'v_lshrrev_b32 v{fc}, 20, v{fc}',
              f'v_lshrrev_b32 v{fd}, 1, v{fc}', f'v_and_b32 v{fd}, s{sSWZ}, v{fd}', f'v_xor_b32 v{fa}, v{fa}, v{fd}',
              f'v_lshl_add_u32 v{fa}, v{fa}, 4, s{sF0}', f'v_mad_u32_u24 v{vDMA+u}, v{fc}, s{sF2}, v{fa}']
    L += [f's_lshl_b32 s{sDma}, s{sI0}, 10', f's_add_u32 s{sDma}, s{sDma}, {RB}']
    L += [f'v_lshrrev_b32 v{fb}, 1, v{vG}', f'v_and_b32 v{fc}, 1, v{vG}', f'v_lshlrev_b32 v{fa}, 4, v{fb}',
          f'v_lshl_add_u32 v{fa}, v{fc}, 2, v{fa}', f'v_add_u32 v{fa}, v{fa}, v{vR4}', f'v_mul_u32_u24 v{fa}, s{sRS}, v{fa}',
          f'v_lshl_add_u32 v{fa}, v{vC4}, 3, v{fa}', f'v_add_u32 v{fa}, s{sDma}, v{fa}',
          f's_lshl_b32 s{sF1}, s{sSWZ}, 4', f'v_lshlrev_b32 v{fd}, 5, v{fc}', f'v_and_b32 v{fd}, s{sF1}, v{fd}',
          f'v_add_u32 v{vT}, v{fa}, v{fd}', f'v_sub_u32 v{vT+1}, v{fa}, v{fd}', f'v_add_u32 v{vT+1}, 32, v{vT+1}',
          f's_lshl_b32 s{sF1}, s{sRS}, 3',
          f'v_add_u32 v{vT+2}, s{sF1}, v{vT}', f'v_add_u32 v{vT+3}, s{sF1}, v{vT+1}']
    L += [f'v_add_u32 v{vT+4+q}, {2*SLOT}, v{vT+q}' for q in range(4)]
    L += [f's_movk_i32 s{sF1}, {XS}', f'v_lshlrev_b32 v{fa}, 5, v{fb}', f'v_lshl_add_u32 v{fa}, v{fc}, 3, v{fa}',
          f'v_mad_u32_u24 v{fa}, v{vN}, s{sF1}, v{fa}', f'v_add_u32 v{vXF}, {XB}, v{fa}']
    return L

def acc_init_cin(e):
    I = e.I
    I(f'v_lshrrev_b32 v{fa}, 5, v{vL}')
    I(f'v_lshlrev_b32 v{fa}, 3, v{fa}')
    I(f'v_add_u32 v{fa}, {SM_A0}, v{fa}')
    ids = [I(f'ds_read_b64 {vr(XPA+2*g,2)}, v{fa} offset:{16*g}') for g in range(4)]
    e.wait_ds(ids[-1])
    for g in range(4):
        for q in range(2):
            I(f'v_lshlrev_b32 v{QI+4*g+2*q}, 16, v{XPA+2*g+q}')
            I(f'v_and_b32 v{QI+4*g+2*q+1}, 0xffff0000, v{XPA+2*g+q}')

def acc_init_dnn(e):
    I = e.I
    I(f's_lshl_b32 s{sF0}, s{sI0}, 5')
    I(f's_add_u32 s{sF0}, s{sF0}, {SM_B1}')
    I(f'v_lshlrev_b32 v{fb}, 1, v{vN}')
    I(f'v_add_u32 v{fb}, s{sF0}, v{fb}')
    B = 60
    for u in range(7):
        I(f'v_mov_b32 v{B+u}, 0')
        I(f'v_mov_b32 v{W2V+u}, 0')
    ids = []
    for u in range(7):
        ids.append(I(f'ds_read_u16_d16_hi v{B+u}, v{fb} offset:{32*u}'))
        ids.append(I(f'ds_read_u16_d16_hi v{W2V+u}, v{fb} offset:{832 + 32*u}'))
    for q, val in enumerate(('0xbdd2d3e8', '0xbdd2d3e8', '0xc0135761', '0xc0135761', '1.0', '1.0')):
        I(f'v_mov_b32 v{CST+q}, {val}')
    e.wait_ds(ids[-1])
    for u in range(7):
        for r in range(4):
            I(f'v_mov_b32 v{DACC+4*u+r}, v{B+u}')

def build(debug=None, opts=None):
    global ST
    opts = opts or {}
    e = Emit(); I = e.I
    a, b, c, d = TMP, TMP + 1, TMP + 2, TMP + 3
    touch = opts.get('touch', True)
    gapL = opts.get('gapL', 10)
    sRT = sC1
    I('s_cmp_ge_u32 s2, 256')
    I('s_cbranch_scc1 L_end')
    I('s_load_dwordx16 s[4:19], s[0:1], 0')
    I(f'v_lshrrev_b32 v1, 6, v0')
    I(f'v_and_b32 v{vL}, 63, v0')
    I(f'v_readfirstlane_b32 s{sW}, v1')
    I(f's_bfe_u32 s{sSL}, s2, 0x50003')
    ST = Stamps(debug in ('stamp', 'hstamp'))
    ST(e, 'start')
    if touch:
        I(f's_getpc_b64 {sp(sX0)}')
        I(f's_lshl_b32 s{sT0}, s{sSL}, 3')
        I(f's_add_u32 s{sT0}, s{sT0}, s{sW}')
        I(f's_lshl_b32 s{sT1}, s{sT0}, 7')
        I(f's_and_b32 s{sX0}, s{sX0}, 0xffffff00')
        I(f'v_mov_b32 v{a}, s{sT1}')
        I(f'global_load_dword v{vDUM}, v{a}, {sp(sX0)}')
        I(f's_mul_i32 s{sT1}, s{sT0}, 11')
        I(f's_lshl_b32 s{sT2}, s{sT0}, 2')
        I(f'v_add_u32 v{b}, s{sT1}, v{vL}')
        I(f'v_add_u32 v{c}, s{sT2}, v{vL}')
        I(f'v_lshlrev_b32 v{b}, 7, v{b}')
        I(f'v_lshlrev_b32 v{c}, 7, v{c}')
    I(f's_and_b32 s{sK}, s{sW}, 3')
    I(f's_lshl_b32 s{sT0}, s2, 4')
    I(f's_lshl_b32 s{sT1}, s{sK}, 2')
    I(f's_add_u32 s{sT0}, s{sT0}, s{sT1}')
    I(f's_mul_i32 s{sT0}, s{sT0}, 104')
    I(f'v_lshrrev_b32 v{d}, 1, v{vL}')
    I(f'v_lshlrev_b32 v{d}, 2, v{d}')
    I(f'v_add_u32 v{d}, s{sT0}, v{d}')
    I(f's_cmp_ge_u32 s{sW}, 4')
    I('s_waitcnt lgkmcnt(0)')
    if opts.get('fine'):
        ST(e, 'ka'); I(f's_cmp_ge_u32 s{sW}, 4')
    I('s_cbranch_scc0 L_eN')
    mk_srd(e, S_IDX, 4, 4096 * 104)
    for bb in range(4):
        I(f'buffer_load_dword v{vIDX+bb}, v{d}, {srd(S_IDX)}, 0 offen offset:{bb*104}')
    e.label('L_eN')
    I(f's_mov_b32 s{S_CIN}, s8'); I(f's_mov_b32 s{S_CIN+1}, s9')
    I(f's_mov_b32 s{S_CIN+2}, {3*CIN_L}'); I(f's_mov_b32 s{S_CIN+3}, 0x20000')
    mk_srd(e, S_W1, 12, 346112)
    if touch:
        I('s_mov_b32 exec_lo, 0xf'); I('s_mov_b32 exec_hi, 0')
        I(f'buffer_load_dword v{vDUM}, v{c}, {srd(S_CIN)}, 0 offen')
        I('s_mov_b32 exec_lo, 0x7ff')
        I(f'buffer_load_dword v{vDUM}, v{b}, {srd(S_W1)}, 0 offen')
        I('s_mov_b64 exec, -1')
    if opts.get('fine'): ST(e, 'tch')
    I(f'v_lshrrev_b32 v{a}, 5, v{vL}')
    I(f'v_and_b32 v{b}, 1, v{vL}')
    I(f'v_lshlrev_b32 v{b}, 4, v{b}')
    I(f's_movk_i32 s{sC0}, 1352')
    I(f'v_bfe_u32 v{c}, v{vL}, 1, 4')
    I(f'v_mad_u32_u24 v{b}, v{a}, s{sC0}, v{b}')
    I(f'v_xor_b32 v{c}, v{c}, v{a}')
    I(f's_mul_i32 s{sI0}, s{sK}, 7')
    I(f's_cmp_eq_u32 s{sK}, 3')
    I(f's_cselect_b32 s{sT0}, 1, 0')
    I(f's_sub_u32 s{sI0}, s{sI0}, s{sT0}')
    I(f'v_and_b32 v{a}, 1, v{c}')
    I(f'v_lshl_add_u32 v{b}, v{a}, 5, v{b}')
    I(f's_mul_i32 s{sStage}, s{sK}, {STG}')
    I(f's_mul_i32 s{sT0}, s{sK}, 208')
    I(f's_add_u32 s{sT0}, s{sT0}, {2*CIN_L}')
    I(f's_mul_i32 s{sT1}, s{sI0}, 52')
    I(f's_add_u32 s{sT1}, s{sT1}, {CIN_L}')
    I(f's_movk_i32 s{sT2}, 832')
    I(f's_cmp_ge_u32 s{sW}, 4')
    I(f's_cselect_b32 s{sSrc}, s{sT1}, s{sT0}')
    I(f's_cselect_b32 s{sRT}, 208, s{sT2}')
    I(f's_movk_i32 s{sT2}, {WS2}')
    I(f's_cselect_b32 s{sT0}, {WS1}, s{sT2}')
    I(f's_add_u32 s{sStage}, s{sStage}, s{sT0}')
    I(f'v_lshrrev_b32 v{a}, 3, v{c}')
    I(f'v_mad_u32_u24 v{b}, v{a}, s{sRT}, v{b}')
    I(f'v_bfe_u32 v{c}, v{c}, 1, 2')
    I(f's_mov_b32 m0, s{sStage}')
    I(f'v_mad_u32_u24 v{vSO}, v{c}, 52, v{b}')
    I(f's_movk_i32 s{sT3}, 2704')
    I(f's_movk_i32 s{sT2}, 1024')
    for tm in range(1, 4):
        I(f'v_xor_b32 v{a}, {tm}, v{c}')
        I(f'v_mad_u32_u24 v{vSO+tm}, v{a}, 52, v{b}')
    if opts.get('fine'): ST(e, 'dma0')
    for t in range(13):
        I(f'buffer_load_dwordx4 v{vSO + (t & 3)}, {srd(S_CIN)}, s{sSrc} offen lds')
        if t < 12:
            I(f's_add_u32 m0, m0, s{sT2}')
            I(f's_add_u32 s{sSrc}, s{sSrc}, s{sT3}')
    ST(e, 'b0')
    I(f's_load_dwordx2 s[20:21], s[0:1], 64')
    if debug == 'hstamp':
        I('s_load_dwordx2 s[22:23], s[0:1], 72')
    elif debug:
        I('s_load_dwordx2 s[22:23], s[0:1], 80')
    I(f's_load_dword s{sBO}, s[18:19], 0')
    I(f'v_and_b32 v{vN}, 15, v{vL}')
    I(f'v_lshrrev_b32 v{vG}, 4, v{vL}')
    I(f'v_bfe_u32 v{vR4}, v{vL}, 2, 2')
    I(f'v_and_b32 v{vC4}, 3, v{vL}')
    I(f's_cmp_lt_u32 s{sW}, 4')
    I('s_cbranch_scc1 L_Upath')

    ms = ['s[72:73]', 's[74:75]', 's[76:77]', 'vcc']
    I(f's_mov_b32 s{sE52}, -1')
    I(f's_mov_b32 s{sE52+1}, 0x000fffff')
    I(f'v_lshlrev_b32 v{b}, 4, v{vG}')
    I(f'v_mad_u32_u24 v{vFO}, v{vN}, 52, v{b}')
    I(f'v_cmp_gt_u32 vcc, 10, v{vN}')
    I(f'v_add_u32 v{vFO+1}, 832, v{vFO}')
    I(f'v_mov_b32 v{c}, 0x7ff00000')
    I(f'v_cndmask_b32 v{vFO+1}, v{c}, v{vFO+1}, vcc')
    I(f's_mul_i32 s{sT0}, s{sI0}, 1352')
    F = FQ()
    g0 = f_srd(S_A0, 10, 52) + f_srd(S_B1, 14, 832) + f_srd(S_W2, 16, 832) + [f'v_lshlrev_b32 v{fe}, 4, v{vL}']
    F.add(f'v_lshrrev_b32 v{fa}, 4, v{vL}', f'v_mul_u32_u24 v{fa}, {XS}, v{fa}', f'v_lshl_add_u32 v{fa}, v{vN}, 2, v{fa}',
          f's_mul_i32 s{sF0}, s{sK}, {4*XS}', f's_add_u32 s{sF0}, s{sF0}, {XB + 832}', f'v_add_u32 v{fa}, s{sF0}, v{fa}',
          f'v_cmp_gt_u32 vcc, 8, v{vN}', f'v_mov_b32 v{fb}, 0x3f803f80', f'v_mov_b32 v{fc}, {XCNT}', f'v_mov_b32 v{fd}, 0',
          f'v_cndmask_b32 v{fb}, 0, v{fb}, vcc', f'ds_write_b32 v{fa}, v{fb}', f'ds_write_b32 v{fc}, v{fd}')
    F.add(f'v_and_b32 v{fa}, 1, v{vL}', f'v_lshlrev_b32 v{fa}, 4, v{fa}', f'v_mov_b32 v{fb}, 0x3f80', f'v_lshlrev_b32 v{fb}, v{fa}, v{fb}',
          's_mov_b32 s73, 0', 's_mov_b32 s74, 0')
    for dw in range(4):
        m0_ = (3 << (2*dw)) | (3 << (16 + 2*dw + 8))
        m1_ = (3 << (2*dw)) | ((3 << 24) if dw == 0 else 0)
        F.add(f's_mov_b32 s72, {hex(m0_)}', f'v_cndmask_b32 v{EF+dw}, 0, v{fb}, s[72:73]',
              f's_mov_b32 s75, {hex(m1_)}', f'v_cndmask_b32 v{EF+4+dw}, 0, v{fb}, s[74:75]')
    F.add(*f_common_a())
    F.add(*f_setup_cin())
    def small_dma():
        I(f's_cmp_eq_u32 s{sK}, 0'); I('s_cbranch_scc0 L_sm1')
        I('s_mov_b32 exec_lo, 15'); I('s_mov_b32 exec_hi, 0')
        I(f's_mov_b32 m0, {SM_A0}'); I('s_nop 0')
        I(f'buffer_load_dwordx4 v{fe}, {srd(S_A0)}, 0 offen lds')
        I('s_branch L_smdone')
        e.label('L_sm1')
        I(f's_mov_b64 exec, {sp(sE52)}')
        I(f's_cmp_eq_u32 s{sK}, 1'); I('s_cbranch_scc0 L_sm2')
        I(f's_mov_b32 m0, {SM_B1}'); I('s_nop 0')
        I(f'buffer_load_dwordx4 v{fe}, {srd(S_B1)}, 0 offen lds')
        I('s_branch L_smdone')
        e.label('L_sm2')
        I(f's_cmp_eq_u32 s{sK}, 2'); I('s_cbranch_scc0 L_smdone')
        I(f's_mov_b32 m0, {SM_W2}'); I('s_nop 0')
        I(f'buffer_load_dwordx4 v{fe}, {srd(S_W2)}, 0 offen lds')
        e.label('L_smdone')
        I('s_mov_b64 exec, -1')
    for x in g0: I(x)
    small_dma()
    b1_at = opts.get('b1_at', 99)
    for u in range(7):
        if u == 6:
            I(f's_cmp_ge_u32 s{sK}, 2'); I('s_cbranch_scc1 L_w0done')
        if u == b1_at:
            I(f's_waitcnt vmcnt({0 if opts.get("safe_b1") else max(0, 2*u - 3)})')
            I('s_barrier')
            ST(e, 'b1')
        I(f's_add_u32 s{sT1}, s{sT0}, {u*1352}')
        for R in range(2):
            I(f'buffer_load_dwordx4 {vr(FF+8*u+4*R,4)}, v{vFO+R}, {srd(S_CIN)}, s{sT1} offen')
            if u < 6: F.drain(e, opts.get('gapW0', 0))
    e.label('L_w0done')
    if b1_at >= 7: I('s_waitcnt vmcnt(27)')
    mk_srd(e, S_TAB, 6, 3200000)
    I(f'v_and_b32 v{a}, 1, v{vL}')
    I(f'v_lshlrev_b32 v{a}, 4, v{a}')
    for bb in range(4):
        I(f'v_lshl_add_u32 v{vIDX+bb}, v{vIDX+bb}, 5, v{a}')
    I(f's_mul_i32 s{sT0}, s{sK}, {4*XS}')
    I(f's_mov_b64 exec, {sp(sE52)}')
    for bb in range(4):
        I(f's_add_u32 m0, s{sT0}, {XB + bb*XS}')
        I('s_nop 0')
        I(f'buffer_load_dwordx4 v{vIDX+bb}, {srd(S_TAB)}, 0 offen lds')
    I('s_mov_b64 exec, -1')
    ST(e, 'pre1')
    if b1_at >= 7:
        I('s_waitcnt vmcnt(13)')
        I('s_barrier')
        ST(e, 'b1')
    F.drain(e)
    prev = None
    for u in range(7):
        if u == 6:
            I(f's_cmp_ge_u32 s{sK}, 2'); I('s_cbranch_scc1 L_plast')
        n = 2 * (5 - u) + 4 if u <= 5 else 4
        I(f's_waitcnt vmcnt({0 if opts.get("safe_p") else n})')
        f = FF + 8 * u
        unit(e, f, f + 4, EF, EF + 4, DD[u & 1], None if prev is None else (DD[prev & 1], prev, FR_P))
        prev = u
    unit_store(e, DD[6 & 1], 6, FR_P)
    I('s_branch L_pend')
    e.label('L_plast')
    unit_store(e, DD[5 & 1], 5, FR_P)
    e.label('L_pend')
    ST(e, 'units')
    I('s_waitcnt lgkmcnt(0)')
    ST(e, 'fold')
    ST(e, 'b2')
    e.ds_q = []
    if debug == 'fold':
        I('s_barrier')
        I('s_branch L_dbg')
    else:
        acc_init_cin(e)
        I('s_waitcnt lgkmcnt(0)')
        main_cin(e, debug, opts)
        I('s_branch L_join')

    e.last = {}; e.ds_q = []
    e.label('L_Upath')
    I(f's_lshl_b32 s{sT2}, s{sK}, 3')
    I(f's_add_u32 s{sT2}, s{sT2}, 52')
    I(f's_add_u32 s{sT3}, s{sT2}, 32')
    I(f's_load_dwordx16 s[{SA}:{SA+15}], s[10:11], 104')
    I(f's_load_dwordx2 s[60:61], s[10:11], s{sT2}')
    I(f's_load_dwordx2 s[62:63], s[10:11], s{sT3}')
    for j in range(2):
        I(f'v_lshl_add_u32 v{fa}, v{vG}, 2, v{vR4}')
        if j:
            I(f'v_add_u32 v{fa}, 16, v{fa}'); I(f'v_min_u32 v{fa}, 25, v{fa}')
        I(f'v_and_b32 v{fb}, 7, v{fa}'); I(f'v_lshlrev_b32 v{fb}, 5, v{fb}'); I(f'v_lshl_add_u32 v{fb}, v{fa}, 9, v{fb}')
        I(f'v_lshl_add_u32 v{fb}, v{vC4}, 3, v{fb}'); I(f'v_add_u32 v{TAD+8*j}, s{sStage}, v{fb}')
        for x in range(1, 8):
            I(f'v_xor_b32 v{TAD+8*j+x}, {x*32}, v{TAD+8*j}')
    for u in range(4, 8):
        for R in range(2): I(f'v_mov_b32 v{UD+8*u+4*R}, 0')
    for dw in range(4): I(f'v_mov_b32 v{SELA+dw}, 0')
    I(f'v_lshlrev_b32 v{a}, 4, v{vL}')
    I(f'v_add_u32 v{a}, {HB}, v{a}')
    I(f'v_cmp_gt_u32 {sp(sMN10)}, 10, v{vN}')
    I(f's_lshl_b32 s{sF0}, s{sK}, 2')
    I(f's_lshl_b32 s{sF1}, 1, s{sF0}')
    I(f's_lshl_b32 s{sF2}, s{sF1}, 16')
    I('s_waitcnt lgkmcnt(0)')
    for q in (13, 14, 15): I(f's_mov_b32 s{SA+q}, 0')
    for g in range(4):
        if g < 2:
            I(f's_mov_b32 exec_lo, s{sF1 if g == 0 else sF2}'); I('s_mov_b32 exec_hi, 0') if g == 0 else None
        else:
            I('s_mov_b32 exec_lo, 0') if g == 2 else None
            I(f's_mov_b32 exec_hi, s{sF1 if g == 2 else sF2}')
        for dw, src in enumerate((2*g, 2*g+1, 8+2*g, 9+2*g)):
            I(f'v_mov_b32 v{SELA+dw}, s{SA+src}')
    I('s_mov_b64 exec, -1')
    I(f's_cmp_le_u32 s{sK}, 2'); I('s_cselect_b32 s62, s62, 0'); I(f's_cmp_le_u32 s{sK}, 1'); I('s_cselect_b32 s63, s63, 0')
    for q in range(4):
        I(f's_lshl_b32 s{SA+2*q}, s{60+q}, 16'); I(f's_and_b32 s{SA+2*q+1}, s{60+q}, 0xffff0000')
    I('s_waitcnt vmcnt(0)')
    ST(e, 'pre1')
    for x in f_common_a(): I(x)
    def frag_reads(u, nbuf=4, off=0):
        buf = UB + 8 * (u % nbuf)
        ids = []
        for R in range(2):
            pg = 2 * u + R
            for j in range(2):
                ids.append(I(f'ds_read_b64_tr_b16 {vr(buf+4*R+2*j,2)}, v{TAD+8*j+(pg&7)} offset:{off + (pg>>3)*256}'))
        return ids
    pend = {u: frag_reads(u) for u in range(3)}
    for u in range(8):
        if u == 4:
            I(f's_cmp_eq_u32 s{sK}, 3'); I('s_cbranch_scc1 L_u2done')
        if u == 6:
            I(f's_cmp_eq_u32 s{sK}, 2'); I('s_cbranch_scc1 L_u2done')
        if u + 3 < 8:
            pend[u + 3] = frag_reads(u + 3)
        e.wait_ds(pend[u][-1])
        buf = UB + 8 * (u % 4)
        for R in range(2):
            I(f'v_mfma_f32_16x16x32_bf16 {vr(UD+8*u+4*R,4)}, {vr(SELA,4)}, {vr(buf+4*R,4)}, 0')
    e.label('L_u2done')
    I(f's_mov_b32 s{sX0}, 0xffff')
    I(f's_mov_b32 s{sX0+1}, 0')
    I(f's_lshl_b32 s{sT0}, s{sK}, 4')
    for u in range(4):
        I(f'v_cvt_pk_bf16_f32 v{HF+u}, v{UD+16*u}, v{UD+16*u+8}')
    for u in range(8):
        I(f'v_cndmask_b32 v{UD+8*u+4}, 0, v{UD+8*u+4}, {sp(sMN10)}')
    I('s_mov_b32 exec_lo, 0x04000400'); I('s_mov_b32 exec_hi, 0x04000400')
    for u in range(8):
        I(f'v_mov_b32 v{UD+8*u+4}, s{SA+u}')
    I('s_mov_b64 exec, -1')
    for u in range(4):
        I(f'v_cvt_pk_bf16_f32 v{HF+4+u}, v{UD+16*u+4}, v{UD+16*u+12}')
    I(f's_lshl_b64 exec, {sp(sX0)}, s{sT0}')
    I(f'ds_write_b128 v{a}, {vr(HF,4)}')
    I(f'ds_write_b128 v{a}, {vr(HF+4,4)} offset:1024')
    I('s_mov_b64 exec, -1')
    if opts.get('dnnsetup_early', 0):
        for x in f_setup_dnn(): I(x)
    I('s_waitcnt lgkmcnt(0)')
    I('s_barrier')
    ST(e, 'b1')
    I(f'ds_read_b128 {vr(HF,4)}, v{a} offset:0')
    I(f'ds_read_b128 {vr(HF+4,4)}, v{a} offset:1024')
    pend = {u: frag_reads(u, off=WS1 - WS2) for u in range(3)}
    prev = None
    for u in range(7):
        if u == 6:
            I(f's_cmp_ge_u32 s{sK}, 2'); I('s_cbranch_scc1 L_tlast')
        if u + 3 < 7:
            pend[u + 3] = frag_reads(u + 3, off=WS1 - WS2)
        e.wait_ds(pend[u][-1])
        g = UB + 8 * (u % 4)
        for dw in range(4):
            I(f'v_cndmask_b32 v{g+4+dw}, 0, v{g+4+dw}, {sp(sMN10)}')
        unit(e, g, g + 4, HF, HF + 4, DD[u & 1], None if prev is None else (DD[prev & 1], prev, FR_Q))
        prev = u
    unit_store(e, DD[6 & 1], 6, FR_Q)
    I('s_branch L_tend')
    e.label('L_tlast')
    unit_store(e, DD[5 & 1], 5, FR_Q)
    e.label('L_tend')
    ST(e, 'units')
    I('s_waitcnt lgkmcnt(0)')
    e.ds_q = []
    if not opts.get('dnnsetup_early', 0):
        for x in f_setup_dnn(): I(x)
    if opts.get('dnn0_early', 1): dma_step(e, 0, 'U0')
    I(f'v_mov_b32 v{vXCA}, {XCNT}')
    I(f'v_mov_b32 v{vONE}, 1')
    acc_init_dnn(e)
    I('s_waitcnt lgkmcnt(0)')
    ST(e, 'fold')
    ST(e, 'b2')
    e.ds_q = []
    if debug == 'fold':
        I('s_barrier')
        e.label('L_dbg')
        I('s_waitcnt vmcnt(0)'); I('s_barrier')
        dump_lds(e)
        return finish(e, opts)
    main_dnn(e, debug, opts)
    final(e, debug, opts)
    return finish(e, opts)

def dma_step(e, step, tag):
    I = e.I
    slot = step % 4
    I(f's_mov_b32 s{sT3}, {step*26624}')
    for u in range(7):
        if u == 6:
            I(f's_cmp_ge_u32 s{sK}, 2'); I(f's_cbranch_scc1 L_dma_{tag}')
        I(f's_add_u32 m0, s{sDma}, {slot*SLOT + u*1024}')
        I('s_nop 0')
        I(f'buffer_load_dwordx4 v{vDMA+u}, {srd(S_W1)}, s{sT3} offen lds')
    e.label(f'L_dma_{tag}')

def unit(e, X0, X1, Y0, Y1, D, prev):
    I = e.I
    mf = []
    def m(dd, A, B, first):
        mf.append(f'v_mfma_f32_16x16x32_bf16 {vr(dd,4)}, {vr(A,4)}, {vr(B,4)}, ' + ('0' if first else vr(dd, 4)))
    m(D, X0, Y0, True); m(D + 4, X1, Y0, True); m(D + 8, X1, Y1, True)
    m(D, Y0, X0, False); m(D + 4, Y1, X0, False); m(D + 8, Y1, X1, False)
    fill = []
    if prev is not None:
        PD, pu, setbase = prev
        for ti in range(3):
            fill.append(f'v_cvt_pk_bf16_f32 v{DC+2*ti}, v{PD+4*ti}, v{PD+4*ti+1}')
            fill.append(f'v_cvt_pk_bf16_f32 v{DC+2*ti+1}, v{PD+4*ti+2}, v{PD+4*ti+3}')
        for ti in range(3):
            fill.append(f'ds_write_b32 v{vWA+ti}, v{DC+2*ti} offset:{setbase + pu*16}')
            fill.append(f'ds_write_b32 v{vWB+ti}, v{DC+2*ti+1} offset:{setbase + pu*16}')
    for i in range(6):
        I(mf[i])
        for f in fill[2*i:2*i+2]:
            I(f)

def unit_store(e, D, u, setbase):
    I = e.I
    for ti in range(3):
        I(f'v_cvt_pk_bf16_f32 v{DC+2*ti}, v{D+4*ti}, v{D+4*ti+1}')
        I(f'v_cvt_pk_bf16_f32 v{DC+2*ti+1}, v{D+4*ti+2}, v{D+4*ti+3}')
    for ti in range(3):
        I(f'ds_write_b32 v{vWA+ti}, v{DC+2*ti} offset:{setbase + u*16}')
        I(f'ds_write_b32 v{vWB+ti}, v{DC+2*ti+1} offset:{setbase + u*16}')

def dump_lds(e):
    I = e.I
    I('v_mbcnt_lo_u32_b32 v1, -1, 0'); I('v_mbcnt_hi_u32_b32 v1, -1, v1')
    I(f's_lshl_b32 s{sT0}, s{sW}, 10')
    I('v_lshlrev_b32 v1, 4, v1')
    I(f'v_add_u32 v1, s{sT0}, v1')
    I(f's_mul_i32 s{sT1}, s2, {LDS_TOTAL}')
    I(f'v_add_u32 v2, s{sT1}, v1')
    I(f's_mov_b32 s{sT2}, 0')
    e.label('L_dump')
    I('ds_read_b128 v[4:7], v1')
    I('s_waitcnt lgkmcnt(0)')
    I('global_store_dwordx4 v2, v[4:7], s[22:23]')
    I('s_waitcnt vmcnt(0)')
    I('v_add_u32 v1, 8192, v1'); I('v_add_u32 v2, 8192, v2')
    I(f's_add_u32 s{sT2}, s{sT2}, 1')
    I(f's_cmp_lt_u32 s{sT2}, 20')
    e.raw('    s_cbranch_scc1 L_dump')

def main_cin(e, debug, opts):
    I = e.I
    steps = step_list()
    hs = opts.get('hsched', [3, 5, 5, 5, 5, 5, 5, 5, 5, 5, 5, 3, 0])
    assert sum(hs) == 56 and len(hs) == 13
    halves = [(s_, X_) for s_ in range(28) for X_ in range(2)]
    sc = []; si = 0
    for n in hs:
        sc.append(halves[si:si + n]); si += n
    XR = [XA, XBB]; ZZ = [ZA, ZBB]
    af_ids = {}
    def af_read(s):
        buf = AF[s & 1]
        I(f'ds_read_b128 {vr(buf,4)}, v{vAF} offset:{FR_P + s*FST}')
        af_ids[s] = I(f'ds_read_b128 {vr(buf+4,4)}, v{vAF} offset:{FR_Q + s*FST}')
    def z_half(X, s, pi):
        aa, bb = steps[s]
        mod = ' div:2' if aa == bb else ''
        t = ZT + 4 * pi
        x = XR[X]
        for qi in range(4):
            if mod: I(f'v_mul_f32_e64 v{t+qi}, v{x+4*aa+pi}, v{x+4*bb+qi}{mod}')
            else: I(f'v_mul_f32 v{t+qi}, v{x+4*aa+pi}, v{x+4*bb+qi}')
        z = ZZ[X][s & 1]
        I(f'v_cvt_pk_bf16_f32 v{z+2*pi}, v{t}, v{t+1}')
        I(f'v_cvt_pk_bf16_f32 v{z+2*pi+1}, v{t+2}, v{t+3}')
    def epilogue():
        t = TMP
        for X in range(2):
            P, Q = ACC[('P', X)], ACC[('Q', X)]
            t = TMP + 4 * X
            I(f'v_mul_f32 v{t}, v{P}, v{Q}')
            I(f'v_mul_f32 v{t+1}, v{P+12}, v{Q+12}')
            I(f'v_mul_f32 v{t+2}, v{P+1}, v{Q+1}')
            I(f'v_fmac_f32 v{t+1}, v{P+13}, v{Q+13}')
            for r in range(2, 12):
                I(f'v_fmac_f32 v{t + 2*(r&1)}, v{P+r}, v{Q+r}')
        I(f'v_cmp_gt_u32 vcc, 32, v{vL}')
        for X in range(2):
            t = TMP + 4 * X
            I(f'v_add_f32 v{t}, v{t}, v{t+2}')
        for X in range(2):
            t = TMP + 4 * X
            I(f'v_cndmask_b32 v{t+1}, 0, v{t+1}, vcc')
        for X in range(2):
            t = TMP + 4 * X
            I(f'v_add_f32 v{t}, v{t}, v{t+1}')
        t = TMP
        I(f'v_and_b32 v{t+2}, 1, v{vG}')
        I(f'v_lshlrev_b32 v{t+2}, 6, v{t+2}')
        I(f'v_lshrrev_b32 v{t+3}, 1, v{vG}')
        I(f'v_lshl_add_u32 v{t+2}, v{t+3}, 2, v{t+2}')
        I(f's_lshl_b32 s{sT0}, s{sK}, 8')
        I(f's_add_u32 s{sT0}, s{sT0}, {RED + 16}')
        I(f'v_add_u32 v{t+2}, s{sT0}, v{t+2}')
        for sh in (8, 4, 2, 1):
            for X in range(2):
                tt = TMP + 4 * X
                I(f'v_add_f32_dpp v{tt}, v{tt}, v{tt} row_ror:{sh} row_mask:0xf bank_mask:0xf')
        I(f's_mov_b32 exec_lo, 0x00010001'); I(f's_mov_b32 exec_hi, 0x00010001')
        I(f'ds_write_b32 v{t+2}, v{TMP}')
        I(f'ds_write_b32 v{t+2}, v{TMP+4} offset:128')
        I('s_mov_b64 exec, -1')
    for j in range(13):
        e.comment(f'---- CIN interval {j}')
        if j == 0:
            I('s_waitcnt vmcnt(0)')
            I('s_nop 15')
            if opts.get('cp0', 2): I(f's_setprio {opts.get("cp0", 2)}')
            I('s_barrier')
        if j == 1 and opts.get('cp0', 2): I(f's_setprio {opts.get("cp1", 0)}')
        ST(e, f'it{j}')
        if j == 0:
            xa = [I(f'ds_read_b64_tr_b16 {vr(XPA+2*q,2)}, v{vTRX} offset:{128*q}') for q in range(7)]
            xb = [I(f'ds_read_b64_tr_b16 {vr(XPB+2*q,2)}, v{vTRX} offset:{2*XS + 128*q}') for q in range(7)]
            I(f'v_mov_b32 v{TMP}, {XCNT}'); I(f'v_mov_b32 v{TMP+1}, 1')
            I('s_waitcnt lgkmcnt(0)')
            I('s_mov_b64 exec, 1')
            I(f'ds_add_u32 v{TMP}, v{TMP+1}')
            I('s_mov_b64 exec, -1')
            if opts.get('safe_x'): I('s_barrier')
            af_read(0); af_read(1)
            for q in range(7):
                for h in range(2):
                    I(f'v_lshlrev_b32 v{XA+4*q+2*h}, 16, v{XPA+2*q+h}')
                    I(f'v_and_b32 v{XA+4*q+2*h+1}, 0xffff0000, v{XPA+2*q+h}')
            z_half(0, 0, 0); z_half(0, 0, 1)
            for q in range(7):
                for h in range(2):
                    I(f'v_lshlrev_b32 v{XBB+4*q+2*h}, 16, v{XPB+2*q+h}')
                    I(f'v_and_b32 v{XBB+4*q+2*h+1}, 0xffff0000, v{XPB+2*q+h}')
            z_half(1, 0, 0); z_half(1, 0, 1)
        for (s, X) in ([] if opts.get('no_cin') else sc[j]):
            if X == 0: e.wait_ds(af_ids[s])
            buf = AF[s & 1]
            z = ZZ[X][s & 1]
            P, Q = ACC[('P', X)], ACC[('Q', X)]
            I(f'v_mfma_f32_32x32x16_bf16 {vr(P,16)}, {vr(buf,4)}, {vr(z,4)}, ' + ('0' if s == 0 else vr(P,16)))
            if s + 1 < 28: z_half(X, s + 1, 0)
            I(f'v_mfma_f32_32x32x16_bf16 {vr(Q,16)}, {vr(buf+4,4)}, {vr(z,4)}, ' + (vr(QI,16) if s == 0 else vr(Q,16)))
            if X == 1 and s + 2 < 28: af_read(s + 2)
            if s + 1 < 28: z_half(X, s + 1, 1)
        if (not sc[j]) and j > 0 and sc[j-1]:
            if opts.get('cpe', 2): I(f's_setprio {opts.get("cpe", 2)}')
            epilogue()
    if sc[12]:
        epilogue()
    I('s_waitcnt lgkmcnt(0)')
    ST(e, 'gelu')

def main_dnn(e, debug, opts):
    I = e.I
    e.last = {}
    I(f's_cmp_ge_u32 s{sK}, 2')
    I('s_cselect_b64 vcc, -1, 0')
    def dma_one(step, u, tag, between=None):
        if u == 6: I(f's_cbranch_vccnz L_d6_{tag}')
        I(f's_add_u32 m0, s{sDma}, {(step % 4)*SLOT + u*1024}')
        if between: between()
        else: I('s_nop 0')
        I(f'buffer_load_dwordx4 v{vDMA+u}, {srd(S_W1)}, s{sT3} offen lds')
        if u == 6: e.label(f'L_d6_{tag}')
    def mf(j, u):
        I(f'v_mfma_f32_16x16x32_bf16 {vr(DACC+4*u,4)}, {vr(XF+4*j,4)}, {vr(WF[j&1]+4*u,4)}, {vr(DACC+4*u,4)}')
    plan = {j: ([j + 3] if j + 3 <= 12 else []) for j in range(13)}
    order = [(st_, u) for st_ in range(3) for u in range(7)]
    tops = {}
    for j in range(13):
        tops[j] = list(order)
        order += [(st_, u) for st_ in plan[j] for u in range(7)]
    def later_count(j, cls7):
        seq = [x for x in tops[j] if cls7 or x[1] < 6]
        jj_ = min(j + 1, 12)
        last = max(i for i, x in enumerate(seq) if x[0] == jj_)
        return len(seq) - 1 - last
    I('s_waitcnt lgkmcnt(0)')
    I('s_barrier')
    ST(e, 'it0')
    if not opts.get('dnn0_early', 1): dma_step(e, 0, 'C0')
    pre = [(st_, u) for st_ in (1, 2) for u in range(7)]
    cur = [None]
    def pre_one():
        if pre:
            st_, u = pre.pop(0)
            if cur[0] != st_:
                I(f's_mov_b32 s{sT3}, {st_*26624}'); cur[0] = st_
            dma_one(st_, u, f'P{st_}')
    pre_one(); pre_one()
    for q in range(13):
        I(f'ds_read_b64 {vr(XF+4*q,2)}, v{vXF} offset:{64*q}')
        I(f'ds_read_b64 {vr(XF+4*q+2,2)}, v{vXF} offset:{64*q+16}')
        if q % 3 == 2: pre_one()
    while pre: pre_one()
    I('s_waitcnt lgkmcnt(0)')
    I('s_mov_b64 exec, 1')
    I(f'ds_add_u32 v{vXCA}, v{vONE}')
    I('s_mov_b64 exec, -1')
    for j in range(13):
        e.comment(f'---- DNN interval {j}')
        n7, n6 = later_count(j, True), later_count(j, False)
        if opts.get('safe_dv'): n7 = n6 = 0
        if n7 != n6:
            I(f's_cbranch_vccnz L_vw6_{j}')
            I(f's_waitcnt vmcnt({n7})')
            I(f's_branch L_vwd_{j}')
            e.label(f'L_vw6_{j}')
            I(f's_waitcnt vmcnt({n6})')
            e.label(f'L_vwd_{j}')
        else:
            I(f's_waitcnt vmcnt({n7})')
        if j > 0: ST(e, f'it{j}')
        slot = j % 4
        tb = vT + 4 * (slot >> 1)
        for u in range(7):
            if u == 6: I(f's_cbranch_vccnz L_r6_{j}')
            for jj in range(2):
                I(f'ds_read_b64_tr_b16 {vr(WF[j&1]+4*u+2*jj,2)}, v{tb+2*jj+(u&1)} offset:{(slot&1)*SLOT + (u>>1)*64}')
        e.label(f'L_r6_{j}')
        steps_ = [] if opts.get('no_dma') else plan[j]
        first = steps_[0] if steps_ else None
        if j == 0:
            e.label('L_xspin')
            I(f'ds_read_b32 v{vXCT}, v{vXCA}')
            I('s_waitcnt lgkmcnt(0)')
            I(f'v_readfirstlane_b32 s{sT0}, v{vXCT}')
            I(f's_cmp_ge_u32 s{sT0}, 8')
            e.raw('    s_cbranch_scc0 L_xspin')
            I(f's_mov_b32 s{sT3}, {first*26624}')
            for u in range(7): dma_one(first, u, '0')
        else:
            I('s_waitcnt lgkmcnt(12)')
            if first is not None: I(f's_mov_b32 s{sT3}, {first*26624}')
            for u in range(7):
                if u == 6:
                    I(f's_cbranch_vccnz L_m6_{j}')
                    if first is not None:
                        I(f's_add_u32 m0, s{sDma}, {(first % 4)*SLOT + u*1024}'); mf(j - 1, u)
                        I(f'buffer_load_dwordx4 v{vDMA+u}, {srd(S_W1)}, s{sT3} offen lds')
                    else: mf(j - 1, u)
                    e.label(f'L_m6_{j}')
                elif first is not None:
                    dma_one(first, u, f'{j}', between=lambda: mf(j - 1, u))
                else:
                    mf(j - 1, u)
    I('s_waitcnt lgkmcnt(0)')
    for u in range(7):
        if u == 6: I('s_cbranch_vccnz L_m6_end')
        mf(12, u)
    e.label('L_m6_end')
    ST(e, 'gelu')
    G = TMP
    T = TMP + 4
    C1, C0, ONE = CST, CST + 2, CST + 4
    def gelu(pairs, first):
        def each(fn):
            for k_, (x, u, h) in enumerate(pairs):
                fn(x, T + 2 * k_, u, h, k_)
        each(lambda x, t, u, h, k_: I(f'v_pk_mul_f32 {vr(t,2)}, {vr(x,2)}, {vr(x,2)}'))
        each(lambda x, t, u, h, k_: I(f'v_pk_fma_f32 {vr(t,2)}, {vr(t,2)}, {vr(C1,2)}, {vr(C0,2)}'))
        each(lambda x, t, u, h, k_: I(f'v_pk_mul_f32 {vr(t,2)}, {vr(t,2)}, {vr(x,2)}'))
        each(lambda x, t, u, h, k_: (I(f'v_exp_f32 v{t}, v{t}'), I(f'v_exp_f32 v{t+1}, v{t+1}')))
        each(lambda x, t, u, h, k_: I(f'v_pk_mul_f32 {vr(x,2)}, {vr(x,2)}, {vr(W2V + (u & ~1), 2)} op_sel:[0,{u&1}] op_sel_hi:[1,{u&1}]'))
        each(lambda x, t, u, h, k_: I(f'v_pk_add_f32 {vr(t,2)}, {vr(t,2)}, {vr(ONE,2)}'))
        each(lambda x, t, u, h, k_: (I(f'v_rcp_f32 v{t}, v{t}'), I(f'v_rcp_f32 v{t+1}, v{t+1}')))
        def last(x, t, u, h, k_):
            if first and k_ < 2: I(f'v_pk_mul_f32 {vr(G+2*h,2)}, {vr(t,2)}, {vr(x,2)}')
            else: I(f'v_pk_fma_f32 {vr(G+2*h,2)}, {vr(t,2)}, {vr(x,2)}, {vr(G+2*h,2)}')
        each(last)
    allp = [(DACC + 4*u + 2*h, u, h) for u in range(6) for h in range(2)]
    gelu(allp[0:4], True); gelu(allp[4:8], False); gelu(allp[8:12], False)
    I(f's_cmp_ge_u32 s{sK}, 2'); I(f's_cbranch_scc1 L_g6')
    gelu([(DACC + 24 + 2*h, 6, h) for h in range(2)], False)
    e.label('L_g6')
    I(f'v_lshlrev_b32 v{T}, 8, v{vG}')
    I(f's_lshl_b32 s{sT0}, s{sK}, 2')
    I(f's_add_u32 s{sT0}, s{sT0}, {RED}')
    I(f'v_add_u32 v{T}, s{sT0}, v{T}')
    for sh in (8, 4, 2, 1):
        for r in range(4):
            I(f'v_add_f32_dpp v{G+r}, v{G+r}, v{G+r} row_ror:{sh} row_mask:0xf bank_mask:0xf')
    I(f's_mov_b32 exec_lo, 0x00010001'); I(f's_mov_b32 exec_hi, 0x00010001')
    for r in range(4):
        I(f'ds_write_b32 v{T}, v{G+r} offset:{64*r}')
    I('s_mov_b64 exec, -1')
    I('s_waitcnt lgkmcnt(0)')

def final(e, debug, opts):
    I = e.I
    T = TMP + 4
    e.label('L_join')
    e.last = {}
    if opts.get('delay_end'):
        I(f's_mov_b32 s{sT0}, 0')
        e.label('L_dly')
        for _ in range(8): I('s_nop 15')
        I(f's_add_u32 s{sT0}, s{sT0}, 1')
        I(f's_cmp_lt_u32 s{sT0}, {opts["delay_end"]}')
        e.raw('    s_cbranch_scc1 L_dly')
    I('s_barrier')
    if debug == 'red':
        dump_lds(e); return
    if debug == 'stamp':
        ST(e, 'fin')
        ST.flush(e)
        open(sys.argv[1] + '.names', 'w').write(' '.join(ST.names))
        return
    if debug == 'hstamp':
        ST(e, 'fin')
        sel = opts.get('hsel', ['b0', 'pre1', 'b1', 'units', 'b2', 'it0', 'it12', 'fin'])
        I(f's_cmp_eq_u32 s2, {opts.get("hwg", 128)}'); I('s_cbranch_scc0 L_nohs')
        I(f's_and_b32 s{sT0}, s{sW}, 3'); I(f's_cmp_eq_u32 s{sT0}, 0'); I('s_cbranch_scc0 L_nohs')
        I('s_waitcnt lgkmcnt(0)')
        r0 = STAMP_SLOTS[0]
        for i, nm in enumerate(sel):
            r = STAMP_SLOTS[ST.names.index(nm)]
            I(f's_sub_u32 s{sT1}, s{r}, s{r0}')
            I(f'v_writelane_b32 v200, s{sT1}, {i}')
        I(f's_lshl_b32 s{sT0}, s{sW}, 3')
        I(f'v_lshlrev_b32 v201, 2, v{vL}')
        I(f'v_add_u32 v201, s{sT0}, v201')
        I('s_mov_b32 exec_lo, 0xff'); I('s_mov_b32 exec_hi, 0')
        I('global_store_dword v201, v200, s[22:23]')
        I('s_mov_b64 exec, -1')
        I('s_waitcnt vmcnt(0)')
        e.label('L_nohs')
    I(f's_cmp_lg_u32 s{sW}, 0'); I('s_cbranch_scc1 L_end')
    I('s_mov_b32 exec_lo, 0xffff'); I('s_mov_b32 exec_hi, 0')
    I(f'v_lshlrev_b32 v{T}, 6, v{vL}')
    I(f'v_add_u32 v{T}, {RED}, v{T}')
    I(f'ds_read_b128 {vr(8,4)}, v{T}')
    I(f'ds_read_b64 {vr(12,2)}, v{T} offset:16')
    if debug == 'redout':
        I('s_waitcnt lgkmcnt(0)')
        I(f's_lshl_b32 s{sT0}, s2, 9')
        I(f'v_lshlrev_b32 v20, 5, v{vL}')
        I(f'v_add_u32 v20, s{sT0}, v20')
        I('global_store_dwordx4 v20, v[8:11], s[22:23]')
        I('global_store_dwordx2 v20, v[12:13], s[22:23] offset:16')
        I('s_waitcnt vmcnt(0)')
    I(f's_mov_b32 s{S_OUT}, s20'); I(f's_mov_b32 s{S_OUT+1}, s21')
    I(f's_mov_b32 s{S_OUT+2}, 8192'); I(f's_mov_b32 s{S_OUT+3}, 0x20000')
    I(f's_lshl_b32 s{sBO}, s{sBO}, 16')
    I(f's_lshl_b32 s{sT0}, s2, 5')
    I(f'v_lshlrev_b32 v{T+1}, 1, v{vL}')
    I(f'v_add_u32 v{T+1}, s{sT0}, v{T+1}')
    I('s_waitcnt lgkmcnt(0)')
    I('v_add_f32 v8, v8, v9'); I('v_add_f32 v10, v10, v11'); I('v_add_f32 v12, v12, v13')
    I('v_add_f32 v8, v8, v10')
    I(f'v_add_f32 v12, s{sBO}, v12')
    I('v_add_f32 v8, v8, v12')
    I('v_cvt_pk_bf16_f32 v8, v8, v8')
    I(f'buffer_store_short v8, v{T+1}, {srd(S_OUT)}, 0 offen')
    I('s_waitcnt vmcnt(0)')

def finish(e, opts):
    e.label('L_end')
    body = e.text()
    hdr = f"""; xDeepFM (CIN + DNN) fused kernel, generated by my own generator script.
; One workgroup = 16 batch rows, 8 waves.  CIN layers are folded at run time into two quadratic forms.
; @launch grid=(256,1,1) block=(512,1,1) lds={LDS_TOTAL}
.amdgcn_target "amdgcn-amd-amdhsa--gfx950"
.text
.globl {KN}
.p2align 8
.type {KN},@function
{KN}:
"""
    ftr = f"""    s_endpgm
.section .rodata,"a"
.p2align 6
.amdhsa_kernel {KN}
  .amdhsa_next_free_vgpr 256
  .amdhsa_next_free_sgpr 102
  .amdhsa_accum_offset 256
  .amdhsa_group_segment_fixed_size 0
  .amdhsa_kernarg_size 88
  .amdhsa_user_sgpr_count 2
  .amdhsa_user_sgpr_kernarg_segment_ptr 1
  .amdhsa_system_sgpr_workgroup_id_x 1
  .amdhsa_ieee_mode 0
.end_amdhsa_kernel
"""
    return hdr + body + ftr

if __name__ == '__main__':
    dbg = sys.argv[2] if len(sys.argv) > 2 and sys.argv[2] != 'none' else None
    opts = eval(sys.argv[3]) if len(sys.argv) > 3 else {}
    out = build(dbg, opts)
    open(sys.argv[1], 'w').write(out)
    print('wrote', sys.argv[1], len(out), 'bytes')
```

```python
import sys, os
from emit import Emit

KN = "standalone__deep_cross_xdeepfm__recsys_kernel"

FST = 848; FR_P = 0; FR_Q = 28 * FST
RB = 47616; SLOT = 26624; WROW = 832
WS2 = RB + SLOT - 4 * 13312
WS1 = RB + SLOT
STG = 13312
XB = RB + 3 * SLOT; XS = 912
HB = RB + 4 * SLOT
SM = HB + 2048; SM_A0 = SM; SM_B1 = SM + 64; SM_W2 = SM + 896
RED = SM + 1728
XCNT = RED + 1024
XLND = XCNT + 4
LDS_TOTAL = 163840
OOB_LDS = 0x40000
CIN_L = 35152
assert WS1 % 512 == 0 and 28 * FST * 2 <= RB and RED + 1024 <= LDS_TOTAL and WS2 % 512 == 0 and WS2 >= 0

S_IDX, S_TAB, S_CIN, S_W1 = 24, 28, 32, 36
S_A0, S_B1, S_W2, S_OUT = 40, 52, 56, 60
sA2 = 96
sW, sK = 64, 65
sBO = 66
sI0 = 67
sT0, sT1, sT2, sT3 = 68, 69, 70, 71
sMN10 = 78
sE52 = 80
sStage, sSrc = 82, 83
sC0, sC1, sC2 = 84, 85, 86
sX0 = 88
sF0, sF1, sF2 = 84, 85, 86
sDma = 92
sSL = 93
SA = 44
def srd(n): return f"s[{n}:{n+3}]"
def sp(n): return f"s[{n}:{n+1}]"
def vr(a, n=1): return f"v{a}" if n == 1 else f"v[{a}:{a+n-1}]"

vL = 0
TMP = 122
fa, fb, fc, fd, fe = 132, 133, 134, 135, 136
vN, vG, vR4, vC4 = 142, 143, 144, 145
vWA = 146
vWB = 149
DD = [152, 164]
DC = 176
vSO = 182
vDUM = 186
UD = 2; SELA = 212; HF = 204
TAD = 188
UB = 68
FF = 2; EF = 60; vIDX = 68; vFO = 72
XA = 2; XBB = 30
ZA = [58, 62]; ZBB = [66, 70]
ZT = 74
AF = [82, 90]
vAF = 100; vTRX = 101
XPA = 104; XPB = 152
QI = 166
ACC = {('P', 0): 192, ('Q', 0): 208, ('P', 1): 224, ('Q', 1): 240}
vDMA = 100
vT = 108
vXF = 116
WF = [2, 30]
XF = 152
DACC = 208
W2V = 236
CST = 244
vXCA = 118; vONE = 119; vXCT = 120

STAMP_SLOTS = [94, 96, 98, 100, 90, 40, 42] + list(range(44, 60, 2)) + [24, 26, 28, 30, 4, 6, 8, 10, 14, 16, 12, 18]
class Stamps:
    def __init__(self, on): self.on = on; self.names = []
    def __call__(self, e, name):
        if not self.on: return
        if name in self.names: i = self.names.index(name)
        else:
            i = len(self.names); self.names.append(name)
        r = STAMP_SLOTS[i]
        e.I(f's_memtime s[{r}:{r+1}]')
    def flush(self, e):
        if not self.on: return
        I = e.I
        I('s_mov_b64 exec, -1')
        I('s_waitcnt vmcnt(0) lgkmcnt(0)')
        for i in range(len(self.names)):
            I(f'v_writelane_b32 v200, s{STAMP_SLOTS[i]}, {i}')
        I('s_memrealtime s[68:69]')
        I('s_waitcnt lgkmcnt(0)')
        I('v_writelane_b32 v200, s68, 31')
        I('v_mbcnt_lo_u32_b32 v201, -1, 0'); I('v_mbcnt_hi_u32_b32 v201, -1, v201')
        I('v_lshlrev_b32 v201, 2, v201')
        I(f's_lshl_b32 s70, s2, 3'); I(f's_add_u32 s70, s70, s{sW}'); I('s_lshl_b32 s70, s70, 8')
        I('v_add_u32 v201, s70, v201')
        I('global_store_dword v201, v200, s[22:23]')
        I('s_waitcnt vmcnt(0)')
ST = Stamps(False)

def step_list():
    return [(a, b) for b in range(7) for a in range(b + 1)]

def mk_srd(e, n, lo, size, add=0):
    I = e.I
    if add:
        I(f's_add_u32 s{n}, s{lo}, {add}')
        I(f's_addc_u32 s{n+1}, s{lo+1}, 0')
    else:
        I(f's_mov_b32 s{n}, s{lo}')
        I(f's_mov_b32 s{n+1}, s{lo+1}')
    I(f's_mov_b32 s{n+2}, {size}')
    I(f's_mov_b32 s{n+3}, 0x20000')


class FQ:
    def __init__(self): self.q = []
    def add(self, *items): self.q.extend(items)
    def drain(self, e, n=10**9):
        k = 0
        while self.q and k < n:
            it = self.q.pop(0)
            if isinstance(it, list):
                for x in it: e.I(x)
                k += len(it)
            else:
                e.I(it); k += 1

def f_srd(n, lo, size):
    return [f's_mov_b32 s{n}, s{lo}', f's_mov_b32 s{n+1}, s{lo+1}', f's_mov_b32 s{n+2}, {size}', f's_mov_b32 s{n+3}, 0x20000']

def f_common_a():
    L = [f'v_bfe_u32 v{fa}, v{vN}, 1, 1', f'v_mul_u32_u24 v{fb}, 420, v{fa}', f'v_and_b32 v{fc}, 1, v{vN}',
         f'v_lshl_add_u32 v{fb}, v{fc}, 3, v{fb}', f's_lshl_b32 s{sF0}, s{sI0}, 4', f'v_lshrrev_b32 v{fc}, 2, v{vN}',
         f'v_add_u32 v{fa}, 1, v{vG}', f'v_mul_u32_u24 v{fa}, v{fa}, v{vG}', f'v_cmp_le_u32 s[72:73], v{fc}, v{vG}',
         f'v_lshrrev_b32 v{fa}, 1, v{fa}', f'v_cmp_ge_u32 s[74:75], 2, v{vG}', f'v_add_u32 v{fa}, v{fa}, v{fc}',
         f's_movk_i32 s{sF2}, {FST}', f'v_add_u32 v{fb}, s{sF0}, v{fb}', f'v_lshlrev_b32 v{fe}, 2, v{vL}',
         f'v_mad_u32_u24 v{fd}, v{fa}, s{sF2}, v{fb}', f's_and_b64 s[76:77], s[72:73], s[74:75]', f'v_add_u32 v{fe}, {OOB_LDS}, v{fe}',
         f's_movk_i32 s{sF1}, {4*FST}', f'v_cndmask_b32 v{vWA}, v{fe}, v{fd}, s[72:73]',
         f'v_mad_u32_u24 v{fd}, v{vG}, s{sF1}, v{fd}', f'v_xor_b32 v{vWB}, 4, v{vWA}', f'v_add_u32 v{fd}, {10*FST}, v{fd}',
         f'v_cndmask_b32 v{vWA+1}, v{fe}, v{fd}, s[74:75]', f'v_add_u32 v{fd}, {4*FST}, v{fd}', f'v_xor_b32 v{vWB+1}, 4, v{vWA+1}',
         f'v_cndmask_b32 v{vWA+2}, v{fe}, v{fd}, s[76:77]', f'v_xor_b32 v{vWB+2}, 4, v{vWA+2}']
    return L

def f_setup_cin():
    L = [f'v_and_b32 v{fa}, 31, v{vL}', f'v_lshlrev_b32 v{fa}, 4, v{fa}', f'v_lshrrev_b32 v{fb}, 5, v{vL}',
         f's_movk_i32 s{sF1}, 416', f'v_mad_u32_u24 v{vAF}, v{fb}, s{sF1}, v{fa}',
         f'v_lshrrev_b32 v{fb}, 1, v{vG}', f'v_and_b32 v{fc}, 1, v{vG}', f's_movk_i32 s{sF1}, {XS}',
         f'v_lshlrev_b32 v{fa}, 1, v{fb}', f'v_xor_b32 v{fa}, v{fa}, v{vR4}', f'v_lshlrev_b32 v{fa}, 5, v{fa}',
         f'v_lshl_add_u32 v{fa}, v{vC4}, 3, v{fa}', f'v_mad_u32_u24 v{fa}, v{fc}, s{sF1}, v{fa}',
         f's_mul_i32 s{sF0}, s{sK}, {4*XS}', f's_add_u32 s{sF0}, s{sF0}, {XB}', f'v_add_u32 v{vTRX}, s{sF0}, v{fa}']
    return L

def f_setup_dnn():
    sCPR, sMAG, sSWZ, sRS = 72, 73, 74, 75
    L = [f's_cmp_lt_u32 s{sK}, 2', f's_cselect_b32 s{sCPR}, 14, 12', f's_mov_b32 s{sF1}, 87382', f's_cselect_b32 s{sMAG}, 74899, s{sF1}',
         f's_cselect_b32 s{sSWZ}, 0, 2', f's_lshl_b32 s{sRS}, s{sCPR}, 4', f's_lshl_b32 s{sF0}, s{sI0}, 5', f's_movk_i32 s{sF2}, 832']
    L += [f's_sub_u32 s{sF2}, s{sF2}, s{sRS}']
    for u in range(7):
        L += [f'v_add_u32 v{fa}, {64*u}, v{vL}', f'v_mul_u32_u24 v{fc}, s{sMAG}, v{fa}', f'v_lshrrev_b32 v{fc}, 20, v{fc}',
              f'v_lshrrev_b32 v{fd}, 1, v{fc}', f'v_and_b32 v{fd}, s{sSWZ}, v{fd}', f'v_xor_b32 v{fa}, v{fa}, v{fd}',
              f'v_lshl_add_u32 v{fa}, v{fa}, 4, s{sF0}', f'v_mad_u32_u24 v{vDMA+u}, v{fc}, s{sF2}, v{fa}']
    L += [f's_lshl_b32 s{sDma}, s{sI0}, 10', f's_add_u32 s{sDma}, s{sDma}, {RB}']
    L += [f'v_lshrrev_b32 v{fb}, 1, v{vG}', f'v_and_b32 v{fc}, 1, v{vG}', f'v_lshlrev_b32 v{fa}, 4, v{fb}',
          f'v_lshl_add_u32 v{fa}, v{fc}, 2, v{fa}', f'v_add_u32 v{fa}, v{fa}, v{vR4}', f'v_mul_u32_u24 v{fa}, s{sRS}, v{fa}',
          f'v_lshl_add_u32 v{fa}, v{vC4}, 3, v{fa}', f'v_add_u32 v{fa}, s{sDma}, v{fa}',
          f's_lshl_b32 s{sF1}, s{sSWZ}, 4', f'v_lshlrev_b32 v{fd}, 5, v{fc}', f'v_and_b32 v{fd}, s{sF1}, v{fd}',
          f'v_add_u32 v{vT}, v{fa}, v{fd}', f'v_sub_u32 v{vT+1}, v{fa}, v{fd}', f'v_add_u32 v{vT+1}, 32, v{vT+1}',
          f's_lshl_b32 s{sF1}, s{sRS}, 3',
          f'v_add_u32 v{vT+2}, s{sF1}, v{vT}', f'v_add_u32 v{vT+3}, s{sF1}, v{vT+1}']
    L += [f'v_add_u32 v{vT+4+q}, {2*SLOT}, v{vT+q}' for q in range(4)]
    L += [f's_movk_i32 s{sF1}, {XS}', f'v_lshlrev_b32 v{fa}, 5, v{fb}', f'v_lshl_add_u32 v{fa}, v{fc}, 3, v{fa}',
          f'v_mad_u32_u24 v{fa}, v{vN}, s{sF1}, v{fa}', f'v_add_u32 v{vXF}, {XB}, v{fa}']
    return L

def acc_init_cin(e):
    I = e.I
    I(f'v_lshrrev_b32 v{fa}, 5, v{vL}')
    I(f'v_lshlrev_b32 v{fa}, 3, v{fa}')
    I(f'v_add_u32 v{fa}, {SM_A0}, v{fa}')
    ids = [I(f'ds_read_b64 {vr(XPA+2*g,2)}, v{fa} offset:{16*g}') for g in range(4)]
    e.wait_ds(ids[-1])
    for g in range(4):
        for q in range(2):
            I(f'v_lshlrev_b32 v{QI+4*g+2*q}, 16, v{XPA+2*g+q}')
            I(f'v_and_b32 v{QI+4*g+2*q+1}, 0xffff0000, v{XPA+2*g+q}')

def acc_init_dnn(e):
    I = e.I
    I(f's_lshl_b32 s{sF0}, s{sI0}, 5')
    I(f's_add_u32 s{sF0}, s{sF0}, {SM_B1}')
    I(f'v_lshlrev_b32 v{fb}, 1, v{vN}')
    I(f'v_add_u32 v{fb}, s{sF0}, v{fb}')
    B = 60
    for u in range(7):
        I(f'v_mov_b32 v{B+u}, 0')
        I(f'v_mov_b32 v{W2V+u}, 0')
    ids = []
    for u in range(7):
        ids.append(I(f'ds_read_u16_d16_hi v{B+u}, v{fb} offset:{32*u}'))
        ids.append(I(f'ds_read_u16_d16_hi v{W2V+u}, v{fb} offset:{832 + 32*u}'))
    for q, val in enumerate(('0xbdd2d3e8', '0xbdd2d3e8', '0xc0135761', '0xc0135761', '1.0', '1.0')):
        I(f'v_mov_b32 v{CST+q}, {val}')
    e.wait_ds(ids[-1])
    for u in range(7):
        for r in range(4):
            I(f'v_mov_b32 v{DACC+4*u+r}, v{B+u}')

def build(debug=None, opts=None):
    global ST
    opts = opts or {}
    e = Emit(); I = e.I
    a, b, c, d = TMP, TMP + 1, TMP + 2, TMP + 3
    touch = opts.get('touch', True)
    gapL = opts.get('gapL', 10)
    sRT = sC1
    I('s_cmp_ge_u32 s2, 256')
    I('s_cbranch_scc1 L_end')
    I('s_load_dwordx16 s[4:19], s[0:1], 0')
    I(f'v_lshrrev_b32 v1, 6, v0')
    I(f'v_and_b32 v{vL}, 63, v0')
    I(f'v_readfirstlane_b32 s{sW}, v1')
    I(f's_bfe_u32 s{sSL}, s2, 0x50003')
    ST = Stamps(debug in ('stamp', 'hstamp'))
    ST(e, 'start')
    if touch:
        I(f's_getpc_b64 {sp(sX0)}')
        I(f's_lshl_b32 s{sT0}, s{sSL}, 3')
        I(f's_add_u32 s{sT0}, s{sT0}, s{sW}')
        I(f's_lshl_b32 s{sT1}, s{sT0}, 7')
        I(f's_and_b32 s{sX0}, s{sX0}, 0xffffff00')
        I(f'v_mov_b32 v{a}, s{sT1}')
        I(f'global_load_dword v{vDUM}, v{a}, {sp(sX0)}')
        I(f's_mul_i32 s{sT1}, s{sT0}, 11')
        I(f's_lshl_b32 s{sT2}, s{sT0}, 2')
        I(f'v_add_u32 v{b}, s{sT1}, v{vL}')
        I(f'v_add_u32 v{c}, s{sT2}, v{vL}')
        I(f'v_lshlrev_b32 v{b}, 7, v{b}')
        I(f'v_lshlrev_b32 v{c}, 7, v{c}')
    I(f's_and_b32 s{sK}, s{sW}, 3')
    I(f's_lshl_b32 s{sT0}, s2, 4')
    I(f's_lshl_b32 s{sT1}, s{sK}, 2')
    I(f's_add_u32 s{sT0}, s{sT0}, s{sT1}')
    I(f's_mul_i32 s{sT0}, s{sT0}, 104')
    I(f'v_lshrrev_b32 v{d}, 1, v{vL}')
    I(f'v_lshlrev_b32 v{d}, 2, v{d}')
    I(f'v_add_u32 v{d}, s{sT0}, v{d}')
    I(f's_cmp_ge_u32 s{sW}, 4')
    I('s_waitcnt lgkmcnt(0)')
    if opts.get('fine'):
        ST(e, 'ka'); I(f's_cmp_ge_u32 s{sW}, 4')
    I('s_cbranch_scc0 L_eN')
    mk_srd(e, S_IDX, 4, 4096 * 104)
    for bb in range(4):
        I(f'buffer_load_dword v{vIDX+bb}, v{d}, {srd(S_IDX)}, 0 offen offset:{bb*104}')
    e.label('L_eN')
    I(f's_mov_b32 s{S_CIN}, s8'); I(f's_mov_b32 s{S_CIN+1}, s9')
    I(f's_mov_b32 s{S_CIN+2}, {3*CIN_L}'); I(f's_mov_b32 s{S_CIN+3}, 0x20000')
    mk_srd(e, S_W1, 12, 346112)
    if touch:
        I('s_mov_b32 exec_lo, 0xf'); I('s_mov_b32 exec_hi, 0')
        I(f'buffer_load_dword v{vDUM}, v{c}, {srd(S_CIN)}, 0 offen')
        I('s_mov_b32 exec_lo, 0x7ff')
        I(f'buffer_load_dword v{vDUM}, v{b}, {srd(S_W1)}, 0 offen')
        I('s_mov_b64 exec, -1')
    if opts.get('fine'): ST(e, 'tch')
    I(f'v_lshrrev_b32 v{a}, 5, v{vL}')
    I(f'v_and_b32 v{b}, 1, v{vL}')
    I(f'v_lshlrev_b32 v{b}, 4, v{b}')
    I(f's_movk_i32 s{sC0}, 1352')
    I(f'v_bfe_u32 v{c}, v{vL}, 1, 4')
    I(f'v_mad_u32_u24 v{b}, v{a}, s{sC0}, v{b}')
    I(f'v_xor_b32 v{c}, v{c}, v{a}')
    I(f's_mul_i32 s{sI0}, s{sK}, 7')
    I(f's_cmp_eq_u32 s{sK}, 3')
    I(f's_cselect_b32 s{sT0}, 1, 0')
    I(f's_sub_u32 s{sI0}, s{sI0}, s{sT0}')
    I(f'v_and_b32 v{a}, 1, v{c}')
    I(f'v_lshl_add_u32 v{b}, v{a}, 5, v{b}')
    I(f's_mul_i32 s{sStage}, s{sK}, {STG}')
    I(f's_mul_i32 s{sT0}, s{sK}, 208')
    I(f's_add_u32 s{sT0}, s{sT0}, {2*CIN_L}')
    I(f's_mul_i32 s{sT1}, s{sI0}, 52')
    I(f's_add_u32 s{sT1}, s{sT1}, {CIN_L}')
    I(f's_movk_i32 s{sT2}, 832')
    I(f's_cmp_ge_u32 s{sW}, 4')
    I(f's_cselect_b32 s{sSrc}, s{sT1}, s{sT0}')
    I(f's_cselect_b32 s{sRT}, 208, s{sT2}')
    I(f's_movk_i32 s{sT2}, {WS2}')
    I(f's_cselect_b32 s{sT0}, {WS1}, s{sT2}')
    I(f's_add_u32 s{sStage}, s{sStage}, s{sT0}')
    I(f'v_lshrrev_b32 v{a}, 3, v{c}')
    I(f'v_mad_u32_u24 v{b}, v{a}, s{sRT}, v{b}')
    I(f'v_bfe_u32 v{c}, v{c}, 1, 2')
    I(f's_mov_b32 m0, s{sStage}')
    I(f'v_mad_u32_u24 v{vSO}, v{c}, 52, v{b}')
    I(f's_movk_i32 s{sT3}, 2704')
    I(f's_movk_i32 s{sT2}, 1024')
    for tm in range(1, 4):
        I(f'v_xor_b32 v{a}, {tm}, v{c}')
        I(f'v_mad_u32_u24 v{vSO+tm}, v{a}, 52, v{b}')
    if opts.get('fine'): ST(e, 'dma0')
    for t in range(13):
        I(f'buffer_load_dwordx4 v{vSO + (t & 3)}, {srd(S_CIN)}, s{sSrc} offen lds')
        if t < 12:
            I(f's_add_u32 m0, m0, s{sT2}')
            I(f's_add_u32 s{sSrc}, s{sSrc}, s{sT3}')
    ST(e, 'b0')
    I(f's_load_dwordx2 s[20:21], s[0:1], 64')
    if debug == 'hstamp':
        I('s_load_dwordx2 s[22:23], s[0:1], 72')
    elif debug:
        I('s_load_dwordx2 s[22:23], s[0:1], 80')
    I(f's_load_dword s{sBO}, s[18:19], 0')
    I(f'v_and_b32 v{vN}, 15, v{vL}')
    I(f'v_lshrrev_b32 v{vG}, 4, v{vL}')
    I(f'v_bfe_u32 v{vR4}, v{vL}, 2, 2')
    I(f'v_and_b32 v{vC4}, 3, v{vL}')
    I(f's_cmp_lt_u32 s{sW}, 4')
    I('s_cbranch_scc1 L_Upath')

    ms = ['s[72:73]', 's[74:75]', 's[76:77]', 'vcc']
    I(f's_mov_b32 s{sE52}, -1')
    I(f's_mov_b32 s{sE52+1}, 0x000fffff')
    I(f'v_lshlrev_b32 v{b}, 4, v{vG}')
    I(f'v_mad_u32_u24 v{vFO}, v{vN}, 52, v{b}')
    I(f'v_cmp_gt_u32 vcc, 10, v{vN}')
    I(f'v_add_u32 v{vFO+1}, 832, v{vFO}')
    I(f'v_mov_b32 v{c}, 0x7ff00000')
    I(f'v_cndmask_b32 v{vFO+1}, v{c}, v{vFO+1}, vcc')
    I(f's_mul_i32 s{sT0}, s{sI0}, 1352')
    F = FQ()
    g0 = f_srd(S_A0, 10, 52) + f_srd(S_B1, 14, 832) + f_srd(S_W2, 16, 832) + [f'v_lshlrev_b32 v{fe}, 4, v{vL}']
    F.add(f'v_lshrrev_b32 v{fa}, 4, v{vL}', f'v_mul_u32_u24 v{fa}, {XS}, v{fa}', f'v_lshl_add_u32 v{fa}, v{vN}, 2, v{fa}',
          f's_mul_i32 s{sF0}, s{sK}, {4*XS}', f's_add_u32 s{sF0}, s{sF0}, {XB + 832}', f'v_add_u32 v{fa}, s{sF0}, v{fa}',
          f'v_cmp_gt_u32 vcc, 8, v{vN}', f'v_mov_b32 v{fb}, 0x3f803f80', f'v_mov_b32 v{fc}, {XCNT}', f'v_mov_b32 v{fd}, 0',
          f'v_cndmask_b32 v{fb}, 0, v{fb}, vcc', f'ds_write_b32 v{fa}, v{fb}', f'ds_write_b32 v{fc}, v{fd}', f'ds_write_b32 v{fc}, v{fd} offset:4')
    F.add(f'v_and_b32 v{fa}, 1, v{vL}', f'v_lshlrev_b32 v{fa}, 4, v{fa}', f'v_mov_b32 v{fb}, 0x3f80', f'v_lshlrev_b32 v{fb}, v{fa}, v{fb}',
          's_mov_b32 s73, 0', 's_mov_b32 s74, 0')
    for dw in range(4):
        m0_ = (3 << (2*dw)) | (3 << (16 + 2*dw + 8))
        m1_ = (3 << (2*dw)) | ((3 << 24) if dw == 0 else 0)
        F.add(f's_mov_b32 s72, {hex(m0_)}', f'v_cndmask_b32 v{EF+dw}, 0, v{fb}, s[72:73]',
              f's_mov_b32 s75, {hex(m1_)}', f'v_cndmask_b32 v{EF+4+dw}, 0, v{fb}, s[74:75]')
    F.add(*f_common_a())
    F.add(*f_setup_cin())
    def small_dma():
        I(f's_cmp_eq_u32 s{sK}, 0'); I('s_cbranch_scc0 L_sm1')
        I('s_mov_b32 exec_lo, 15'); I('s_mov_b32 exec_hi, 0')
        I(f's_mov_b32 m0, {SM_A0}'); I('s_nop 0')
        I(f'buffer_load_dwordx4 v{fe}, {srd(S_A0)}, 0 offen lds')
        I('s_branch L_smdone')
        e.label('L_sm1')
        I(f's_mov_b64 exec, {sp(sE52)}')
        I(f's_cmp_eq_u32 s{sK}, 1'); I('s_cbranch_scc0 L_sm2')
        I(f's_mov_b32 m0, {SM_B1}'); I('s_nop 0')
        I(f'buffer_load_dwordx4 v{fe}, {srd(S_B1)}, 0 offen lds')
        I('s_branch L_smdone')
        e.label('L_sm2')
        I(f's_cmp_eq_u32 s{sK}, 2'); I('s_cbranch_scc0 L_smdone')
        I(f's_mov_b32 m0, {SM_W2}'); I('s_nop 0')
        I(f'buffer_load_dwordx4 v{fe}, {srd(S_W2)}, 0 offen lds')
        e.label('L_smdone')
        I('s_mov_b64 exec, -1')
    for x in g0: I(x)
    small_dma()
    b1_at = opts.get('b1_at', 99)
    for u in range(7):
        if u == 6:
            I(f's_cmp_ge_u32 s{sK}, 2'); I('s_cbranch_scc1 L_w0done')
        if u == b1_at:
            I(f's_waitcnt vmcnt({0 if opts.get("safe_b1") else max(0, 2*u - 3)})')
            I('s_barrier')
            ST(e, 'b1')
        I(f's_add_u32 s{sT1}, s{sT0}, {u*1352}')
        for R in range(2):
            I(f'buffer_load_dwordx4 {vr(FF+8*u+4*R,4)}, v{vFO+R}, {srd(S_CIN)}, s{sT1} offen')
            if u < 6: F.drain(e, opts.get('gapW0', 0))
    e.label('L_w0done')
    if b1_at >= 7: I(f's_waitcnt vmcnt({25 + (2 if touch else 0)})')
    for _ in range(opts.get('dly_g', 0)): I('s_nop 15')
    mk_srd(e, S_TAB, 6, 3200000)
    I(f'v_and_b32 v{a}, 1, v{vL}')
    I(f'v_lshlrev_b32 v{a}, 4, v{a}')
    for bb in range(4):
        I(f'v_lshl_add_u32 v{vIDX+bb}, v{vIDX+bb}, 5, v{a}')
    I(f's_mul_i32 s{sT0}, s{sK}, {4*XS}')
    I(f's_mov_b64 exec, {sp(sE52)}')
    for bb in range(4):
        I(f's_add_u32 m0, s{sT0}, {XB + bb*XS}')
        I('s_nop 0')
        I(f'buffer_load_dwordx4 v{vIDX+bb}, {srd(S_TAB)}, 0 offen lds')
    I('s_mov_b64 exec, -1')
    ST(e, 'pre1')
    if b1_at >= 7:
        I('s_waitcnt vmcnt(13)')
        I('s_barrier')
        ST(e, 'b1')
    if opts.get('lprio'): I(f's_setprio {opts["lprio"]}')
    for _ in range(opts.get('dly_p', 0)): I('s_nop 15')
    F.drain(e)
    prev = None
    for u in range(7):
        if u == 6:
            I(f's_cmp_ge_u32 s{sK}, 2'); I('s_cbranch_scc1 L_plast')
        n = 2 * (5 - u) + 4 if u <= 5 else 4
        I(f's_waitcnt vmcnt({0 if opts.get("safe_p") else n})')
        f = FF + 8 * u
        unit(e, f, f + 4, EF, EF + 4, DD[u & 1], None if prev is None else (DD[prev & 1], prev, FR_P))
        prev = u
    unit_store(e, DD[6 & 1], 6, FR_P)
    I('s_branch L_pend')
    e.label('L_plast')
    unit_store(e, DD[5 & 1], 5, FR_P)
    e.label('L_pend')
    ST(e, 'units')
    I('s_waitcnt lgkmcnt(0)')
    ST(e, 'fold')
    if opts.get('lprio'): I('s_setprio 0')
    I('s_barrier')
    ST(e, 'b2')
    e.ds_q = []
    if debug == 'fold':
        I('s_branch L_dbg')
    else:
        acc_init_cin(e)
        I('s_waitcnt lgkmcnt(0)')
        main_cin(e, debug, opts)
        I('s_branch L_join')

    e.last = {}; e.ds_q = []
    e.label('L_Upath')
    I(f's_lshl_b32 s{sT2}, s{sK}, 3')
    I(f's_add_u32 s{sT2}, s{sT2}, 52')
    I(f's_add_u32 s{sT3}, s{sT2}, 32')
    I(f's_load_dwordx16 s[{SA}:{SA+15}], s[10:11], 104')
    I(f's_load_dwordx2 s[60:61], s[10:11], s{sT2}')
    I(f's_load_dwordx2 s[62:63], s[10:11], s{sT3}')
    for j in range(2):
        I(f'v_lshl_add_u32 v{fa}, v{vG}, 2, v{vR4}')
        if j:
            I(f'v_add_u32 v{fa}, 16, v{fa}'); I(f'v_min_u32 v{fa}, 25, v{fa}')
        I(f'v_and_b32 v{fb}, 7, v{fa}'); I(f'v_lshlrev_b32 v{fb}, 5, v{fb}'); I(f'v_lshl_add_u32 v{fb}, v{fa}, 9, v{fb}')
        I(f'v_lshl_add_u32 v{fb}, v{vC4}, 3, v{fb}'); I(f'v_add_u32 v{TAD+8*j}, s{sStage}, v{fb}')
        for x in range(1, 8):
            I(f'v_xor_b32 v{TAD+8*j+x}, {x*32}, v{TAD+8*j}')
    for u in range(4, 8):
        for R in range(2): I(f'v_mov_b32 v{UD+8*u+4*R}, 0')
    for dw in range(4): I(f'v_mov_b32 v{SELA+dw}, 0')
    I(f'v_lshlrev_b32 v{a}, 4, v{vL}')
    I(f'v_add_u32 v{a}, {HB}, v{a}')
    I(f'v_cmp_gt_u32 {sp(sMN10)}, 10, v{vN}')
    I(f's_lshl_b32 s{sF0}, s{sK}, 2')
    I(f's_lshl_b32 s{sF1}, 1, s{sF0}')
    I(f's_lshl_b32 s{sF2}, s{sF1}, 16')
    I('s_waitcnt lgkmcnt(0)')
    for q in (13, 14, 15): I(f's_mov_b32 s{SA+q}, 0')
    for g in range(4):
        if g < 2:
            I(f's_mov_b32 exec_lo, s{sF1 if g == 0 else sF2}'); I('s_mov_b32 exec_hi, 0') if g == 0 else None
        else:
            I('s_mov_b32 exec_lo, 0') if g == 2 else None
            I(f's_mov_b32 exec_hi, s{sF1 if g == 2 else sF2}')
        for dw, src in enumerate((2*g, 2*g+1, 8+2*g, 9+2*g)):
            I(f'v_mov_b32 v{SELA+dw}, s{SA+src}')
    I('s_mov_b64 exec, -1')
    I(f's_cmp_le_u32 s{sK}, 2'); I('s_cselect_b32 s62, s62, 0'); I(f's_cmp_le_u32 s{sK}, 1'); I('s_cselect_b32 s63, s63, 0')
    for q in range(4):
        I(f's_lshl_b32 s{SA+2*q}, s{60+q}, 16'); I(f's_and_b32 s{SA+2*q+1}, s{60+q}, 0xffff0000')
    I('s_waitcnt vmcnt(0)')
    ST(e, 'pre1')
    for x in f_common_a(): I(x)
    def frag_reads(u, nbuf=4, off=0):
        buf = UB + 8 * (u % nbuf)
        ids = []
        for R in range(2):
            pg = 2 * u + R
            for j in range(2):
                ids.append(I(f'ds_read_b64_tr_b16 {vr(buf+4*R+2*j,2)}, v{TAD+8*j+(pg&7)} offset:{off + (pg>>3)*256}'))
        return ids
    pend = {u: frag_reads(u) for u in range(3)}
    for u in range(8):
        if u == 4:
            I(f's_cmp_eq_u32 s{sK}, 3'); I('s_cbranch_scc1 L_u2done')
        if u == 6:
            I(f's_cmp_eq_u32 s{sK}, 2'); I('s_cbranch_scc1 L_u2done')
        if u + 3 < 8:
            pend[u + 3] = frag_reads(u + 3)
        e.wait_ds(pend[u][-1])
        buf = UB + 8 * (u % 4)
        for R in range(2):
            I(f'v_mfma_f32_16x16x32_bf16 {vr(UD+8*u+4*R,4)}, {vr(SELA,4)}, {vr(buf+4*R,4)}, 0')
    e.label('L_u2done')
    I(f's_mov_b32 s{sX0}, 0xffff')
    I(f's_mov_b32 s{sX0+1}, 0')
    I(f's_lshl_b32 s{sT0}, s{sK}, 4')
    for u in range(4):
        I(f'v_cvt_pk_bf16_f32 v{HF+u}, v{UD+16*u}, v{UD+16*u+8}')
    for u in range(8):
        I(f'v_cndmask_b32 v{UD+8*u+4}, 0, v{UD+8*u+4}, {sp(sMN10)}')
    I('s_mov_b32 exec_lo, 0x04000400'); I('s_mov_b32 exec_hi, 0x04000400')
    for u in range(8):
        I(f'v_mov_b32 v{UD+8*u+4}, s{SA+u}')
    I('s_mov_b64 exec, -1')
    for u in range(4):
        I(f'v_cvt_pk_bf16_f32 v{HF+4+u}, v{UD+16*u+4}, v{UD+16*u+12}')
    I(f's_lshl_b64 exec, {sp(sX0)}, s{sT0}')
    I(f'ds_write_b128 v{a}, {vr(HF,4)}')
    I(f'ds_write_b128 v{a}, {vr(HF+4,4)} offset:1024')
    I('s_mov_b64 exec, -1')
    if opts.get('dnnsetup_early', 1):
        for x in f_setup_dnn(): I(x)
    I('s_waitcnt lgkmcnt(0)')
    I('s_barrier')
    ST(e, 'b1')
    for _ in range(opts.get('dly_t', 0)): I('s_nop 15')
    I(f'ds_read_b128 {vr(HF,4)}, v{a} offset:0')
    I(f'ds_read_b128 {vr(HF+4,4)}, v{a} offset:1024')
    pend = {u: frag_reads(u, off=WS1 - WS2) for u in range(3)}
    prev = None
    for u in range(7):
        if u == 6:
            I(f's_cmp_ge_u32 s{sK}, 2'); I('s_cbranch_scc1 L_tlast')
        if u + 3 < 7:
            pend[u + 3] = frag_reads(u + 3, off=WS1 - WS2)
        e.wait_ds(pend[u][-1])
        g = UB + 8 * (u % 4)
        for dw in range(4):
            I(f'v_cndmask_b32 v{g+4+dw}, 0, v{g+4+dw}, {sp(sMN10)}')
        unit(e, g, g + 4, HF, HF + 4, DD[u & 1], None if prev is None else (DD[prev & 1], prev, FR_Q))
        prev = u
    unit_store(e, DD[6 & 1], 6, FR_Q)
    I('s_branch L_tend')
    e.label('L_tlast')
    unit_store(e, DD[5 & 1], 5, FR_Q)
    e.label('L_tend')
    ST(e, 'units')
    I('s_waitcnt lgkmcnt(0)')
    e.ds_q = []
    if not opts.get('dnnsetup_early', 1):
        for x in f_setup_dnn(): I(x)
    if opts.get('dnn0_early', 1): dma_step(e, 0, 'U0')
    I(f'v_mov_b32 v{vXCA}, {XCNT}')
    I(f'v_mov_b32 v{vONE}, 1')
    acc_init_dnn(e)
    I('s_waitcnt lgkmcnt(0)')
    ST(e, 'fold')
    I('s_barrier')
    ST(e, 'b2')
    e.ds_q = []
    if debug == 'fold':
        e.label('L_dbg')
        I('s_waitcnt vmcnt(0)'); I('s_barrier')
        dump_lds(e)
        return finish(e, opts)
    main_dnn(e, debug, opts)
    final(e, debug, opts)
    return finish(e, opts)

def dma_step(e, step, tag):
    I = e.I
    slot = step % 4
    I(f's_mov_b32 s{sT3}, {step*26624}')
    for u in range(7):
        if u == 6:
            I(f's_cmp_ge_u32 s{sK}, 2'); I(f's_cbranch_scc1 L_dma_{tag}')
        I(f's_add_u32 m0, s{sDma}, {slot*SLOT + u*1024}')
        I('s_nop 0')
        I(f'buffer_load_dwordx4 v{vDMA+u}, {srd(S_W1)}, s{sT3} offen lds')
    e.label(f'L_dma_{tag}')

def unit(e, X0, X1, Y0, Y1, D, prev):
    I = e.I
    mf = []
    def m(dd, A, B, first):
        mf.append(f'v_mfma_f32_16x16x32_bf16 {vr(dd,4)}, {vr(A,4)}, {vr(B,4)}, ' + ('0' if first else vr(dd, 4)))
    m(D, X0, Y0, True); m(D + 4, X1, Y0, True); m(D + 8, X1, Y1, True)
    m(D, Y0, X0, False); m(D + 4, Y1, X0, False); m(D + 8, Y1, X1, False)
    fill = []
    if prev is not None:
        PD, pu, setbase = prev
        for ti in range(3):
            fill.append(f'v_cvt_pk_bf16_f32 v{DC+2*ti}, v{PD+4*ti}, v{PD+4*ti+1}')
            fill.append(f'v_cvt_pk_bf16_f32 v{DC+2*ti+1}, v{PD+4*ti+2}, v{PD+4*ti+3}')
        for ti in range(3):
            fill.append(f'ds_write_b32 v{vWA+ti}, v{DC+2*ti} offset:{setbase + pu*16}')
            fill.append(f'ds_write_b32 v{vWB+ti}, v{DC+2*ti+1} offset:{setbase + pu*16}')
    for i in range(6):
        I(mf[i])
        for f in fill[2*i:2*i+2]:
            I(f)

def unit_store(e, D, u, setbase):
    I = e.I
    for ti in range(3):
        I(f'v_cvt_pk_bf16_f32 v{DC+2*ti}, v{D+4*ti}, v{D+4*ti+1}')
        I(f'v_cvt_pk_bf16_f32 v{DC+2*ti+1}, v{D+4*ti+2}, v{D+4*ti+3}')
    for ti in range(3):
        I(f'ds_write_b32 v{vWA+ti}, v{DC+2*ti} offset:{setbase + u*16}')
        I(f'ds_write_b32 v{vWB+ti}, v{DC+2*ti+1} offset:{setbase + u*16}')

def dump_lds(e):
    I = e.I
    I('v_mbcnt_lo_u32_b32 v1, -1, 0'); I('v_mbcnt_hi_u32_b32 v1, -1, v1')
    I(f's_lshl_b32 s{sT0}, s{sW}, 10')
    I('v_lshlrev_b32 v1, 4, v1')
    I(f'v_add_u32 v1, s{sT0}, v1')
    I(f's_mul_i32 s{sT1}, s2, {LDS_TOTAL}')
    I(f'v_add_u32 v2, s{sT1}, v1')
    I(f's_mov_b32 s{sT2}, 0')
    e.label('L_dump')
    I('ds_read_b128 v[4:7], v1')
    I('s_waitcnt lgkmcnt(0)')
    I('global_store_dwordx4 v2, v[4:7], s[22:23]')
    I('s_waitcnt vmcnt(0)')
    I('v_add_u32 v1, 8192, v1'); I('v_add_u32 v2, 8192, v2')
    I(f's_add_u32 s{sT2}, s{sT2}, 1')
    I(f's_cmp_lt_u32 s{sT2}, 20')
    e.raw('    s_cbranch_scc1 L_dump')

def main_cin(e, debug, opts):
    I = e.I
    steps = step_list()
    hs = opts.get('hsched', [3, 5, 5, 5, 5, 5, 5, 5, 5, 5, 5, 3, 0])
    assert sum(hs) == 56 and len(hs) == 13
    halves = [(s_, X_) for s_ in range(28) for X_ in range(2)]
    sc = []; si = 0
    for n in hs:
        sc.append(halves[si:si + n]); si += n
    XR = [XA, XBB]; ZZ = [ZA, ZBB]
    af_ids = {}
    def af_read(s):
        buf = AF[s & 1]
        I(f'ds_read_b128 {vr(buf,4)}, v{vAF} offset:{FR_P + s*FST}')
        af_ids[s] = I(f'ds_read_b128 {vr(buf+4,4)}, v{vAF} offset:{FR_Q + s*FST}')
    def z_half(X, s, pi):
        aa, bb = steps[s]
        mod = ' div:2' if aa == bb else ''
        t = ZT + 4 * pi
        x = XR[X]
        for qi in range(4):
            if mod: I(f'v_mul_f32_e64 v{t+qi}, v{x+4*aa+pi}, v{x+4*bb+qi}{mod}')
            else: I(f'v_mul_f32 v{t+qi}, v{x+4*aa+pi}, v{x+4*bb+qi}')
        z = ZZ[X][s & 1]
        I(f'v_cvt_pk_bf16_f32 v{z+2*pi}, v{t}, v{t+1}')
        I(f'v_cvt_pk_bf16_f32 v{z+2*pi+1}, v{t+2}, v{t+3}')
    def epilogue():
        t = TMP
        for X in range(2):
            P, Q = ACC[('P', X)], ACC[('Q', X)]
            t = TMP + 4 * X
            I(f'v_mul_f32 v{t}, v{P}, v{Q}')
            I(f'v_mul_f32 v{t+1}, v{P+12}, v{Q+12}')
            I(f'v_mul_f32 v{t+2}, v{P+1}, v{Q+1}')
            I(f'v_fmac_f32 v{t+1}, v{P+13}, v{Q+13}')
            for r in range(2, 12):
                I(f'v_fmac_f32 v{t + 2*(r&1)}, v{P+r}, v{Q+r}')
        I(f'v_cmp_gt_u32 vcc, 32, v{vL}')
        for X in range(2):
            t = TMP + 4 * X
            I(f'v_add_f32 v{t}, v{t}, v{t+2}')
        for X in range(2):
            t = TMP + 4 * X
            I(f'v_cndmask_b32 v{t+1}, 0, v{t+1}, vcc')
        for X in range(2):
            t = TMP + 4 * X
            I(f'v_add_f32 v{t}, v{t}, v{t+1}')
        t = TMP
        I(f'v_and_b32 v{t+2}, 1, v{vG}')
        I(f'v_lshlrev_b32 v{t+2}, 6, v{t+2}')
        I(f'v_lshrrev_b32 v{t+3}, 1, v{vG}')
        I(f'v_lshl_add_u32 v{t+2}, v{t+3}, 2, v{t+2}')
        I(f's_lshl_b32 s{sT0}, s{sK}, 8')
        I(f's_add_u32 s{sT0}, s{sT0}, {RED + 16}')
        I(f'v_add_u32 v{t+2}, s{sT0}, v{t+2}')
        for sh in (8, 4, 2, 1):
            for X in range(2):
                tt = TMP + 4 * X
                I(f'v_add_f32_dpp v{tt}, v{tt}, v{tt} row_ror:{sh} row_mask:0xf bank_mask:0xf')
        I(f's_mov_b32 exec_lo, 0x00010001'); I(f's_mov_b32 exec_hi, 0x00010001')
        I(f'ds_write_b32 v{t+2}, v{TMP}')
        I(f'ds_write_b32 v{t+2}, v{TMP+4} offset:128')
        I('s_mov_b64 exec, -1')
    for j in range(13):
        e.comment(f'---- CIN interval {j}')
        if j == 0:
            I(f'v_mov_b32 v{TMP}, {XCNT}'); I(f'v_mov_b32 v{TMP+1}, 1')
            I('s_waitcnt vmcnt(0)')
            I('s_nop 15')
            if opts.get('cp0', 2): I(f's_setprio {opts.get("cp0", 2)}')
            I('s_mov_b64 exec, 1')
            I(f'ds_add_u32 v{TMP}, v{TMP+1} offset:4')
            I('s_mov_b64 exec, -1')
        if j == 1 and opts.get('cp0', 2): I(f's_setprio {opts.get("cp1", 0)}')
        ST(e, f'it{j}')
        if j == 0:
            xa = [I(f'ds_read_b64_tr_b16 {vr(XPA+2*q,2)}, v{vTRX} offset:{128*q}') for q in range(7)]
            xb = [I(f'ds_read_b64_tr_b16 {vr(XPB+2*q,2)}, v{vTRX} offset:{2*XS + 128*q}') for q in range(7)]
            I('s_waitcnt lgkmcnt(0)')
            I('s_mov_b64 exec, 1')
            I(f'ds_add_u32 v{TMP}, v{TMP+1}')
            I('s_mov_b64 exec, -1')
            if opts.get('safe_x'): I('s_barrier')
            af_read(0); af_read(1)
            for q in range(7):
                for h in range(2):
                    I(f'v_lshlrev_b32 v{XA+4*q+2*h}, 16, v{XPA+2*q+h}')
                    I(f'v_and_b32 v{XA+4*q+2*h+1}, 0xffff0000, v{XPA+2*q+h}')
            z_half(0, 0, 0); z_half(0, 0, 1)
            for q in range(7):
                for h in range(2):
                    I(f'v_lshlrev_b32 v{XBB+4*q+2*h}, 16, v{XPB+2*q+h}')
                    I(f'v_and_b32 v{XBB+4*q+2*h+1}, 0xffff0000, v{XPB+2*q+h}')
            z_half(1, 0, 0); z_half(1, 0, 1)
        for (s, X) in ([] if opts.get('no_cin') else sc[j]):
            if X == 0: e.wait_ds(af_ids[s])
            buf = AF[s & 1]
            z = ZZ[X][s & 1]
            P, Q = ACC[('P', X)], ACC[('Q', X)]
            I(f'v_mfma_f32_32x32x16_bf16 {vr(P,16)}, {vr(buf,4)}, {vr(z,4)}, ' + ('0' if s == 0 else vr(P,16)))
            if s + 1 < 28: z_half(X, s + 1, 0)
            I(f'v_mfma_f32_32x32x16_bf16 {vr(Q,16)}, {vr(buf+4,4)}, {vr(z,4)}, ' + (vr(QI,16) if s == 0 else vr(Q,16)))
            if X == 1 and s + 2 < 28: af_read(s + 2)
            if s + 1 < 28: z_half(X, s + 1, 1)
        if (not sc[j]) and j > 0 and sc[j-1]:
            if opts.get('cpe', 2): I(f's_setprio {opts.get("cpe", 2)}')
            epilogue()
    if sc[12]:
        epilogue()
    I('s_waitcnt lgkmcnt(0)')
    ST(e, 'gelu')

def main_dnn(e, debug, opts):
    I = e.I
    e.last = {}
    I(f's_cmp_ge_u32 s{sK}, 2')
    I('s_cselect_b64 vcc, -1, 0')
    def dma_one(step, u, tag, between=None):
        if u == 6: I(f's_cbranch_vccnz L_d6_{tag}')
        I(f's_add_u32 m0, s{sDma}, {(step % 4)*SLOT + u*1024}')
        if between: between()
        else: I('s_nop 0')
        I(f'buffer_load_dwordx4 v{vDMA+u}, {srd(S_W1)}, s{sT3} offen lds')
        if u == 6: e.label(f'L_d6_{tag}')
    def mf(j, u):
        I(f'v_mfma_f32_16x16x32_bf16 {vr(DACC+4*u,4)}, {vr(XF+4*j,4)}, {vr(WF[j&1]+4*u,4)}, {vr(DACC+4*u,4)}')
    plan = {j: ([j + 3] if j + 3 <= 12 else []) for j in range(13)}
    order = [(st_, u) for st_ in range(3) for u in range(7)]
    tops = {}
    for j in range(13):
        tops[j] = list(order)
        order += [(st_, u) for st_ in plan[j] for u in range(7)]
    def later_count(j, cls7):
        seq = [x for x in tops[j] if cls7 or x[1] < 6]
        jj_ = min(j + 1, 12)
        last = max(i for i, x in enumerate(seq) if x[0] == jj_)
        return len(seq) - 1 - last
    if not opts.get('dnn0_early', 1): dma_step(e, 0, 'C0')
    dma_step(e, 1, 'C1')
    dma_step(e, 2, 'C2')
    e.label('L_xl_dnn')
    I(f'ds_read_b32 v{vXCT}, v{vXCA} offset:4')
    I('s_waitcnt lgkmcnt(0)')
    I(f'v_readfirstlane_b32 s{sT0}, v{vXCT}')
    I(f's_cmp_ge_u32 s{sT0}, 4')
    e.raw('    s_cbranch_scc0 L_xl_dnn')
    ST(e, 'it0')
    for q in range(13):
        I(f'ds_read_b64 {vr(XF+4*q,2)}, v{vXF} offset:{64*q}')
        I(f'ds_read_b64 {vr(XF+4*q+2,2)}, v{vXF} offset:{64*q+16}')
    I('s_waitcnt lgkmcnt(0)')
    I('s_mov_b64 exec, 1')
    I(f'ds_add_u32 v{vXCA}, v{vONE}')
    I('s_mov_b64 exec, -1')
    for j in range(13):
        e.comment(f'---- DNN interval {j}')
        n7, n6 = later_count(j, True), later_count(j, False)
        if opts.get('safe_dv'): n7 = n6 = 0
        if n7 != n6:
            I(f's_cbranch_vccnz L_vw6_{j}')
            I(f's_waitcnt vmcnt({n7})')
            I(f's_branch L_vwd_{j}')
            e.label(f'L_vw6_{j}')
            I(f's_waitcnt vmcnt({n6})')
            e.label(f'L_vwd_{j}')
        else:
            I(f's_waitcnt vmcnt({n7})')
        if j > 0: ST(e, f'it{j}')
        slot = j % 4
        tb = vT + 4 * (slot >> 1)
        for u in range(7):
            if u == 6: I(f's_cbranch_vccnz L_r6_{j}')
            for jj in range(2):
                I(f'ds_read_b64_tr_b16 {vr(WF[j&1]+4*u+2*jj,2)}, v{tb+2*jj+(u&1)} offset:{(slot&1)*SLOT + (u>>1)*64}')
        e.label(f'L_r6_{j}')
        steps_ = [] if opts.get('no_dma') else plan[j]
        first = steps_[0] if steps_ else None
        if j == 0:
            e.label('L_xspin')
            I(f'ds_read_b32 v{vXCT}, v{vXCA}')
            I('s_waitcnt lgkmcnt(0)')
            I(f'v_readfirstlane_b32 s{sT0}, v{vXCT}')
            I(f's_cmp_ge_u32 s{sT0}, 8')
            e.raw('    s_cbranch_scc0 L_xspin')
            I(f's_mov_b32 s{sT3}, {first*26624}')
            for u in range(7): dma_one(first, u, '0')
        else:
            I('s_waitcnt lgkmcnt(12)')
            if first is not None: I(f's_mov_b32 s{sT3}, {first*26624}')
            for u in range(7):
                if u == 6:
                    I(f's_cbranch_vccnz L_m6_{j}')
                    if first is not None:
                        I(f's_add_u32 m0, s{sDma}, {(first % 4)*SLOT + u*1024}'); mf(j - 1, u)
                        I(f'buffer_load_dwordx4 v{vDMA+u}, {srd(S_W1)}, s{sT3} offen lds')
                    else: mf(j - 1, u)
                    e.label(f'L_m6_{j}')
                elif first is not None:
                    dma_one(first, u, f'{j}', between=lambda: mf(j - 1, u))
                else:
                    mf(j - 1, u)
    I('s_waitcnt lgkmcnt(0)')
    for u in range(7):
        if u == 6: I('s_cbranch_vccnz L_m6_end')
        mf(12, u)
    e.label('L_m6_end')
    ST(e, 'gelu')
    G = TMP
    T = TMP + 4
    C1, C0, ONE = CST, CST + 2, CST + 4
    def gelu(pairs, first):
        def each(fn):
            for k_, (x, u, h) in enumerate(pairs):
                fn(x, T + 2 * k_, u, h, k_)
        each(lambda x, t, u, h, k_: I(f'v_pk_mul_f32 {vr(t,2)}, {vr(x,2)}, {vr(x,2)}'))
        each(lambda x, t, u, h, k_: I(f'v_pk_fma_f32 {vr(t,2)}, {vr(t,2)}, {vr(C1,2)}, {vr(C0,2)}'))
        each(lambda x, t, u, h, k_: I(f'v_pk_mul_f32 {vr(t,2)}, {vr(t,2)}, {vr(x,2)}'))
        each(lambda x, t, u, h, k_: (I(f'v_exp_f32 v{t}, v{t}'), I(f'v_exp_f32 v{t+1}, v{t+1}')))
        each(lambda x, t, u, h, k_: I(f'v_pk_mul_f32 {vr(x,2)}, {vr(x,2)}, {vr(W2V + (u & ~1), 2)} op_sel:[0,{u&1}] op_sel_hi:[1,{u&1}]'))
        each(lambda x, t, u, h, k_: I(f'v_pk_add_f32 {vr(t,2)}, {vr(t,2)}, {vr(ONE,2)}'))
        each(lambda x, t, u, h, k_: (I(f'v_rcp_f32 v{t}, v{t}'), I(f'v_rcp_f32 v{t+1}, v{t+1}')))
        def last(x, t, u, h, k_):
            if first and k_ < 2: I(f'v_pk_mul_f32 {vr(G+2*h,2)}, {vr(t,2)}, {vr(x,2)}')
            else: I(f'v_pk_fma_f32 {vr(G+2*h,2)}, {vr(t,2)}, {vr(x,2)}, {vr(G+2*h,2)}')
        each(last)
    allp = [(DACC + 4*u + 2*h, u, h) for u in range(6) for h in range(2)]
    gelu(allp[0:4], True); gelu(allp[4:8], False); gelu(allp[8:12], False)
    I(f's_cmp_ge_u32 s{sK}, 2'); I(f's_cbranch_scc1 L_g6')
    gelu([(DACC + 24 + 2*h, 6, h) for h in range(2)], False)
    e.label('L_g6')
    I(f'v_lshlrev_b32 v{T}, 8, v{vG}')
    I(f's_lshl_b32 s{sT0}, s{sK}, 2')
    I(f's_add_u32 s{sT0}, s{sT0}, {RED}')
    I(f'v_add_u32 v{T}, s{sT0}, v{T}')
    for sh in (8, 4, 2, 1):
        for r in range(4):
            I(f'v_add_f32_dpp v{G+r}, v{G+r}, v{G+r} row_ror:{sh} row_mask:0xf bank_mask:0xf')
    I(f's_mov_b32 exec_lo, 0x00010001'); I(f's_mov_b32 exec_hi, 0x00010001')
    for r in range(4):
        I(f'ds_write_b32 v{T}, v{G+r} offset:{64*r}')
    I('s_mov_b64 exec, -1')
    I('s_waitcnt lgkmcnt(0)')

def final(e, debug, opts):
    I = e.I
    T = TMP + 4
    e.label('L_join')
    e.last = {}
    if opts.get('delay_end'):
        I(f's_mov_b32 s{sT0}, 0')
        e.label('L_dly')
        for _ in range(8): I('s_nop 15')
        I(f's_add_u32 s{sT0}, s{sT0}, 1')
        I(f's_cmp_lt_u32 s{sT0}, {opts["delay_end"]}')
        e.raw('    s_cbranch_scc1 L_dly')
    I('s_barrier')
    if debug == 'red':
        dump_lds(e); return
    if debug == 'stamp':
        ST(e, 'fin')
        ST.flush(e)
        open(sys.argv[1] + '.names', 'w').write(' '.join(ST.names))
        return
    if debug == 'hstamp':
        ST(e, 'fin')
        sel = opts.get('hsel', ['b0', 'pre1', 'b1', 'units', 'b2', 'it0', 'it12', 'fin'])
        I(f's_cmp_eq_u32 s2, {opts.get("hwg", 128)}'); I('s_cbranch_scc0 L_nohs')
        I(f's_and_b32 s{sT0}, s{sW}, 3'); I(f's_cmp_eq_u32 s{sT0}, 0'); I('s_cbranch_scc0 L_nohs')
        I('s_waitcnt lgkmcnt(0)')
        r0 = STAMP_SLOTS[0]
        for i, nm in enumerate(sel):
            r = STAMP_SLOTS[ST.names.index(nm)]
            I(f's_sub_u32 s{sT1}, s{r}, s{r0}')
            I(f'v_writelane_b32 v200, s{sT1}, {i}')
        I(f's_lshl_b32 s{sT0}, s{sW}, 3')
        I(f'v_lshlrev_b32 v201, 2, v{vL}')
        I(f'v_add_u32 v201, s{sT0}, v201')
        I('s_mov_b32 exec_lo, 0xff'); I('s_mov_b32 exec_hi, 0')
        I('global_store_dword v201, v200, s[22:23]')
        I('s_mov_b64 exec, -1')
        I('s_waitcnt vmcnt(0)')
        e.label('L_nohs')
    I(f's_cmp_lg_u32 s{sW}, 0'); I('s_cbranch_scc1 L_end')
    I('s_mov_b32 exec_lo, 0xffff'); I('s_mov_b32 exec_hi, 0')
    I(f'v_lshlrev_b32 v{T}, 6, v{vL}')
    I(f'v_add_u32 v{T}, {RED}, v{T}')
    I(f'ds_read_b128 {vr(8,4)}, v{T}')
    I(f'ds_read_b64 {vr(12,2)}, v{T} offset:16')
    if debug == 'redout':
        I('s_waitcnt lgkmcnt(0)')
        I(f's_lshl_b32 s{sT0}, s2, 9')
        I(f'v_lshlrev_b32 v20, 5, v{vL}')
        I(f'v_add_u32 v20, s{sT0}, v20')
        I('global_store_dwordx4 v20, v[8:11], s[22:23]')
        I('global_store_dwordx2 v20, v[12:13], s[22:23] offset:16')
        I('s_waitcnt vmcnt(0)')
    I(f's_mov_b32 s{S_OUT}, s20'); I(f's_mov_b32 s{S_OUT+1}, s21')
    I(f's_mov_b32 s{S_OUT+2}, 8192'); I(f's_mov_b32 s{S_OUT+3}, 0x20000')
    I(f's_lshl_b32 s{sBO}, s{sBO}, 16')
    I(f's_lshl_b32 s{sT0}, s2, 5')
    I(f'v_lshlrev_b32 v{T+1}, 1, v{vL}')
    I(f'v_add_u32 v{T+1}, s{sT0}, v{T+1}')
    I('s_waitcnt lgkmcnt(0)')
    I('v_add_f32 v8, v8, v9'); I('v_add_f32 v10, v10, v11'); I('v_add_f32 v12, v12, v13')
    I('v_add_f32 v8, v8, v10')
    I(f'v_add_f32 v12, s{sBO}, v12')
    I('v_add_f32 v8, v8, v12')
    I('v_cvt_pk_bf16_f32 v8, v8, v8')
    I(f'buffer_store_short v8, v{T+1}, {srd(S_OUT)}, 0 offen')

def finish(e, opts):
    e.label('L_end')
    body = e.text()
    hdr = f"""; xDeepFM (CIN + DNN) fused kernel, generated by my own generator script.
; One workgroup = 16 batch rows, 8 waves.  CIN layers are folded at run time into two quadratic forms.
; @launch grid=(256,1,1) block=(512,1,1) lds={LDS_TOTAL}
.amdgcn_target "amdgcn-amd-amdhsa--gfx950"
.text
.globl {KN}
.p2align 8
.type {KN},@function
{KN}:
"""
    ftr = f"""    s_endpgm
.section .rodata,"a"
.p2align 6
.amdhsa_kernel {KN}
  .amdhsa_next_free_vgpr 256
  .amdhsa_next_free_sgpr 102
  .amdhsa_accum_offset 256
  .amdhsa_group_segment_fixed_size 0
  .amdhsa_kernarg_size 88
  .amdhsa_user_sgpr_count 2
  .amdhsa_user_sgpr_kernarg_segment_ptr 1
  .amdhsa_system_sgpr_workgroup_id_x 1
  .amdhsa_ieee_mode 0
.end_amdhsa_kernel
"""
    return hdr + body + ftr

if __name__ == '__main__':
    dbg = sys.argv[2] if len(sys.argv) > 2 and sys.argv[2] != 'none' else None
    opts = eval(sys.argv[3]) if len(sys.argv) > 3 else {}
    out = build(dbg, opts)
    open(sys.argv[1], 'w').write(out)
    print('wrote', sys.argv[1], len(out), 'bytes')
```

```python
import sys, os
from emit import Emit

KN = "standalone__deep_cross_xdeepfm__recsys_kernel"

FST = 848; FR_P = 0; FR_Q = 28 * FST
RB = 47616; SLOT = 26624; WROW = 832
WS2 = RB + SLOT - 4 * 13312
WS1 = RB + SLOT
STG = 13312
XB = RB + 3 * SLOT; XS = 912
HB = RB + 4 * SLOT
SM = HB + 2048; SM_A0 = SM; SM_B1 = SM + 64; SM_W2 = SM + 896
RED = SM + 1728
XCNT = RED + 1024
XLND = XCNT + 4
LDS_TOTAL = 163840
OOB_LDS = 0x40000
CIN_L = 35152
assert WS1 % 512 == 0 and 28 * FST * 2 <= RB and RED + 1024 <= LDS_TOTAL and WS2 % 512 == 0 and WS2 >= 0

S_IDX, S_TAB, S_CIN, S_W1 = 24, 28, 32, 36
S_A0, S_B1, S_W2, S_OUT = 40, 52, 56, 60
sA2 = 96
sW, sK = 64, 65
sBO = 66
sI0 = 67
sT0, sT1, sT2, sT3 = 68, 69, 70, 71
sMN10 = 78
sE52 = 80
sStage, sSrc = 82, 83
sC0, sC1, sC2 = 84, 85, 86
sX0 = 88
sF0, sF1, sF2 = 84, 85, 86
sDma = 92
sSL = 93
SA = 44
def srd(n): return f"s[{n}:{n+3}]"
def sp(n): return f"s[{n}:{n+1}]"
def vr(a, n=1): return f"v{a}" if n == 1 else f"v[{a}:{a+n-1}]"

vL = 0
TMP = 122
fa, fb, fc, fd, fe = 132, 133, 134, 135, 136
vN, vG, vR4, vC4 = 142, 143, 144, 145
vWA = 146
vWB = 149
DD = [152, 164]
DC = 176
vSO = 182
vDUM = 186
UD = 2; SELA = 212; HF = 204
TAD = 188
UB = 68
FF = 2; EF = 60; vIDX = 68; vFO = 72
XA = 2; XBB = 30
ZA = [58, 62]; ZBB = [66, 70]
ZT = 74
AF = [82, 90]
vAF = 100; vTRX = 101
XPA = 104; XPB = 152
QI = 166
ACC = {('P', 0): 192, ('Q', 0): 208, ('P', 1): 224, ('Q', 1): 240}
vDMA = 100
vT = 108
vXF = 116
WF = [2, 30]
XF = 152
DACC = 208
W2V = 236
CST = 244
vXCA = 118; vONE = 119; vXCT = 120

STAMP_SLOTS = [94, 96, 98, 100, 90, 40, 42] + list(range(44, 60, 2)) + [24, 26, 28, 30, 4, 6, 8, 10, 14, 16, 12, 18]
class Stamps:
    def __init__(self, on): self.on = on; self.names = []
    def __call__(self, e, name):
        if not self.on: return
        if name in self.names: i = self.names.index(name)
        else:
            i = len(self.names); self.names.append(name)
        r = STAMP_SLOTS[i]
        e.I(f's_memtime s[{r}:{r+1}]')
    def flush(self, e):
        if not self.on: return
        I = e.I
        I('s_mov_b64 exec, -1')
        I('s_waitcnt vmcnt(0) lgkmcnt(0)')
        for i in range(len(self.names)):
            I(f'v_writelane_b32 v200, s{STAMP_SLOTS[i]}, {i}')
        I('s_memrealtime s[68:69]')
        I('s_waitcnt lgkmcnt(0)')
        I('v_writelane_b32 v200, s68, 31')
        I('v_mbcnt_lo_u32_b32 v201, -1, 0'); I('v_mbcnt_hi_u32_b32 v201, -1, v201')
        I('v_lshlrev_b32 v201, 2, v201')
        I(f's_lshl_b32 s70, s2, 3'); I(f's_add_u32 s70, s70, s{sW}'); I('s_lshl_b32 s70, s70, 8')
        I('v_add_u32 v201, s70, v201')
        I('global_store_dword v201, v200, s[22:23]')
        I('s_waitcnt vmcnt(0)')
ST = Stamps(False)

def step_list():
    return [(a, b) for b in range(7) for a in range(b + 1)]

def mk_srd(e, n, lo, size, add=0):
    I = e.I
    if add:
        I(f's_add_u32 s{n}, s{lo}, {add}')
        I(f's_addc_u32 s{n+1}, s{lo+1}, 0')
    else:
        I(f's_mov_b32 s{n}, s{lo}')
        I(f's_mov_b32 s{n+1}, s{lo+1}')
    I(f's_mov_b32 s{n+2}, {size}')
    I(f's_mov_b32 s{n+3}, 0x20000')


class FQ:
    def __init__(self): self.q = []
    def add(self, *items): self.q.extend(items)
    def drain(self, e, n=10**9):
        k = 0
        while self.q and k < n:
            it = self.q.pop(0)
            if isinstance(it, list):
                for x in it: e.I(x)
                k += len(it)
            else:
                e.I(it); k += 1

def f_srd(n, lo, size):
    return [f's_mov_b32 s{n}, s{lo}', f's_mov_b32 s{n+1}, s{lo+1}', f's_mov_b32 s{n+2}, {size}', f's_mov_b32 s{n+3}, 0x20000']

def f_common_a():
    L = [f'v_bfe_u32 v{fa}, v{vN}, 1, 1', f'v_mul_u32_u24 v{fb}, 420, v{fa}', f'v_and_b32 v{fc}, 1, v{vN}',
         f'v_lshl_add_u32 v{fb}, v{fc}, 3, v{fb}', f's_lshl_b32 s{sF0}, s{sI0}, 4', f'v_lshrrev_b32 v{fc}, 2, v{vN}',
         f'v_add_u32 v{fa}, 1, v{vG}', f'v_mul_u32_u24 v{fa}, v{fa}, v{vG}', f'v_cmp_le_u32 s[72:73], v{fc}, v{vG}',
         f'v_lshrrev_b32 v{fa}, 1, v{fa}', f'v_cmp_ge_u32 s[74:75], 2, v{vG}', f'v_add_u32 v{fa}, v{fa}, v{fc}',
         f's_movk_i32 s{sF2}, {FST}', f'v_add_u32 v{fb}, s{sF0}, v{fb}', f'v_lshlrev_b32 v{fe}, 2, v{vL}',
         f'v_mad_u32_u24 v{fd}, v{fa}, s{sF2}, v{fb}', f's_and_b64 s[76:77], s[72:73], s[74:75]', f'v_add_u32 v{fe}, {OOB_LDS}, v{fe}',
         f's_movk_i32 s{sF1}, {4*FST}', f'v_cndmask_b32 v{vWA}, v{fe}, v{fd}, s[72:73]',
         f'v_mad_u32_u24 v{fd}, v{vG}, s{sF1}, v{fd}', f'v_xor_b32 v{vWB}, 4, v{vWA}', f'v_add_u32 v{fd}, {10*FST}, v{fd}',
         f'v_cndmask_b32 v{vWA+1}, v{fe}, v{fd}, s[74:75]', f'v_add_u32 v{fd}, {4*FST}, v{fd}', f'v_xor_b32 v{vWB+1}, 4, v{vWA+1}',
         f'v_cndmask_b32 v{vWA+2}, v{fe}, v{fd}, s[76:77]', f'v_xor_b32 v{vWB+2}, 4, v{vWA+2}']
    return L

def f_setup_cin():
    L = [f'v_and_b32 v{fa}, 31, v{vL}', f'v_lshlrev_b32 v{fa}, 4, v{fa}', f'v_lshrrev_b32 v{fb}, 5, v{vL}',
         f's_movk_i32 s{sF1}, 416', f'v_mad_u32_u24 v{vAF}, v{fb}, s{sF1}, v{fa}',
         f'v_lshrrev_b32 v{fb}, 1, v{vG}', f'v_and_b32 v{fc}, 1, v{vG}', f's_movk_i32 s{sF1}, {XS}',
         f'v_lshlrev_b32 v{fa}, 1, v{fb}', f'v_xor_b32 v{fa}, v{fa}, v{vR4}', f'v_lshlrev_b32 v{fa}, 5, v{fa}',
         f'v_lshl_add_u32 v{fa}, v{vC4}, 3, v{fa}', f'v_mad_u32_u24 v{fa}, v{fc}, s{sF1}, v{fa}',
         f's_mul_i32 s{sF0}, s{sK}, {4*XS}', f's_add_u32 s{sF0}, s{sF0}, {XB}', f'v_add_u32 v{vTRX}, s{sF0}, v{fa}']
    return L

def f_setup_dnn():
    sCPR, sMAG, sSWZ, sRS = 72, 73, 74, 75
    L = [f's_cmp_lt_u32 s{sK}, 2', f's_cselect_b32 s{sCPR}, 14, 12', f's_mov_b32 s{sF1}, 87382', f's_cselect_b32 s{sMAG}, 74899, s{sF1}',
         f's_cselect_b32 s{sSWZ}, 0, 2', f's_lshl_b32 s{sRS}, s{sCPR}, 4', f's_lshl_b32 s{sF0}, s{sI0}, 5', f's_movk_i32 s{sF2}, 832']
    L += [f's_sub_u32 s{sF2}, s{sF2}, s{sRS}']
    for u in range(7):
        L += [f'v_add_u32 v{fa}, {64*u}, v{vL}', f'v_mul_u32_u24 v{fc}, s{sMAG}, v{fa}', f'v_lshrrev_b32 v{fc}, 20, v{fc}',
              f'v_lshrrev_b32 v{fd}, 1, v{fc}', f'v_and_b32 v{fd}, s{sSWZ}, v{fd}', f'v_xor_b32 v{fa}, v{fa}, v{fd}',
              f'v_lshl_add_u32 v{fa}, v{fa}, 4, s{sF0}', f'v_mad_u32_u24 v{vDMA+u}, v{fc}, s{sF2}, v{fa}']
    L += [f's_lshl_b32 s{sDma}, s{sI0}, 10', f's_add_u32 s{sDma}, s{sDma}, {RB}']
    L += [f'v_lshrrev_b32 v{fb}, 1, v{vG}', f'v_and_b32 v{fc}, 1, v{vG}', f'v_lshlrev_b32 v{fa}, 4, v{fb}',
          f'v_lshl_add_u32 v{fa}, v{fc}, 2, v{fa}', f'v_add_u32 v{fa}, v{fa}, v{vR4}', f'v_mul_u32_u24 v{fa}, s{sRS}, v{fa}',
          f'v_lshl_add_u32 v{fa}, v{vC4}, 3, v{fa}', f'v_add_u32 v{fa}, s{sDma}, v{fa}',
          f's_lshl_b32 s{sF1}, s{sSWZ}, 4', f'v_lshlrev_b32 v{fd}, 5, v{fc}', f'v_and_b32 v{fd}, s{sF1}, v{fd}',
          f'v_add_u32 v{vT}, v{fa}, v{fd}', f'v_sub_u32 v{vT+1}, v{fa}, v{fd}', f'v_add_u32 v{vT+1}, 32, v{vT+1}',
          f's_lshl_b32 s{sF1}, s{sRS}, 3',
          f'v_add_u32 v{vT+2}, s{sF1}, v{vT}', f'v_add_u32 v{vT+3}, s{sF1}, v{vT+1}']
    L += [f'v_add_u32 v{vT+4+q}, {2*SLOT}, v{vT+q}' for q in range(4)]
    L += [f's_movk_i32 s{sF1}, {XS}', f'v_lshlrev_b32 v{fa}, 5, v{fb}', f'v_lshl_add_u32 v{fa}, v{fc}, 3, v{fa}',
          f'v_mad_u32_u24 v{fa}, v{vN}, s{sF1}, v{fa}', f'v_add_u32 v{vXF}, {XB}, v{fa}']
    return L

def acc_init_cin(e):
    I = e.I
    I(f'v_lshrrev_b32 v{fa}, 5, v{vL}')
    I(f'v_lshlrev_b32 v{fa}, 3, v{fa}')
    I(f'v_add_u32 v{fa}, {SM_A0}, v{fa}')
    ids = [I(f'ds_read_b64 {vr(XPA+2*g,2)}, v{fa} offset:{16*g}') for g in range(4)]
    e.wait_ds(ids[-1])
    for g in range(4):
        for q in range(2):
            I(f'v_lshlrev_b32 v{QI+4*g+2*q}, 16, v{XPA+2*g+q}')
            I(f'v_and_b32 v{QI+4*g+2*q+1}, 0xffff0000, v{XPA+2*g+q}')

def acc_init_dnn(e):
    I = e.I
    I(f's_lshl_b32 s{sF0}, s{sI0}, 5')
    I(f's_add_u32 s{sF0}, s{sF0}, {SM_B1}')
    I(f'v_lshlrev_b32 v{fb}, 1, v{vN}')
    I(f'v_add_u32 v{fb}, s{sF0}, v{fb}')
    B = 60
    for u in range(7):
        I(f'v_mov_b32 v{B+u}, 0')
        I(f'v_mov_b32 v{W2V+u}, 0')
    ids = []
    for u in range(7):
        ids.append(I(f'ds_read_u16_d16_hi v{B+u}, v{fb} offset:{32*u}'))
        ids.append(I(f'ds_read_u16_d16_hi v{W2V+u}, v{fb} offset:{832 + 32*u}'))
    for q, val in enumerate(('0xbdd2d3e8', '0xbdd2d3e8', '0xc0135761', '0xc0135761', '1.0', '1.0')):
        I(f'v_mov_b32 v{CST+q}, {val}')
    e.wait_ds(ids[-1])
    for u in range(7):
        for r in range(4):
            I(f'v_mov_b32 v{DACC+4*u+r}, v{B+u}')

def build(debug=None, opts=None):
    global ST
    opts = opts or {}
    e = Emit(); I = e.I
    a, b, c, d = TMP, TMP + 1, TMP + 2, TMP + 3
    touch = opts.get('touch', True)
    gapL = opts.get('gapL', 10)
    sRT = sC1
    I('s_cmp_ge_u32 s2, 256')
    I('s_cbranch_scc1 L_end')
    I('s_load_dwordx16 s[4:19], s[0:1], 0')
    I(f'v_lshrrev_b32 v1, 6, v0')
    I(f'v_and_b32 v{vL}, 63, v0')
    I(f'v_readfirstlane_b32 s{sW}, v1')
    I(f's_bfe_u32 s{sSL}, s2, 0x50003')
    ST = Stamps(debug in ('stamp', 'hstamp'))
    ST(e, 'start')
    if touch:
        I(f's_getpc_b64 {sp(sX0)}')
        I(f's_lshl_b32 s{sT0}, s{sSL}, 3')
        I(f's_add_u32 s{sT0}, s{sT0}, s{sW}')
        I(f's_lshl_b32 s{sT1}, s{sT0}, 7')
        I(f's_and_b32 s{sX0}, s{sX0}, 0xffffff00')
        I(f'v_mov_b32 v{a}, s{sT1}')
        I(f'global_load_dword v{vDUM}, v{a}, {sp(sX0)}')
        I(f's_mul_i32 s{sT1}, s{sT0}, 11')
        I(f's_lshl_b32 s{sT2}, s{sT0}, 2')
        I(f'v_add_u32 v{b}, s{sT1}, v{vL}')
        I(f'v_add_u32 v{c}, s{sT2}, v{vL}')
        I(f'v_lshlrev_b32 v{b}, 7, v{b}')
        I(f'v_lshlrev_b32 v{c}, 7, v{c}')
    I(f's_and_b32 s{sK}, s{sW}, 3')
    I(f's_lshl_b32 s{sT0}, s2, 4')
    I(f's_lshl_b32 s{sT1}, s{sK}, 2')
    I(f's_add_u32 s{sT0}, s{sT0}, s{sT1}')
    I(f's_mul_i32 s{sT0}, s{sT0}, 104')
    I(f'v_lshrrev_b32 v{d}, 1, v{vL}')
    I(f'v_lshlrev_b32 v{d}, 2, v{d}')
    I(f'v_add_u32 v{d}, s{sT0}, v{d}')
    I(f's_cmp_ge_u32 s{sW}, 4')
    I('s_waitcnt lgkmcnt(0)')
    if opts.get('fine'):
        ST(e, 'ka'); I(f's_cmp_ge_u32 s{sW}, 4')
    I('s_cbranch_scc0 L_eN')
    mk_srd(e, S_IDX, 4, 4096 * 104)
    for bb in range(4):
        I(f'buffer_load_dword v{vIDX+bb}, v{d}, {srd(S_IDX)}, 0 offen offset:{bb*104}')
    e.label('L_eN')
    I(f's_mov_b32 s{S_CIN}, s8'); I(f's_mov_b32 s{S_CIN+1}, s9')
    I(f's_mov_b32 s{S_CIN+2}, {3*CIN_L}'); I(f's_mov_b32 s{S_CIN+3}, 0x20000')
    mk_srd(e, S_W1, 12, 346112)
    if touch:
        I('s_mov_b32 exec_lo, 0xf'); I('s_mov_b32 exec_hi, 0')
        I(f'buffer_load_dword v{vDUM}, v{c}, {srd(S_CIN)}, 0 offen')
        I('s_mov_b32 exec_lo, 0x7ff')
        I(f'buffer_load_dword v{vDUM}, v{b}, {srd(S_W1)}, 0 offen')
        I('s_mov_b64 exec, -1')
    if opts.get('fine'): ST(e, 'tch')
    I(f'v_lshrrev_b32 v{a}, 5, v{vL}')
    I(f'v_and_b32 v{b}, 1, v{vL}')
    I(f'v_lshlrev_b32 v{b}, 4, v{b}')
    I(f's_movk_i32 s{sC0}, 1352')
    I(f'v_bfe_u32 v{c}, v{vL}, 1, 4')
    I(f'v_mad_u32_u24 v{b}, v{a}, s{sC0}, v{b}')
    I(f'v_xor_b32 v{c}, v{c}, v{a}')
    I(f's_mul_i32 s{sI0}, s{sK}, 7')
    I(f's_cmp_eq_u32 s{sK}, 3')
    I(f's_cselect_b32 s{sT0}, 1, 0')
    I(f's_sub_u32 s{sI0}, s{sI0}, s{sT0}')
    I(f'v_and_b32 v{a}, 1, v{c}')
    I(f'v_lshl_add_u32 v{b}, v{a}, 5, v{b}')
    I(f's_mul_i32 s{sStage}, s{sK}, {STG}')
    I(f's_mul_i32 s{sT0}, s{sK}, 208')
    I(f's_add_u32 s{sT0}, s{sT0}, {2*CIN_L}')
    I(f's_mul_i32 s{sT1}, s{sI0}, 52')
    I(f's_add_u32 s{sT1}, s{sT1}, {CIN_L}')
    I(f's_movk_i32 s{sT2}, 832')
    I(f's_cmp_ge_u32 s{sW}, 4')
    I(f's_cselect_b32 s{sSrc}, s{sT1}, s{sT0}')
    I(f's_cselect_b32 s{sRT}, 208, s{sT2}')
    I(f's_movk_i32 s{sT2}, {WS2}')
    I(f's_cselect_b32 s{sT0}, {WS1}, s{sT2}')
    I(f's_add_u32 s{sStage}, s{sStage}, s{sT0}')
    I(f'v_lshrrev_b32 v{a}, 3, v{c}')
    I(f'v_mad_u32_u24 v{b}, v{a}, s{sRT}, v{b}')
    I(f'v_bfe_u32 v{c}, v{c}, 1, 2')
    I(f's_mov_b32 m0, s{sStage}')
    I(f'v_mad_u32_u24 v{vSO}, v{c}, 52, v{b}')
    I(f's_movk_i32 s{sT3}, 2704')
    I(f's_movk_i32 s{sT2}, 1024')
    for tm in range(1, 4):
        I(f'v_xor_b32 v{a}, {tm}, v{c}')
        I(f'v_mad_u32_u24 v{vSO+tm}, v{a}, 52, v{b}')
    if opts.get('fine'): ST(e, 'dma0')
    for t in range(13):
        I(f'buffer_load_dwordx4 v{vSO + (t & 3)}, {srd(S_CIN)}, s{sSrc} offen lds')
        if t < 12:
            I(f's_add_u32 m0, m0, s{sT2}')
            I(f's_add_u32 s{sSrc}, s{sSrc}, s{sT3}')
    ST(e, 'b0')
    I(f's_load_dwordx2 s[20:21], s[0:1], 64')
    if debug == 'hstamp':
        I('s_load_dwordx2 s[22:23], s[0:1], 72')
    elif debug:
        I('s_load_dwordx2 s[22:23], s[0:1], 80')
    I(f's_load_dword s{sBO}, s[18:19], 0')
    I(f'v_and_b32 v{vN}, 15, v{vL}')
    I(f'v_lshrrev_b32 v{vG}, 4, v{vL}')
    I(f'v_bfe_u32 v{vR4}, v{vL}, 2, 2')
    I(f'v_and_b32 v{vC4}, 3, v{vL}')
    I(f's_cmp_lt_u32 s{sW}, 4')
    I('s_cbranch_scc1 L_Upath')

    ms = ['s[72:73]', 's[74:75]', 's[76:77]', 'vcc']
    I(f's_mov_b32 s{sE52}, -1')
    I(f's_mov_b32 s{sE52+1}, 0x000fffff')
    I(f'v_lshlrev_b32 v{b}, 4, v{vG}')
    I(f'v_mad_u32_u24 v{vFO}, v{vN}, 52, v{b}')
    I(f'v_cmp_gt_u32 vcc, 10, v{vN}')
    I(f'v_add_u32 v{vFO+1}, 832, v{vFO}')
    I(f'v_mov_b32 v{c}, 0x7ff00000')
    I(f'v_cndmask_b32 v{vFO+1}, v{c}, v{vFO+1}, vcc')
    I(f's_mul_i32 s{sT0}, s{sI0}, 1352')
    F = FQ()
    g0 = f_srd(S_A0, 10, 52) + f_srd(S_B1, 14, 832) + f_srd(S_W2, 16, 832) + [f'v_lshlrev_b32 v{fe}, 4, v{vL}']
    F.add(f'v_lshrrev_b32 v{fa}, 4, v{vL}', f'v_mul_u32_u24 v{fa}, {XS}, v{fa}', f'v_lshl_add_u32 v{fa}, v{vN}, 2, v{fa}',
          f's_mul_i32 s{sF0}, s{sK}, {4*XS}', f's_add_u32 s{sF0}, s{sF0}, {XB + 832}', f'v_add_u32 v{fa}, s{sF0}, v{fa}',
          f'v_cmp_gt_u32 vcc, 8, v{vN}', f'v_mov_b32 v{fb}, 0x3f803f80', f'v_mov_b32 v{fc}, {XCNT}', f'v_mov_b32 v{fd}, 0',
          f'v_cndmask_b32 v{fb}, 0, v{fb}, vcc', f'ds_write_b32 v{fa}, v{fb}', f'ds_write_b32 v{fc}, v{fd}', f'ds_write_b32 v{fc}, v{fd} offset:4')
    F.add(f'v_and_b32 v{fa}, 1, v{vL}', f'v_lshlrev_b32 v{fa}, 4, v{fa}', f'v_mov_b32 v{fb}, 0x3f80', f'v_lshlrev_b32 v{fb}, v{fa}, v{fb}',
          's_mov_b32 s73, 0', 's_mov_b32 s74, 0')
    for dw in range(4):
        m0_ = (3 << (2*dw)) | (3 << (16 + 2*dw + 8))
        m1_ = (3 << (2*dw)) | ((3 << 24) if dw == 0 else 0)
        F.add(f's_mov_b32 s72, {hex(m0_)}', f'v_cndmask_b32 v{EF+dw}, 0, v{fb}, s[72:73]',
              f's_mov_b32 s75, {hex(m1_)}', f'v_cndmask_b32 v{EF+4+dw}, 0, v{fb}, s[74:75]')
    F.add(*f_common_a())
    F.add(*f_setup_cin())
    def small_dma():
        I(f's_cmp_eq_u32 s{sK}, 0'); I('s_cbranch_scc0 L_sm1')
        I('s_mov_b32 exec_lo, 15'); I('s_mov_b32 exec_hi, 0')
        I(f's_mov_b32 m0, {SM_A0}'); I('s_nop 0')
        I(f'buffer_load_dwordx4 v{fe}, {srd(S_A0)}, 0 offen lds')
        I('s_branch L_smdone')
        e.label('L_sm1')
        I(f's_mov_b64 exec, {sp(sE52)}')
        I(f's_cmp_eq_u32 s{sK}, 1'); I('s_cbranch_scc0 L_sm2')
        I(f's_mov_b32 m0, {SM_B1}'); I('s_nop 0')
        I(f'buffer_load_dwordx4 v{fe}, {srd(S_B1)}, 0 offen lds')
        I('s_branch L_smdone')
        e.label('L_sm2')
        I(f's_cmp_eq_u32 s{sK}, 2'); I('s_cbranch_scc0 L_smdone')
        I(f's_mov_b32 m0, {SM_W2}'); I('s_nop 0')
        I(f'buffer_load_dwordx4 v{fe}, {srd(S_W2)}, 0 offen lds')
        e.label('L_smdone')
        I('s_mov_b64 exec, -1')
    for x in g0: I(x)
    small_dma()
    b1_at = opts.get('b1_at', 99)
    for u in range(7):
        if u == 6:
            I(f's_cmp_ge_u32 s{sK}, 2'); I('s_cbranch_scc1 L_w0done')
        if u == b1_at:
            I(f's_waitcnt vmcnt({0 if opts.get("safe_b1") else max(0, 2*u - 3)})')
            I('s_barrier')
            ST(e, 'b1')
        I(f's_add_u32 s{sT1}, s{sT0}, {u*1352}')
        for R in range(2):
            I(f'buffer_load_dwordx4 {vr(FF+8*u+4*R,4)}, v{vFO+R}, {srd(S_CIN)}, s{sT1} offen')
            if u < 6: F.drain(e, opts.get('gapW0', 0))
    e.label('L_w0done')
    if b1_at >= 7: I(f's_waitcnt vmcnt({25 + (2 if touch else 0)})')
    for _ in range(opts.get('dly_g', 0)): I('s_nop 15')
    mk_srd(e, S_TAB, 6, 3200000)
    I(f'v_and_b32 v{a}, 1, v{vL}')
    I(f'v_lshlrev_b32 v{a}, 4, v{a}')
    for bb in range(4):
        I(f'v_lshl_add_u32 v{vIDX+bb}, v{vIDX+bb}, 5, v{a}')
    I(f's_mul_i32 s{sT0}, s{sK}, {4*XS}')
    I(f's_mov_b64 exec, {sp(sE52)}')
    for bb in range(4):
        I(f's_add_u32 m0, s{sT0}, {XB + bb*XS}')
        I('s_nop 0')
        I(f'buffer_load_dwordx4 v{vIDX+bb}, {srd(S_TAB)}, 0 offen lds')
    I('s_mov_b64 exec, -1')
    ST(e, 'pre1')
    if b1_at >= 7:
        I('s_waitcnt vmcnt(13)')
        I('s_barrier')
        ST(e, 'b1')
    if opts.get('lprio'): I(f's_setprio {opts["lprio"]}')
    for _ in range(opts.get('dly_p', 0)): I('s_nop 15')
    F.drain(e)
    prev = None
    for u in range(7):
        if u == 6:
            I(f's_cmp_ge_u32 s{sK}, 2'); I('s_cbranch_scc1 L_plast')
        n = 2 * (5 - u) + 4 if u <= 5 else 4
        I(f's_waitcnt vmcnt({0 if opts.get("safe_p") else n})')
        f = FF + 8 * u
        unit(e, f, f + 4, EF, EF + 4, DD[u & 1], None if prev is None else (DD[prev & 1], prev, FR_P))
        prev = u
    unit_store(e, DD[6 & 1], 6, FR_P)
    I('s_branch L_pend')
    e.label('L_plast')
    unit_store(e, DD[5 & 1], 5, FR_P)
    e.label('L_pend')
    ST(e, 'units')
    I('s_waitcnt lgkmcnt(0)')
    ST(e, 'fold')
    if opts.get('lprio'): I('s_setprio 0')
    I('s_barrier')
    ST(e, 'b2')
    e.ds_q = []
    if debug == 'fold':
        I('s_branch L_dbg')
    else:
        acc_init_cin(e)
        I('s_waitcnt lgkmcnt(0)')
        main_cin(e, debug, opts)
        I('s_branch L_join')

    e.last = {}; e.ds_q = []
    e.label('L_Upath')
    I(f's_lshl_b32 s{sT2}, s{sK}, 3')
    I(f's_add_u32 s{sT2}, s{sT2}, 52')
    I(f's_add_u32 s{sT3}, s{sT2}, 32')
    I(f's_load_dwordx16 s[{SA}:{SA+15}], s[10:11], 104')
    I(f's_load_dwordx2 s[60:61], s[10:11], s{sT2}')
    I(f's_load_dwordx2 s[62:63], s[10:11], s{sT3}')
    for j in range(2):
        I(f'v_lshl_add_u32 v{fa}, v{vG}, 2, v{vR4}')
        if j:
            I(f'v_add_u32 v{fa}, 16, v{fa}'); I(f'v_min_u32 v{fa}, 25, v{fa}')
        I(f'v_and_b32 v{fb}, 7, v{fa}'); I(f'v_lshlrev_b32 v{fb}, 5, v{fb}'); I(f'v_lshl_add_u32 v{fb}, v{fa}, 9, v{fb}')
        I(f'v_lshl_add_u32 v{fb}, v{vC4}, 3, v{fb}'); I(f'v_add_u32 v{TAD+8*j}, s{sStage}, v{fb}')
        for x in range(1, 8):
            I(f'v_xor_b32 v{TAD+8*j+x}, {x*32}, v{TAD+8*j}')
    for u in range(4, 8):
        for R in range(2): I(f'v_mov_b32 v{UD+8*u+4*R}, 0')
    for dw in range(4): I(f'v_mov_b32 v{SELA+dw}, 0')
    I(f'v_lshlrev_b32 v{a}, 4, v{vL}')
    I(f'v_add_u32 v{a}, {HB}, v{a}')
    I(f'v_cmp_gt_u32 {sp(sMN10)}, 10, v{vN}')
    I(f's_lshl_b32 s{sF0}, s{sK}, 2')
    I(f's_lshl_b32 s{sF1}, 1, s{sF0}')
    I(f's_lshl_b32 s{sF2}, s{sF1}, 16')
    I('s_waitcnt lgkmcnt(0)')
    for q in (13, 14, 15): I(f's_mov_b32 s{SA+q}, 0')
    for g in range(4):
        if g < 2:
            I(f's_mov_b32 exec_lo, s{sF1 if g == 0 else sF2}'); I('s_mov_b32 exec_hi, 0') if g == 0 else None
        else:
            I('s_mov_b32 exec_lo, 0') if g == 2 else None
            I(f's_mov_b32 exec_hi, s{sF1 if g == 2 else sF2}')
        for dw, src in enumerate((2*g, 2*g+1, 8+2*g, 9+2*g)):
            I(f'v_mov_b32 v{SELA+dw}, s{SA+src}')
    I('s_mov_b64 exec, -1')
    I(f's_cmp_le_u32 s{sK}, 2'); I('s_cselect_b32 s62, s62, 0'); I(f's_cmp_le_u32 s{sK}, 1'); I('s_cselect_b32 s63, s63, 0')
    for q in range(4):
        I(f's_lshl_b32 s{SA+2*q}, s{60+q}, 16'); I(f's_and_b32 s{SA+2*q+1}, s{60+q}, 0xffff0000')
    I('s_waitcnt vmcnt(0)')
    ST(e, 'pre1')
    for _ in range(opts.get('dly_u2', 0)): I('s_nop 15')
    for x in f_common_a(): I(x)
    def frag_reads(u, nbuf=4, off=0):
        buf = UB + 8 * (u % nbuf)
        ids = []
        for R in range(2):
            pg = 2 * u + R
            for j in range(2):
                ids.append(I(f'ds_read_b64_tr_b16 {vr(buf+4*R+2*j,2)}, v{TAD+8*j+(pg&7)} offset:{off + (pg>>3)*256}'))
        return ids
    pend = {u: frag_reads(u) for u in range(3)}
    for u in range(8):
        if u == 4:
            I(f's_cmp_eq_u32 s{sK}, 3'); I('s_cbranch_scc1 L_u2done')
        if u == 6:
            I(f's_cmp_eq_u32 s{sK}, 2'); I('s_cbranch_scc1 L_u2done')
        if u + 3 < 8:
            pend[u + 3] = frag_reads(u + 3)
        e.wait_ds(pend[u][-1])
        buf = UB + 8 * (u % 4)
        for R in range(2):
            I(f'v_mfma_f32_16x16x32_bf16 {vr(UD+8*u+4*R,4)}, {vr(SELA,4)}, {vr(buf+4*R,4)}, 0')
    e.label('L_u2done')
    I(f's_mov_b32 s{sX0}, 0xffff')
    I(f's_mov_b32 s{sX0+1}, 0')
    I(f's_lshl_b32 s{sT0}, s{sK}, 4')
    for u in range(4):
        I(f'v_cvt_pk_bf16_f32 v{HF+u}, v{UD+16*u}, v{UD+16*u+8}')
    for u in range(8):
        I(f'v_cndmask_b32 v{UD+8*u+4}, 0, v{UD+8*u+4}, {sp(sMN10)}')
    I('s_mov_b32 exec_lo, 0x04000400'); I('s_mov_b32 exec_hi, 0x04000400')
    for u in range(8):
        I(f'v_mov_b32 v{UD+8*u+4}, s{SA+u}')
    I('s_mov_b64 exec, -1')
    for u in range(4):
        I(f'v_cvt_pk_bf16_f32 v{HF+4+u}, v{UD+16*u+4}, v{UD+16*u+12}')
    I(f's_lshl_b64 exec, {sp(sX0)}, s{sT0}')
    I(f'ds_write_b128 v{a}, {vr(HF,4)}')
    I(f'ds_write_b128 v{a}, {vr(HF+4,4)} offset:1024')
    I('s_mov_b64 exec, -1')
    if opts.get('dnnsetup_early', 1):
        for x in f_setup_dnn(): I(x)
    I('s_waitcnt lgkmcnt(0)')
    I('s_barrier')
    ST(e, 'b1')
    for _ in range(opts.get('dly_t', 0)): I('s_nop 15')
    I(f'ds_read_b128 {vr(HF,4)}, v{a} offset:0')
    I(f'ds_read_b128 {vr(HF+4,4)}, v{a} offset:1024')
    pend = {u: frag_reads(u, off=WS1 - WS2) for u in range(3)}
    prev = None
    for u in range(7):
        if u == 6:
            I(f's_cmp_ge_u32 s{sK}, 2'); I('s_cbranch_scc1 L_tlast')
        if u + 3 < 7:
            pend[u + 3] = frag_reads(u + 3, off=WS1 - WS2)
        e.wait_ds(pend[u][-1])
        g = UB + 8 * (u % 4)
        for dw in range(4):
            I(f'v_cndmask_b32 v{g+4+dw}, 0, v{g+4+dw}, {sp(sMN10)}')
        unit(e, g, g + 4, HF, HF + 4, DD[u & 1], None if prev is None else (DD[prev & 1], prev, FR_Q))
        prev = u
    unit_store(e, DD[6 & 1], 6, FR_Q)
    I('s_branch L_tend')
    e.label('L_tlast')
    unit_store(e, DD[5 & 1], 5, FR_Q)
    e.label('L_tend')
    ST(e, 'units')
    I('s_waitcnt lgkmcnt(0)')
    e.ds_q = []
    if not opts.get('dnnsetup_early', 1):
        for x in f_setup_dnn(): I(x)
    if opts.get('dnn0_early', 1): dma_step(e, 0, 'U0')
    I(f'v_mov_b32 v{vXCA}, {XCNT}')
    I(f'v_mov_b32 v{vONE}, 1')
    acc_init_dnn(e)
    I('s_waitcnt lgkmcnt(0)')
    ST(e, 'fold')
    I('s_barrier')
    ST(e, 'b2')
    e.ds_q = []
    if debug == 'fold':
        e.label('L_dbg')
        I('s_waitcnt vmcnt(0)'); I('s_barrier')
        dump_lds(e)
        return finish(e, opts)
    main_dnn(e, debug, opts)
    final(e, debug, opts)
    return finish(e, opts)

def dma_step(e, step, tag):
    I = e.I
    slot = step % 4
    I(f's_mov_b32 s{sT3}, {step*26624}')
    for u in range(7):
        if u == 6:
            I(f's_cmp_ge_u32 s{sK}, 2'); I(f's_cbranch_scc1 L_dma_{tag}')
        I(f's_add_u32 m0, s{sDma}, {slot*SLOT + u*1024}')
        I('s_nop 0')
        I(f'buffer_load_dwordx4 v{vDMA+u}, {srd(S_W1)}, s{sT3} offen lds')
    e.label(f'L_dma_{tag}')

def unit(e, X0, X1, Y0, Y1, D, prev):
    I = e.I
    mf = []
    def m(dd, A, B, first):
        mf.append(f'v_mfma_f32_16x16x32_bf16 {vr(dd,4)}, {vr(A,4)}, {vr(B,4)}, ' + ('0' if first else vr(dd, 4)))
    m(D, X0, Y0, True); m(D + 4, X1, Y0, True); m(D + 8, X1, Y1, True)
    m(D, Y0, X0, False); m(D + 4, Y1, X0, False); m(D + 8, Y1, X1, False)
    fill = []
    if prev is not None:
        PD, pu, setbase = prev
        for ti in range(3):
            fill.append(f'v_cvt_pk_bf16_f32 v{DC+2*ti}, v{PD+4*ti}, v{PD+4*ti+1}')
            fill.append(f'v_cvt_pk_bf16_f32 v{DC+2*ti+1}, v{PD+4*ti+2}, v{PD+4*ti+3}')
        for ti in range(3):
            fill.append(f'ds_write_b32 v{vWA+ti}, v{DC+2*ti} offset:{setbase + pu*16}')
            fill.append(f'ds_write_b32 v{vWB+ti}, v{DC+2*ti+1} offset:{setbase + pu*16}')
    for i in range(6):
        I(mf[i])
        for f in fill[2*i:2*i+2]:
            I(f)

def unit_store(e, D, u, setbase):
    I = e.I
    for ti in range(3):
        I(f'v_cvt_pk_bf16_f32 v{DC+2*ti}, v{D+4*ti}, v{D+4*ti+1}')
        I(f'v_cvt_pk_bf16_f32 v{DC+2*ti+1}, v{D+4*ti+2}, v{D+4*ti+3}')
    for ti in range(3):
        I(f'ds_write_b32 v{vWA+ti}, v{DC+2*ti} offset:{setbase + u*16}')
        I(f'ds_write_b32 v{vWB+ti}, v{DC+2*ti+1} offset:{setbase + u*16}')

def dump_lds(e):
    I = e.I
    I('v_mbcnt_lo_u32_b32 v1, -1, 0'); I('v_mbcnt_hi_u32_b32 v1, -1, v1')
    I(f's_lshl_b32 s{sT0}, s{sW}, 10')
    I('v_lshlrev_b32 v1, 4, v1')
    I(f'v_add_u32 v1, s{sT0}, v1')
    I(f's_mul_i32 s{sT1}, s2, {LDS_TOTAL}')
    I(f'v_add_u32 v2, s{sT1}, v1')
    I(f's_mov_b32 s{sT2}, 0')
    e.label('L_dump')
    I('ds_read_b128 v[4:7], v1')
    I('s_waitcnt lgkmcnt(0)')
    I('global_store_dwordx4 v2, v[4:7], s[22:23]')
    I('s_waitcnt vmcnt(0)')
    I('v_add_u32 v1, 8192, v1'); I('v_add_u32 v2, 8192, v2')
    I(f's_add_u32 s{sT2}, s{sT2}, 1')
    I(f's_cmp_lt_u32 s{sT2}, 20')
    e.raw('    s_cbranch_scc1 L_dump')

def main_cin(e, debug, opts):
    I = e.I
    steps = step_list()
    hs = opts.get('hsched', [3, 5, 5, 5, 5, 5, 5, 5, 5, 5, 5, 3, 0])
    assert sum(hs) == 56 and len(hs) == 13
    halves = [(s_, X_) for s_ in range(28) for X_ in range(2)]
    sc = []; si = 0
    for n in hs:
        sc.append(halves[si:si + n]); si += n
    XR = [XA, XBB]; ZZ = [ZA, ZBB]
    af_ids = {}
    def af_read(s):
        buf = AF[s & 1]
        I(f'ds_read_b128 {vr(buf,4)}, v{vAF} offset:{FR_P + s*FST}')
        af_ids[s] = I(f'ds_read_b128 {vr(buf+4,4)}, v{vAF} offset:{FR_Q + s*FST}')
    def z_half(X, s, pi):
        aa, bb = steps[s]
        mod = ' div:2' if aa == bb else ''
        t = ZT + 4 * pi
        x = XR[X]
        for qi in range(4):
            if mod: I(f'v_mul_f32_e64 v{t+qi}, v{x+4*aa+pi}, v{x+4*bb+qi}{mod}')
            else: I(f'v_mul_f32 v{t+qi}, v{x+4*aa+pi}, v{x+4*bb+qi}')
        z = ZZ[X][s & 1]
        I(f'v_cvt_pk_bf16_f32 v{z+2*pi}, v{t}, v{t+1}')
        I(f'v_cvt_pk_bf16_f32 v{z+2*pi+1}, v{t+2}, v{t+3}')
    def epilogue():
        t = TMP
        for X in range(2):
            P, Q = ACC[('P', X)], ACC[('Q', X)]
            t = TMP + 4 * X
            I(f'v_mul_f32 v{t}, v{P}, v{Q}')
            I(f'v_mul_f32 v{t+1}, v{P+12}, v{Q+12}')
            I(f'v_mul_f32 v{t+2}, v{P+1}, v{Q+1}')
            I(f'v_fmac_f32 v{t+1}, v{P+13}, v{Q+13}')
            for r in range(2, 12):
                I(f'v_fmac_f32 v{t + 2*(r&1)}, v{P+r}, v{Q+r}')
        I(f'v_cmp_gt_u32 vcc, 32, v{vL}')
        for X in range(2):
            t = TMP + 4 * X
            I(f'v_add_f32 v{t}, v{t}, v{t+2}')
        for X in range(2):
            t = TMP + 4 * X
            I(f'v_cndmask_b32 v{t+1}, 0, v{t+1}, vcc')
        for X in range(2):
            t = TMP + 4 * X
            I(f'v_add_f32 v{t}, v{t}, v{t+1}')
        t = TMP
        I(f'v_and_b32 v{t+2}, 1, v{vG}')
        I(f'v_lshlrev_b32 v{t+2}, 6, v{t+2}')
        I(f'v_lshrrev_b32 v{t+3}, 1, v{vG}')
        I(f'v_lshl_add_u32 v{t+2}, v{t+3}, 2, v{t+2}')
        I(f's_lshl_b32 s{sT0}, s{sK}, 8')
        I(f's_add_u32 s{sT0}, s{sT0}, {RED + 16}')
        I(f'v_add_u32 v{t+2}, s{sT0}, v{t+2}')
        for sh in (8, 4, 2, 1):
            for X in range(2):
                tt = TMP + 4 * X
                I(f'v_add_f32_dpp v{tt}, v{tt}, v{tt} row_ror:{sh} row_mask:0xf bank_mask:0xf')
        I(f's_mov_b32 exec_lo, 0x00010001'); I(f's_mov_b32 exec_hi, 0x00010001')
        I(f'ds_write_b32 v{t+2}, v{TMP}')
        I(f'ds_write_b32 v{t+2}, v{TMP+4} offset:128')
        I('s_mov_b64 exec, -1')
    for j in range(13):
        e.comment(f'---- CIN interval {j}')
        if j == 0:
            I(f'v_mov_b32 v{TMP}, {XCNT}'); I(f'v_mov_b32 v{TMP+1}, 1')
            I('s_waitcnt vmcnt(0)')
            I('s_nop 15')
            if opts.get('cp0', 2): I(f's_setprio {opts.get("cp0", 2)}')
            I('s_mov_b64 exec, 1')
            I(f'ds_add_u32 v{TMP}, v{TMP+1} offset:4')
            I('s_mov_b64 exec, -1')
        if j == 1 and opts.get('cp0', 2): I(f's_setprio {opts.get("cp1", 0)}')
        ST(e, f'it{j}')
        if j == 0:
            xa = [I(f'ds_read_b64_tr_b16 {vr(XPA+2*q,2)}, v{vTRX} offset:{128*q}') for q in range(7)]
            xb = [I(f'ds_read_b64_tr_b16 {vr(XPB+2*q,2)}, v{vTRX} offset:{2*XS + 128*q}') for q in range(7)]
            I('s_waitcnt lgkmcnt(0)')
            I('s_mov_b64 exec, 1')
            I(f'ds_add_u32 v{TMP}, v{TMP+1}')
            I('s_mov_b64 exec, -1')
            for _ in range(opts.get('dly_c', 0)): I('s_nop 15')
            if opts.get('safe_x'): I('s_barrier')
            af_read(0); af_read(1)
            for q in range(7):
                for h in range(2):
                    I(f'v_lshlrev_b32 v{XA+4*q+2*h}, 16, v{XPA+2*q+h}')
                    I(f'v_and_b32 v{XA+4*q+2*h+1}, 0xffff0000, v{XPA+2*q+h}')
            z_half(0, 0, 0); z_half(0, 0, 1)
            for q in range(7):
                for h in range(2):
                    I(f'v_lshlrev_b32 v{XBB+4*q+2*h}, 16, v{XPB+2*q+h}')
                    I(f'v_and_b32 v{XBB+4*q+2*h+1}, 0xffff0000, v{XPB+2*q+h}')
            z_half(1, 0, 0); z_half(1, 0, 1)
        for (s, X) in ([] if opts.get('no_cin') else sc[j]):
            if X == 0: e.wait_ds(af_ids[s])
            buf = AF[s & 1]
            z = ZZ[X][s & 1]
            P, Q = ACC[('P', X)], ACC[('Q', X)]
            I(f'v_mfma_f32_32x32x16_bf16 {vr(P,16)}, {vr(buf,4)}, {vr(z,4)}, ' + ('0' if s == 0 else vr(P,16)))
            if s + 1 < 28: z_half(X, s + 1, 0)
            I(f'v_mfma_f32_32x32x16_bf16 {vr(Q,16)}, {vr(buf+4,4)}, {vr(z,4)}, ' + (vr(QI,16) if s == 0 else vr(Q,16)))
            if X == 1 and s + 2 < 28: af_read(s + 2)
            if s + 1 < 28: z_half(X, s + 1, 1)
        if (not sc[j]) and j > 0 and sc[j-1]:
            if opts.get('cpe', 2): I(f's_setprio {opts.get("cpe", 2)}')
            epilogue()
    if sc[12]:
        epilogue()
    I('s_waitcnt lgkmcnt(0)')
    ST(e, 'gelu')

def main_dnn(e, debug, opts):
    I = e.I
    e.last = {}
    I(f's_cmp_ge_u32 s{sK}, 2')
    I('s_cselect_b64 vcc, -1, 0')
    def dma_one(step, u, tag, between=None):
        if u == 6: I(f's_cbranch_vccnz L_d6_{tag}')
        I(f's_add_u32 m0, s{sDma}, {(step % 4)*SLOT + u*1024}')
        if between: between()
        else: I('s_nop 0')
        I(f'buffer_load_dwordx4 v{vDMA+u}, {srd(S_W1)}, s{sT3} offen lds')
        if u == 6: e.label(f'L_d6_{tag}')
    def mf(j, u):
        I(f'v_mfma_f32_16x16x32_bf16 {vr(DACC+4*u,4)}, {vr(XF+4*j,4)}, {vr(WF[j&1]+4*u,4)}, {vr(DACC+4*u,4)}')
    plan = {j: ([j + 3] if j + 3 <= 12 else []) for j in range(13)}
    order = [(st_, u) for st_ in range(3) for u in range(7)]
    tops = {}
    for j in range(13):
        tops[j] = list(order)
        order += [(st_, u) for st_ in plan[j] for u in range(7)]
    def later_count(j, cls7):
        seq = [x for x in tops[j] if cls7 or x[1] < 6]
        jj_ = min(j + 1, 12)
        last = max(i for i, x in enumerate(seq) if x[0] == jj_)
        return len(seq) - 1 - last
    if not opts.get('dnn0_early', 1): dma_step(e, 0, 'C0')
    dma_step(e, 1, 'C1')
    dma_step(e, 2, 'C2')
    e.label('L_xl_dnn')
    I(f'ds_read_b32 v{vXCT}, v{vXCA} offset:4')
    I('s_waitcnt lgkmcnt(0)')
    I(f'v_readfirstlane_b32 s{sT0}, v{vXCT}')
    I(f's_cmp_ge_u32 s{sT0}, 4')
    e.raw('    s_cbranch_scc0 L_xl_dnn')
    ST(e, 'it0')
    for _ in range(opts.get('dly_d', 0)): I('s_nop 15')
    for q in range(13):
        I(f'ds_read_b64 {vr(XF+4*q,2)}, v{vXF} offset:{64*q}')
        I(f'ds_read_b64 {vr(XF+4*q+2,2)}, v{vXF} offset:{64*q+16}')
    I('s_waitcnt lgkmcnt(0)')
    I('s_mov_b64 exec, 1')
    I(f'ds_add_u32 v{vXCA}, v{vONE}')
    I('s_mov_b64 exec, -1')
    for j in range(13):
        e.comment(f'---- DNN interval {j}')
        n7, n6 = later_count(j, True), later_count(j, False)
        if opts.get('safe_dv'): n7 = n6 = 0
        if n7 != n6:
            I(f's_cbranch_vccnz L_vw6_{j}')
            I(f's_waitcnt vmcnt({n7})')
            I(f's_branch L_vwd_{j}')
            e.label(f'L_vw6_{j}')
            I(f's_waitcnt vmcnt({n6})')
            e.label(f'L_vwd_{j}')
        else:
            I(f's_waitcnt vmcnt({n7})')
        if j > 0: ST(e, f'it{j}')
        slot = j % 4
        tb = vT + 4 * (slot >> 1)
        for u in range(7):
            if u == 6: I(f's_cbranch_vccnz L_r6_{j}')
            for jj in range(2):
                I(f'ds_read_b64_tr_b16 {vr(WF[j&1]+4*u+2*jj,2)}, v{tb+2*jj+(u&1)} offset:{(slot&1)*SLOT + (u>>1)*64}')
        e.label(f'L_r6_{j}')
        steps_ = [] if opts.get('no_dma') else plan[j]
        first = steps_[0] if steps_ else None
        if j == 0:
            e.label('L_xspin')
            I(f'ds_read_b32 v{vXCT}, v{vXCA}')
            I('s_waitcnt lgkmcnt(0)')
            I(f'v_readfirstlane_b32 s{sT0}, v{vXCT}')
            I(f's_cmp_ge_u32 s{sT0}, 8')
            e.raw('    s_cbranch_scc0 L_xspin')
            I(f's_mov_b32 s{sT3}, {first*26624}')
            for u in range(7): dma_one(first, u, '0')
        else:
            I('s_waitcnt lgkmcnt(12)')
            if first is not None: I(f's_mov_b32 s{sT3}, {first*26624}')
            for u in range(7):
                if u == 6:
                    I(f's_cbranch_vccnz L_m6_{j}')
                    if first is not None:
                        I(f's_add_u32 m0, s{sDma}, {(first % 4)*SLOT + u*1024}'); mf(j - 1, u)
                        I(f'buffer_load_dwordx4 v{vDMA+u}, {srd(S_W1)}, s{sT3} offen lds')
                    else: mf(j - 1, u)
                    e.label(f'L_m6_{j}')
                elif first is not None:
                    dma_one(first, u, f'{j}', between=lambda: mf(j - 1, u))
                else:
                    mf(j - 1, u)
    I('s_waitcnt lgkmcnt(0)')
    for u in range(7):
        if u == 6: I('s_cbranch_vccnz L_m6_end')
        mf(12, u)
    e.label('L_m6_end')
    ST(e, 'gelu')
    G = TMP
    T = TMP + 4
    C1, C0, ONE = CST, CST + 2, CST + 4
    def gelu(pairs, first):
        def each(fn):
            for k_, (x, u, h) in enumerate(pairs):
                fn(x, T + 2 * k_, u, h, k_)
        each(lambda x, t, u, h, k_: I(f'v_pk_mul_f32 {vr(t,2)}, {vr(x,2)}, {vr(x,2)}'))
        each(lambda x, t, u, h, k_: I(f'v_pk_fma_f32 {vr(t,2)}, {vr(t,2)}, {vr(C1,2)}, {vr(C0,2)}'))
        each(lambda x, t, u, h, k_: I(f'v_pk_mul_f32 {vr(t,2)}, {vr(t,2)}, {vr(x,2)}'))
        each(lambda x, t, u, h, k_: (I(f'v_exp_f32 v{t}, v{t}'), I(f'v_exp_f32 v{t+1}, v{t+1}')))
        each(lambda x, t, u, h, k_: I(f'v_pk_mul_f32 {vr(x,2)}, {vr(x,2)}, {vr(W2V + (u & ~1), 2)} op_sel:[0,{u&1}] op_sel_hi:[1,{u&1}]'))
        each(lambda x, t, u, h, k_: I(f'v_pk_add_f32 {vr(t,2)}, {vr(t,2)}, {vr(ONE,2)}'))
        each(lambda x, t, u, h, k_: (I(f'v_rcp_f32 v{t}, v{t}'), I(f'v_rcp_f32 v{t+1}, v{t+1}')))
        def last(x, t, u, h, k_):
            if first and k_ < 2: I(f'v_pk_mul_f32 {vr(G+2*h,2)}, {vr(t,2)}, {vr(x,2)}')
            else: I(f'v_pk_fma_f32 {vr(G+2*h,2)}, {vr(t,2)}, {vr(x,2)}, {vr(G+2*h,2)}')
        each(last)
    allp = [(DACC + 4*u + 2*h, u, h) for u in range(6) for h in range(2)]
    gelu(allp[0:4], True); gelu(allp[4:8], False); gelu(allp[8:12], False)
    I(f's_cmp_ge_u32 s{sK}, 2'); I(f's_cbranch_scc1 L_g6')
    gelu([(DACC + 24 + 2*h, 6, h) for h in range(2)], False)
    e.label('L_g6')
    I(f'v_lshlrev_b32 v{T}, 8, v{vG}')
    I(f's_lshl_b32 s{sT0}, s{sK}, 2')
    I(f's_add_u32 s{sT0}, s{sT0}, {RED}')
    I(f'v_add_u32 v{T}, s{sT0}, v{T}')
    for sh in (8, 4, 2, 1):
        for r in range(4):
            I(f'v_add_f32_dpp v{G+r}, v{G+r}, v{G+r} row_ror:{sh} row_mask:0xf bank_mask:0xf')
    I(f's_mov_b32 exec_lo, 0x00010001'); I(f's_mov_b32 exec_hi, 0x00010001')
    for r in range(4):
        I(f'ds_write_b32 v{T}, v{G+r} offset:{64*r}')
    I('s_mov_b64 exec, -1')
    I('s_waitcnt lgkmcnt(0)')

def final(e, debug, opts):
    I = e.I
    T = TMP + 4
    e.label('L_join')
    e.last = {}
    if opts.get('pad_line'):
        for q in range(opts['pad_line']): I(f'v_mov_b32 v{60 + (q % 8)}, 0x12345678')
    if opts.get('pad_loop'):
        I(f's_mov_b32 s{sT0}, 0')
        e.label('L_pl')
        for q in range(32): I(f'v_mov_b32 v{60 + (q % 8)}, 0x12345678')
        I(f's_add_u32 s{sT0}, s{sT0}, 1')
        I(f's_cmp_lt_u32 s{sT0}, {opts["pad_loop"]}')
        e.raw('    s_cbranch_scc1 L_pl')
    if opts.get('delay_end'):
        I(f's_mov_b32 s{sT0}, 0')
        e.label('L_dly')
        for _ in range(8): I('s_nop 15')
        I(f's_add_u32 s{sT0}, s{sT0}, 1')
        I(f's_cmp_lt_u32 s{sT0}, {opts["delay_end"]}')
        e.raw('    s_cbranch_scc1 L_dly')
    I('s_barrier')
    if debug == 'red':
        dump_lds(e); return
    if debug == 'stamp':
        ST(e, 'fin')
        ST.flush(e)
        open(sys.argv[1] + '.names', 'w').write(' '.join(ST.names))
        return
    if debug == 'hstamp':
        ST(e, 'fin')
        sel = opts.get('hsel', ['b0', 'pre1', 'b1', 'units', 'b2', 'it0', 'it12', 'fin'])
        I(f's_cmp_eq_u32 s2, {opts.get("hwg", 128)}'); I('s_cbranch_scc0 L_nohs')
        I(f's_and_b32 s{sT0}, s{sW}, 3'); I(f's_cmp_eq_u32 s{sT0}, 0'); I('s_cbranch_scc0 L_nohs')
        I('s_waitcnt lgkmcnt(0)')
        r0 = STAMP_SLOTS[0]
        for i, nm in enumerate(sel):
            r = STAMP_SLOTS[ST.names.index(nm)]
            I(f's_sub_u32 s{sT1}, s{r}, s{r0}')
            I(f'v_writelane_b32 v200, s{sT1}, {i}')
        I(f's_lshl_b32 s{sT0}, s{sW}, 3')
        I(f'v_lshlrev_b32 v201, 2, v{vL}')
        I(f'v_add_u32 v201, s{sT0}, v201')
        I('s_mov_b32 exec_lo, 0xff'); I('s_mov_b32 exec_hi, 0')
        I('global_store_dword v201, v200, s[22:23]')
        I('s_mov_b64 exec, -1')
        I('s_waitcnt vmcnt(0)')
        e.label('L_nohs')
    I(f's_cmp_lg_u32 s{sW}, 0'); I('s_cbranch_scc1 L_end')
    I('s_mov_b32 exec_lo, 0xffff'); I('s_mov_b32 exec_hi, 0')
    I(f'v_lshlrev_b32 v{T}, 6, v{vL}')
    I(f'v_add_u32 v{T}, {RED}, v{T}')
    I(f'ds_read_b128 {vr(8,4)}, v{T}')
    I(f'ds_read_b64 {vr(12,2)}, v{T} offset:16')
    if debug == 'redout':
        I('s_waitcnt lgkmcnt(0)')
        I(f's_lshl_b32 s{sT0}, s2, 9')
        I(f'v_lshlrev_b32 v20, 5, v{vL}')
        I(f'v_add_u32 v20, s{sT0}, v20')
        I('global_store_dwordx4 v20, v[8:11], s[22:23]')
        I('global_store_dwordx2 v20, v[12:13], s[22:23] offset:16')
        I('s_waitcnt vmcnt(0)')
    I(f's_mov_b32 s{S_OUT}, s20'); I(f's_mov_b32 s{S_OUT+1}, s21')
    I(f's_mov_b32 s{S_OUT+2}, 8192'); I(f's_mov_b32 s{S_OUT+3}, 0x20000')
    I(f's_lshl_b32 s{sBO}, s{sBO}, 16')
    I(f's_lshl_b32 s{sT0}, s2, 5')
    I(f'v_lshlrev_b32 v{T+1}, 1, v{vL}')
    I(f'v_add_u32 v{T+1}, s{sT0}, v{T+1}')
    I('s_waitcnt lgkmcnt(0)')
    I('v_add_f32 v8, v8, v9'); I('v_add_f32 v10, v10, v11'); I('v_add_f32 v12, v12, v13')
    I('v_add_f32 v8, v8, v10')
    I(f'v_add_f32 v12, s{sBO}, v12')
    I('v_add_f32 v8, v8, v12')
    I('v_cvt_pk_bf16_f32 v8, v8, v8')
    I(f'buffer_store_short v8, v{T+1}, {srd(S_OUT)}, 0 offen')

def finish(e, opts):
    e.label('L_end')
    body = e.text()
    hdr = f"""; xDeepFM (CIN + DNN) fused kernel, generated by my own generator script.
; One workgroup = 16 batch rows, 8 waves.  CIN layers are folded at run time into two quadratic forms.
; @launch grid=(256,1,1) block=(512,1,1) lds={LDS_TOTAL}
.amdgcn_target "amdgcn-amd-amdhsa--gfx950"
.text
.globl {KN}
.p2align 8
.type {KN},@function
{KN}:
"""
    ftr = f"""    s_endpgm
.section .rodata,"a"
.p2align 6
.amdhsa_kernel {KN}
  .amdhsa_next_free_vgpr 256
  .amdhsa_next_free_sgpr 102
  .amdhsa_accum_offset 256
  .amdhsa_group_segment_fixed_size 0
  .amdhsa_kernarg_size 88
  .amdhsa_user_sgpr_count 2
  .amdhsa_user_sgpr_kernarg_segment_ptr 1
  .amdhsa_system_sgpr_workgroup_id_x 1
  .amdhsa_ieee_mode 0
.end_amdhsa_kernel
"""
    return hdr + body + ftr

if __name__ == '__main__':
    dbg = sys.argv[2] if len(sys.argv) > 2 and sys.argv[2] != 'none' else None
    opts = eval(sys.argv[3]) if len(sys.argv) > 3 else {}
    out = build(dbg, opts)
    open(sys.argv[1], 'w').write(out)
    print('wrote', sys.argv[1], len(out), 'bytes')
```

```python
import sys, os
from emit import Emit

KN = "standalone__deep_cross_xdeepfm__recsys_kernel"

FST = 848; FR_P = 0; FR_Q = 28 * FST
RB = 47616; SLOT = 26624; WROW = 832
WS2 = RB + SLOT - 4 * 13312
WS1 = RB + SLOT
STG = 13312
XB = RB + 3 * SLOT; XS = 912
HB = RB + 4 * SLOT
SM = HB + 2048; SM_A0 = SM; SM_B1 = SM + 64; SM_W2 = SM + 896
RED = SM + 1728
XCNT = RED + 1024
XLND = XCNT + 4
LDS_TOTAL = 163840
OOB_LDS = 0x40000
CIN_L = 35152
assert WS1 % 512 == 0 and 28 * FST * 2 <= RB and RED + 1024 <= LDS_TOTAL and WS2 % 512 == 0 and WS2 >= 0

S_IDX, S_TAB, S_CIN, S_W1 = 24, 28, 32, 36
S_A0, S_B1, S_W2, S_OUT = 40, 24, 28, 60
sA2 = 96
sW, sK = 64, 65
sBO = 66
sI0 = 67
sT0, sT1, sT2, sT3 = 68, 69, 70, 71
sMN10 = 78
sE52 = 80
sStage, sSrc = 82, 83
sC0, sC1, sC2 = 84, 85, 86
sX0 = 88
sF0, sF1, sF2 = 84, 85, 86
sDma = 92
sSL = 93
SA = 44
def srd(n): return f"s[{n}:{n+3}]"
def sp(n): return f"s[{n}:{n+1}]"
def vr(a, n=1): return f"v{a}" if n == 1 else f"v[{a}:{a+n-1}]"

vL = 0
TMP = 122
fa, fb, fc, fd, fe = 132, 133, 134, 135, 136
vN, vG, vR4, vC4 = 142, 143, 144, 145
vWA = 146
vWB = 149
DD = [152, 164]
DC = 176
vSO = 182
vDUM = 186
UD = 2; SELA = 212; HF = 204
TAD = 188
UB = 68
FF = 2; EF = 60; vIDX = 68; vFO = 72
XA = 2; XBB = 30
ZA = [58, 62]; ZBB = [66, 70]
ZT = 74
AF = [82, 90]
vAF = 100; vTRX = 101
XPA = 104; XPB = 152
QI = 166
ACC = {('P', 0): 192, ('Q', 0): 208, ('P', 1): 224, ('Q', 1): 240}
vDMA = 100
vT = 108
vXF = 116
WF = [2, 30]
XF = 152
DACC = 208
W2V = 236
CST = 244
vXCA = 118; vONE = 119; vXCT = 120

STAMP_SLOTS = [94, 96, 98, 100, 90, 40, 42] + list(range(44, 60, 2)) + [24, 26, 28, 30, 4, 6, 8, 10, 14, 16, 12, 18]
class Stamps:
    def __init__(self, on): self.on = on; self.names = []
    def __call__(self, e, name):
        if not self.on: return
        if name in self.names: i = self.names.index(name)
        else:
            i = len(self.names); self.names.append(name)
        r = STAMP_SLOTS[i]
        e.I(f's_memtime s[{r}:{r+1}]')
    def flush(self, e):
        if not self.on: return
        I = e.I
        I('s_mov_b64 exec, -1')
        I('s_waitcnt vmcnt(0) lgkmcnt(0)')
        for i in range(len(self.names)):
            I(f'v_writelane_b32 v200, s{STAMP_SLOTS[i]}, {i}')
        I('s_memrealtime s[68:69]')
        I('s_waitcnt lgkmcnt(0)')
        I('v_writelane_b32 v200, s68, 31')
        I('v_mbcnt_lo_u32_b32 v201, -1, 0'); I('v_mbcnt_hi_u32_b32 v201, -1, v201')
        I('v_lshlrev_b32 v201, 2, v201')
        I(f's_lshl_b32 s70, s2, 3'); I(f's_add_u32 s70, s70, s{sW}'); I('s_lshl_b32 s70, s70, 8')
        I('v_add_u32 v201, s70, v201')
        I('global_store_dword v201, v200, s[22:23]')
        I('s_waitcnt vmcnt(0)')
ST = Stamps(False)

def step_list():
    return [(a, b) for b in range(7) for a in range(b + 1)]

def mk_srd(e, n, lo, size, add=0):
    I = e.I
    if add:
        I(f's_add_u32 s{n}, s{lo}, {add}')
        I(f's_addc_u32 s{n+1}, s{lo+1}, 0')
    else:
        I(f's_mov_b32 s{n}, s{lo}')
        I(f's_mov_b32 s{n+1}, s{lo+1}')
    I(f's_mov_b32 s{n+2}, {size}')
    I(f's_mov_b32 s{n+3}, 0x20000')


class FQ:
    def __init__(self): self.q = []
    def add(self, *items): self.q.extend(items)
    def drain(self, e, n=10**9):
        k = 0
        while self.q and k < n:
            it = self.q.pop(0)
            if isinstance(it, list):
                for x in it: e.I(x)
                k += len(it)
            else:
                e.I(it); k += 1

def f_srd(n, lo, size):
    return [f's_mov_b32 s{n}, s{lo}', f's_mov_b32 s{n+1}, s{lo+1}', f's_mov_b32 s{n+2}, {size}', f's_mov_b32 s{n+3}, 0x20000']

def f_common_a():
    L = [f'v_bfe_u32 v{fa}, v{vN}, 1, 1', f'v_mul_u32_u24 v{fb}, 420, v{fa}', f'v_and_b32 v{fc}, 1, v{vN}',
         f'v_lshl_add_u32 v{fb}, v{fc}, 3, v{fb}', f's_lshl_b32 s{sF0}, s{sI0}, 4', f'v_lshrrev_b32 v{fc}, 2, v{vN}',
         f'v_add_u32 v{fa}, 1, v{vG}', f'v_mul_u32_u24 v{fa}, v{fa}, v{vG}', f'v_cmp_le_u32 s[72:73], v{fc}, v{vG}',
         f'v_lshrrev_b32 v{fa}, 1, v{fa}', f'v_cmp_ge_u32 s[74:75], 2, v{vG}', f'v_add_u32 v{fa}, v{fa}, v{fc}',
         f's_movk_i32 s{sF2}, {FST}', f'v_add_u32 v{fb}, s{sF0}, v{fb}', f'v_lshlrev_b32 v{fe}, 2, v{vL}',
         f'v_mad_u32_u24 v{fd}, v{fa}, s{sF2}, v{fb}', f's_and_b64 s[76:77], s[72:73], s[74:75]', f'v_add_u32 v{fe}, {OOB_LDS}, v{fe}',
         f's_movk_i32 s{sF1}, {4*FST}', f'v_cndmask_b32 v{vWA}, v{fe}, v{fd}, s[72:73]',
         f'v_mad_u32_u24 v{fd}, v{vG}, s{sF1}, v{fd}', f'v_xor_b32 v{vWB}, 4, v{vWA}', f'v_add_u32 v{fd}, {10*FST}, v{fd}',
         f'v_cndmask_b32 v{vWA+1}, v{fe}, v{fd}, s[74:75]', f'v_add_u32 v{fd}, {4*FST}, v{fd}', f'v_xor_b32 v{vWB+1}, 4, v{vWA+1}',
         f'v_cndmask_b32 v{vWA+2}, v{fe}, v{fd}, s[76:77]', f'v_xor_b32 v{vWB+2}, 4, v{vWA+2}']
    return L

def f_setup_cin():
    L = [f'v_and_b32 v{fa}, 31, v{vL}', f'v_lshlrev_b32 v{fa}, 4, v{fa}', f'v_lshrrev_b32 v{fb}, 5, v{vL}',
         f's_movk_i32 s{sF1}, 416', f'v_mad_u32_u24 v{vAF}, v{fb}, s{sF1}, v{fa}',
         f'v_lshrrev_b32 v{fb}, 1, v{vG}', f'v_and_b32 v{fc}, 1, v{vG}', f's_movk_i32 s{sF1}, {XS}',
         f'v_lshlrev_b32 v{fa}, 1, v{fb}', f'v_xor_b32 v{fa}, v{fa}, v{vR4}', f'v_lshlrev_b32 v{fa}, 5, v{fa}',
         f'v_lshl_add_u32 v{fa}, v{vC4}, 3, v{fa}', f'v_mad_u32_u24 v{fa}, v{fc}, s{sF1}, v{fa}',
         f's_mul_i32 s{sF0}, s{sK}, {4*XS}', f's_add_u32 s{sF0}, s{sF0}, {XB}', f'v_add_u32 v{vTRX}, s{sF0}, v{fa}']
    return L

def f_setup_dnn():
    sCPR, sMAG, sSWZ, sRS = 72, 73, 74, 75
    L = [f's_cmp_lt_u32 s{sK}, 2', f's_cselect_b32 s{sCPR}, 14, 12', f's_mov_b32 s{sF1}, 87382', f's_cselect_b32 s{sMAG}, 74899, s{sF1}',
         f's_cselect_b32 s{sSWZ}, 0, 2', f's_lshl_b32 s{sRS}, s{sCPR}, 4', f's_lshl_b32 s{sF0}, s{sI0}, 5', f's_movk_i32 s{sF2}, 832']
    L += [f's_sub_u32 s{sF2}, s{sF2}, s{sRS}']
    for u in range(7):
        L += [f'v_add_u32 v{fa}, {64*u}, v{vL}', f'v_mul_u32_u24 v{fc}, s{sMAG}, v{fa}', f'v_lshrrev_b32 v{fc}, 20, v{fc}',
              f'v_lshrrev_b32 v{fd}, 1, v{fc}', f'v_and_b32 v{fd}, s{sSWZ}, v{fd}', f'v_xor_b32 v{fa}, v{fa}, v{fd}',
              f'v_lshl_add_u32 v{fa}, v{fa}, 4, s{sF0}', f'v_mad_u32_u24 v{vDMA+u}, v{fc}, s{sF2}, v{fa}']
    L += [f's_lshl_b32 s{sDma}, s{sI0}, 10', f's_add_u32 s{sDma}, s{sDma}, {RB}']
    L += [f'v_lshrrev_b32 v{fb}, 1, v{vG}', f'v_and_b32 v{fc}, 1, v{vG}', f'v_lshlrev_b32 v{fa}, 4, v{fb}',
          f'v_lshl_add_u32 v{fa}, v{fc}, 2, v{fa}', f'v_add_u32 v{fa}, v{fa}, v{vR4}', f'v_mul_u32_u24 v{fa}, s{sRS}, v{fa}',
          f'v_lshl_add_u32 v{fa}, v{vC4}, 3, v{fa}', f'v_add_u32 v{fa}, s{sDma}, v{fa}',
          f's_lshl_b32 s{sF1}, s{sSWZ}, 4', f'v_lshlrev_b32 v{fd}, 5, v{fc}', f'v_and_b32 v{fd}, s{sF1}, v{fd}',
          f'v_add_u32 v{vT}, v{fa}, v{fd}', f'v_sub_u32 v{vT+1}, v{fa}, v{fd}', f'v_add_u32 v{vT+1}, 32, v{vT+1}',
          f's_lshl_b32 s{sF1}, s{sRS}, 3',
          f'v_add_u32 v{vT+2}, s{sF1}, v{vT}', f'v_add_u32 v{vT+3}, s{sF1}, v{vT+1}']
    L += [f'v_add_u32 v{vT+4+q}, {2*SLOT}, v{vT+q}' for q in range(4)]
    L += [f's_movk_i32 s{sF1}, {XS}', f'v_lshlrev_b32 v{fa}, 5, v{fb}', f'v_lshl_add_u32 v{fa}, v{fc}, 3, v{fa}',
          f'v_mad_u32_u24 v{fa}, v{vN}, s{sF1}, v{fa}', f'v_add_u32 v{vXF}, {XB}, v{fa}']
    return L

def acc_init_cin(e):
    I = e.I
    I(f'v_lshrrev_b32 v{fa}, 5, v{vL}')
    I(f'v_lshlrev_b32 v{fa}, 3, v{fa}')
    I(f'v_add_u32 v{fa}, {SM_A0}, v{fa}')
    ids = [I(f'ds_read_b64 {vr(XPA+2*g,2)}, v{fa} offset:{16*g}') for g in range(4)]
    e.wait_ds(ids[-1])
    for g in range(4):
        for q in range(2):
            I(f'v_lshlrev_b32 v{QI+4*g+2*q}, 16, v{XPA+2*g+q}')
            I(f'v_and_b32 v{QI+4*g+2*q+1}, 0xffff0000, v{XPA+2*g+q}')

def acc_init_dnn(e):
    I = e.I
    I(f's_lshl_b32 s{sF0}, s{sI0}, 5')
    I(f's_add_u32 s{sF0}, s{sF0}, {SM_B1}')
    I(f'v_lshlrev_b32 v{fb}, 1, v{vN}')
    I(f'v_add_u32 v{fb}, s{sF0}, v{fb}')
    B = 60
    for u in range(7):
        I(f'v_mov_b32 v{B+u}, 0')
        I(f'v_mov_b32 v{W2V+u}, 0')
    ids = []
    for u in range(7):
        ids.append(I(f'ds_read_u16_d16_hi v{B+u}, v{fb} offset:{32*u}'))
        ids.append(I(f'ds_read_u16_d16_hi v{W2V+u}, v{fb} offset:{832 + 32*u}'))
    for q, val in enumerate(('0xbdd2d3e8', '0xbdd2d3e8', '0xc0135761', '0xc0135761', '1.0', '1.0')):
        I(f'v_mov_b32 v{CST+q}, {val}')
    e.wait_ds(ids[-1])
    for u in range(7):
        for r in range(4):
            I(f'v_mov_b32 v{DACC+4*u+r}, v{B+u}')

def build(debug=None, opts=None):
    global ST
    opts = opts or {}
    e = Emit(); I = e.I
    a, b, c, d = TMP, TMP + 1, TMP + 2, TMP + 3
    touch = opts.get('touch', True)
    gapL = opts.get('gapL', 10)
    sRT = sC1
    I('s_cmp_ge_u32 s2, 256')
    I('s_cbranch_scc1 L_end')
    I('s_load_dwordx16 s[4:19], s[0:1], 0')
    I(f'v_lshrrev_b32 v1, 6, v0')
    I(f'v_and_b32 v{vL}, 63, v0')
    I(f'v_readfirstlane_b32 s{sW}, v1')
    I(f's_bfe_u32 s{sSL}, s2, 0x50003')
    ST = Stamps(debug in ('stamp', 'hstamp'))
    ST(e, 'start')
    if touch:
        I(f's_getpc_b64 {sp(sX0)}')
        I(f's_lshl_b32 s{sT0}, s{sSL}, 3')
        I(f's_add_u32 s{sT0}, s{sT0}, s{sW}')
        I(f's_lshl_b32 s{sT1}, s{sT0}, 7')
        I(f's_and_b32 s{sX0}, s{sX0}, 0xffffff00')
        I(f'v_mov_b32 v{a}, s{sT1}')
        I(f'global_load_dword v{vDUM}, v{a}, {sp(sX0)}')
        I(f's_mul_i32 s{sT1}, s{sT0}, 11')
        I(f's_lshl_b32 s{sT2}, s{sT0}, 2')
        I(f'v_add_u32 v{b}, s{sT1}, v{vL}')
        I(f'v_add_u32 v{c}, s{sT2}, v{vL}')
        I(f'v_lshlrev_b32 v{b}, 7, v{b}')
        I(f'v_lshlrev_b32 v{c}, 7, v{c}')
    I(f's_and_b32 s{sK}, s{sW}, 3')
    I(f's_lshl_b32 s{sT0}, s2, 4')
    I(f's_lshl_b32 s{sT1}, s{sK}, 2')
    I(f's_add_u32 s{sT0}, s{sT0}, s{sT1}')
    I(f's_mul_i32 s{sT0}, s{sT0}, 104')
    I(f'v_lshrrev_b32 v{d}, 1, v{vL}')
    I(f'v_lshlrev_b32 v{d}, 2, v{d}')
    I(f'v_add_u32 v{d}, s{sT0}, v{d}')
    I(f's_cmp_ge_u32 s{sW}, 4')
    I('s_waitcnt lgkmcnt(0)')
    if opts.get('fine'):
        ST(e, 'ka'); I(f's_cmp_ge_u32 s{sW}, 4')
    I('s_cbranch_scc1 L_eL')
    if opts.get('smem_early', 1):
        I(f's_lshl_b32 s{sT2}, s{sK}, 3')
        I(f's_load_dwordx16 s[{SA}:{SA+15}], s[10:11], 104')
        I(f's_add_u32 s{sT2}, s{sT2}, 52')
        I(f's_load_dwordx2 s[60:61], s[10:11], s{sT2}')
        I(f's_add_u32 s{sT2}, s{sT2}, 32')
        I(f's_load_dwordx2 s[62:63], s[10:11], s{sT2}')
        I(f's_load_dword s{sBO}, s[18:19], 0')
        I(f's_load_dwordx2 s[20:21], s[0:1], 64')
    I('s_branch L_eN')
    e.label('L_eL')
    mk_srd(e, S_IDX, 4, 4096 * 104)
    for bb in range(4):
        I(f'buffer_load_dword v{vIDX+bb}, v{d}, {srd(S_IDX)}, 0 offen offset:{bb*104}')
    e.label('L_eN')
    I(f's_mov_b32 s{S_CIN}, s8'); I(f's_mov_b32 s{S_CIN+1}, s9')
    I(f's_mov_b32 s{S_CIN+2}, {3*CIN_L}'); I(f's_mov_b32 s{S_CIN+3}, 0x20000')
    mk_srd(e, S_W1, 12, 346112)
    if touch:
        I('s_mov_b32 exec_lo, 0xf'); I('s_mov_b32 exec_hi, 0')
        I(f'buffer_load_dword v{vDUM}, v{c}, {srd(S_CIN)}, 0 offen')
        I('s_mov_b32 exec_lo, 0x7ff')
        I(f'buffer_load_dword v{vDUM}, v{b}, {srd(S_W1)}, 0 offen')
        I('s_mov_b64 exec, -1')
    if opts.get('fine'): ST(e, 'tch')
    I(f'v_lshrrev_b32 v{a}, 5, v{vL}')
    I(f'v_and_b32 v{b}, 1, v{vL}')
    I(f'v_lshlrev_b32 v{b}, 4, v{b}')
    I(f's_movk_i32 s{sC0}, 1352')
    I(f'v_bfe_u32 v{c}, v{vL}, 1, 4')
    I(f'v_mad_u32_u24 v{b}, v{a}, s{sC0}, v{b}')
    I(f'v_xor_b32 v{c}, v{c}, v{a}')
    I(f's_mul_i32 s{sI0}, s{sK}, 7')
    I(f's_cmp_eq_u32 s{sK}, 3')
    I(f's_cselect_b32 s{sT0}, 1, 0')
    I(f's_sub_u32 s{sI0}, s{sI0}, s{sT0}')
    I(f'v_and_b32 v{a}, 1, v{c}')
    I(f'v_lshl_add_u32 v{b}, v{a}, 5, v{b}')
    I(f's_mul_i32 s{sStage}, s{sK}, {STG}')
    I(f's_mul_i32 s{sT0}, s{sK}, 208')
    I(f's_add_u32 s{sT0}, s{sT0}, {2*CIN_L}')
    I(f's_mul_i32 s{sT1}, s{sI0}, 52')
    I(f's_add_u32 s{sT1}, s{sT1}, {CIN_L}')
    I(f's_movk_i32 s{sT2}, 832')
    I(f's_cmp_ge_u32 s{sW}, 4')
    I(f's_cselect_b32 s{sSrc}, s{sT1}, s{sT0}')
    I(f's_cselect_b32 s{sRT}, 208, s{sT2}')
    I(f's_movk_i32 s{sT2}, {WS2}')
    I(f's_cselect_b32 s{sT0}, {WS1}, s{sT2}')
    I(f's_add_u32 s{sStage}, s{sStage}, s{sT0}')
    I(f'v_lshrrev_b32 v{a}, 3, v{c}')
    I(f'v_mad_u32_u24 v{b}, v{a}, s{sRT}, v{b}')
    I(f'v_bfe_u32 v{c}, v{c}, 1, 2')
    I(f's_mov_b32 m0, s{sStage}')
    I(f'v_mad_u32_u24 v{vSO}, v{c}, 52, v{b}')
    I(f's_movk_i32 s{sT3}, 2704')
    I(f's_movk_i32 s{sT2}, 1024')
    for tm in range(1, 4):
        I(f'v_xor_b32 v{a}, {tm}, v{c}')
        I(f'v_mad_u32_u24 v{vSO+tm}, v{a}, 52, v{b}')
    if opts.get('fine'): ST(e, 'dma0')
    for t in range(13):
        I(f'buffer_load_dwordx4 v{vSO + (t & 3)}, {srd(S_CIN)}, s{sSrc} offen lds')
        if t < 12:
            I(f's_add_u32 m0, m0, s{sT2}')
            I(f's_add_u32 s{sSrc}, s{sSrc}, s{sT3}')
    ST(e, 'b0')
    if not opts.get('smem_early', 1): I(f's_load_dwordx2 s[20:21], s[0:1], 64')
    if debug == 'hstamp':
        I('s_load_dwordx2 s[22:23], s[0:1], 72')
    elif debug:
        I('s_load_dwordx2 s[22:23], s[0:1], 80')
    if not opts.get('smem_early', 1): I(f's_load_dword s{sBO}, s[18:19], 0')
    I(f'v_and_b32 v{vN}, 15, v{vL}')
    I(f'v_lshrrev_b32 v{vG}, 4, v{vL}')
    I(f'v_bfe_u32 v{vR4}, v{vL}, 2, 2')
    I(f'v_and_b32 v{vC4}, 3, v{vL}')
    I(f's_cmp_ge_u32 s{sW}, 4')
    I('s_cbranch_scc1 L_Lpath')
    ms = ['s[72:73]', 's[74:75]', 's[76:77]', 'vcc']

    if not opts.get('smem_early', 1):
        I(f's_lshl_b32 s{sT2}, s{sK}, 3')
        I(f's_add_u32 s{sT2}, s{sT2}, 52')
        I(f's_add_u32 s{sT3}, s{sT2}, 32')
        I(f's_load_dwordx16 s[{SA}:{SA+15}], s[10:11], 104')
        I(f's_load_dwordx2 s[60:61], s[10:11], s{sT2}')
        I(f's_load_dwordx2 s[62:63], s[10:11], s{sT3}')
    for j in range(2):
        I(f'v_lshl_add_u32 v{fa}, v{vG}, 2, v{vR4}')
        if j:
            I(f'v_add_u32 v{fa}, 16, v{fa}'); I(f'v_min_u32 v{fa}, 25, v{fa}')
        I(f'v_and_b32 v{fb}, 7, v{fa}'); I(f'v_lshlrev_b32 v{fb}, 5, v{fb}'); I(f'v_lshl_add_u32 v{fb}, v{fa}, 9, v{fb}')
        I(f'v_lshl_add_u32 v{fb}, v{vC4}, 3, v{fb}'); I(f'v_add_u32 v{TAD+8*j}, s{sStage}, v{fb}')
        for x in range(1, 8):
            I(f'v_xor_b32 v{TAD+8*j+x}, {x*32}, v{TAD+8*j}')
    for u in range(4, 8):
        for R in range(2): I(f'v_mov_b32 v{UD+8*u+4*R}, 0')
    for dw in range(4): I(f'v_mov_b32 v{SELA+dw}, 0')
    I(f'v_lshlrev_b32 v{a}, 4, v{vL}')
    I(f'v_add_u32 v{a}, {HB}, v{a}')
    I(f'v_cmp_gt_u32 {sp(sMN10)}, 10, v{vN}')
    I(f's_lshl_b32 s{sF0}, s{sK}, 2')
    I(f's_lshl_b32 s{sF1}, 1, s{sF0}')
    I(f's_lshl_b32 s{sF2}, s{sF1}, 16')
    I('s_waitcnt lgkmcnt(0)')
    for q in (13, 14, 15): I(f's_mov_b32 s{SA+q}, 0')
    for g in range(4):
        if g < 2:
            I(f's_mov_b32 exec_lo, s{sF1 if g == 0 else sF2}'); I('s_mov_b32 exec_hi, 0') if g == 0 else None
        else:
            I('s_mov_b32 exec_lo, 0') if g == 2 else None
            I(f's_mov_b32 exec_hi, s{sF1 if g == 2 else sF2}')
        for dw, src in enumerate((2*g, 2*g+1, 8+2*g, 9+2*g)):
            I(f'v_mov_b32 v{SELA+dw}, s{SA+src}')
    I('s_mov_b64 exec, -1')
    I(f's_cmp_le_u32 s{sK}, 2'); I('s_cselect_b32 s62, s62, 0'); I(f's_cmp_le_u32 s{sK}, 1'); I('s_cselect_b32 s63, s63, 0')
    for q in range(4):
        I(f's_lshl_b32 s{SA+2*q}, s{60+q}, 16'); I(f's_and_b32 s{SA+2*q+1}, s{60+q}, 0xffff0000')
    I('s_waitcnt vmcnt(0)')
    ST(e, 'pre1')
    for x in f_common_a(): I(x)
    def frag_reads(u, nbuf=4, off=0):
        buf = UB + 8 * (u % nbuf)
        ids = []
        for R in range(2):
            pg = 2 * u + R
            for j in range(2):
                ids.append(I(f'ds_read_b64_tr_b16 {vr(buf+4*R+2*j,2)}, v{TAD+8*j+(pg&7)} offset:{off + (pg>>3)*256}'))
        return ids
    pend = {u: frag_reads(u) for u in range(3)}
    for u in range(8):
        if u == 4:
            I(f's_cmp_eq_u32 s{sK}, 3'); I('s_cbranch_scc1 L_u2done')
        if u == 6:
            I(f's_cmp_eq_u32 s{sK}, 2'); I('s_cbranch_scc1 L_u2done')
        if u + 3 < 8:
            pend[u + 3] = frag_reads(u + 3)
        e.wait_ds(pend[u][-1])
        buf = UB + 8 * (u % 4)
        for R in range(2):
            I(f'v_mfma_f32_16x16x32_bf16 {vr(UD+8*u+4*R,4)}, {vr(SELA,4)}, {vr(buf+4*R,4)}, 0')
    e.label('L_u2done')
    I(f's_mov_b32 s{sX0}, 0xffff')
    I(f's_mov_b32 s{sX0+1}, 0')
    I(f's_lshl_b32 s{sT0}, s{sK}, 4')
    for u in range(4):
        I(f'v_cvt_pk_bf16_f32 v{HF+u}, v{UD+16*u}, v{UD+16*u+8}')
    for u in range(8):
        I(f'v_cndmask_b32 v{UD+8*u+4}, 0, v{UD+8*u+4}, {sp(sMN10)}')
    I('s_mov_b32 exec_lo, 0x04000400'); I('s_mov_b32 exec_hi, 0x04000400')
    for u in range(8):
        I(f'v_mov_b32 v{UD+8*u+4}, s{SA+u}')
    I('s_mov_b64 exec, -1')
    for u in range(4):
        I(f'v_cvt_pk_bf16_f32 v{HF+4+u}, v{UD+16*u+4}, v{UD+16*u+12}')
    I(f's_lshl_b64 exec, {sp(sX0)}, s{sT0}')
    I(f'ds_write_b128 v{a}, {vr(HF,4)}')
    I(f'ds_write_b128 v{a}, {vr(HF+4,4)} offset:1024')
    I('s_mov_b64 exec, -1')
    if opts.get('dnnsetup_early', 1):
        for x in f_setup_dnn(): I(x)
    I('s_waitcnt lgkmcnt(0)')
    I('s_barrier')
    ST(e, 'b1')
    for _ in range(opts.get('dly_t', 0)): I('s_nop 15')
    I(f'ds_read_b128 {vr(HF,4)}, v{a} offset:0')
    I(f'ds_read_b128 {vr(HF+4,4)}, v{a} offset:1024')
    pend = {u: frag_reads(u, off=WS1 - WS2) for u in range(3)}
    prev = None
    for u in range(7):
        if u == 6:
            I(f's_cmp_ge_u32 s{sK}, 2'); I('s_cbranch_scc1 L_tlast')
        if u + 3 < 7:
            pend[u + 3] = frag_reads(u + 3, off=WS1 - WS2)
        e.wait_ds(pend[u][-1])
        g = UB + 8 * (u % 4)
        for dw in range(4):
            I(f'v_cndmask_b32 v{g+4+dw}, 0, v{g+4+dw}, {sp(sMN10)}')
        unit(e, g, g + 4, HF, HF + 4, DD[u & 1], None if prev is None else (DD[prev & 1], prev, FR_Q))
        prev = u
    unit_store(e, DD[6 & 1], 6, FR_Q)
    I('s_branch L_tend')
    e.label('L_tlast')
    unit_store(e, DD[5 & 1], 5, FR_Q)
    e.label('L_tend')
    ST(e, 'units')
    I('s_waitcnt lgkmcnt(0)')
    e.ds_q = []
    if not opts.get('dnnsetup_early', 1):
        for x in f_setup_dnn(): I(x)
    if opts.get('dnn0_early', 1): dma_step(e, 0, 'U0')
    I(f'v_mov_b32 v{vXCA}, {XCNT}')
    I(f'v_mov_b32 v{vONE}, 1')
    acc_init_dnn(e)
    I('s_waitcnt lgkmcnt(0)')
    ST(e, 'fold')
    I('s_barrier')
    ST(e, 'b2')
    e.ds_q = []
    if debug == 'fold':
        I('s_branch L_dbg')
    else:
        main_dnn(e, debug, opts)
        I('s_branch L_join')


    e.last = {}; e.ds_q = []
    e.label('L_Lpath')
    I(f's_mov_b32 s{sE52}, -1')
    I(f's_mov_b32 s{sE52+1}, 0x000fffff')
    I(f'v_lshlrev_b32 v{b}, 4, v{vG}')
    I(f'v_mad_u32_u24 v{vFO}, v{vN}, 52, v{b}')
    I(f'v_cmp_gt_u32 vcc, 10, v{vN}')
    I(f'v_add_u32 v{vFO+1}, 832, v{vFO}')
    I(f'v_mov_b32 v{c}, 0x7ff00000')
    I(f'v_cndmask_b32 v{vFO+1}, v{c}, v{vFO+1}, vcc')
    I(f's_mul_i32 s{sT0}, s{sI0}, 1352')
    F = FQ()
    g0 = f_srd(S_A0, 10, 52) + f_srd(S_B1, 14, 832) + f_srd(S_W2, 16, 832) + [f'v_lshlrev_b32 v{fe}, 4, v{vL}']
    F.add(f'v_lshrrev_b32 v{fa}, 4, v{vL}', f'v_mul_u32_u24 v{fa}, {XS}, v{fa}', f'v_lshl_add_u32 v{fa}, v{vN}, 2, v{fa}',
          f's_mul_i32 s{sF0}, s{sK}, {4*XS}', f's_add_u32 s{sF0}, s{sF0}, {XB + 832}', f'v_add_u32 v{fa}, s{sF0}, v{fa}',
          f'v_cmp_gt_u32 vcc, 8, v{vN}', f'v_mov_b32 v{fb}, 0x3f803f80', f'v_mov_b32 v{fc}, {XCNT}', f'v_mov_b32 v{fd}, 0',
          f'v_cndmask_b32 v{fb}, 0, v{fb}, vcc', f'ds_write_b32 v{fa}, v{fb}', f'ds_write_b32 v{fc}, v{fd}', f'ds_write_b32 v{fc}, v{fd} offset:4')
    F.add(f'v_and_b32 v{fa}, 1, v{vL}', f'v_lshlrev_b32 v{fa}, 4, v{fa}', f'v_mov_b32 v{fb}, 0x3f80', f'v_lshlrev_b32 v{fb}, v{fa}, v{fb}',
          's_mov_b32 s73, 0', 's_mov_b32 s74, 0')
    for dw in range(4):
        m0_ = (3 << (2*dw)) | (3 << (16 + 2*dw + 8))
        m1_ = (3 << (2*dw)) | ((3 << 24) if dw == 0 else 0)
        F.add(f's_mov_b32 s72, {hex(m0_)}', f'v_cndmask_b32 v{EF+dw}, 0, v{fb}, s[72:73]',
              f's_mov_b32 s75, {hex(m1_)}', f'v_cndmask_b32 v{EF+4+dw}, 0, v{fb}, s[74:75]')
    F.add(*f_common_a())
    F.add(*f_setup_cin())
    def small_dma():
        I(f's_cmp_eq_u32 s{sK}, 0'); I('s_cbranch_scc0 L_sm1')
        I('s_mov_b32 exec_lo, 15'); I('s_mov_b32 exec_hi, 0')
        I(f's_mov_b32 m0, {SM_A0}'); I('s_nop 0')
        I(f'buffer_load_dwordx4 v{fe}, {srd(S_A0)}, 0 offen lds')
        I('s_branch L_smdone')
        e.label('L_sm1')
        I(f's_mov_b64 exec, {sp(sE52)}')
        I(f's_cmp_eq_u32 s{sK}, 1'); I('s_cbranch_scc0 L_sm2')
        I(f's_mov_b32 m0, {SM_B1}'); I('s_nop 0')
        I(f'buffer_load_dwordx4 v{fe}, {srd(S_B1)}, 0 offen lds')
        I('s_branch L_smdone')
        e.label('L_sm2')
        I(f's_cmp_eq_u32 s{sK}, 2'); I('s_cbranch_scc0 L_smdone')
        I(f's_mov_b32 m0, {SM_W2}'); I('s_nop 0')
        I(f'buffer_load_dwordx4 v{fe}, {srd(S_W2)}, 0 offen lds')
        e.label('L_smdone')
        I('s_mov_b64 exec, -1')
    for x in g0: I(x)
    small_dma()
    b1_at = opts.get('b1_at', 99)
    for u in range(7):
        if u == 6:
            I(f's_cmp_ge_u32 s{sK}, 2'); I('s_cbranch_scc1 L_w0done')
        if u == b1_at:
            I(f's_waitcnt vmcnt({0 if opts.get("safe_b1") else max(0, 2*u - 3)})')
            I('s_barrier')
            ST(e, 'b1')
        I(f's_add_u32 s{sT1}, s{sT0}, {u*1352}')
        for R in range(2):
            I(f'buffer_load_dwordx4 {vr(FF+8*u+4*R,4)}, v{vFO+R}, {srd(S_CIN)}, s{sT1} offen')
            if u < 6: F.drain(e, opts.get('gapW0', 0))
    e.label('L_w0done')
    if b1_at >= 7: I(f's_waitcnt vmcnt({25 + (2 if touch else 0)})')
    for _ in range(opts.get('dly_g', 0)): I('s_nop 15')
    mk_srd(e, S_TAB, 6, 3200000)
    I(f'v_and_b32 v{a}, 1, v{vL}')
    I(f'v_lshlrev_b32 v{a}, 4, v{a}')
    for bb in range(4):
        I(f'v_lshl_add_u32 v{vIDX+bb}, v{vIDX+bb}, 5, v{a}')
    I(f's_mul_i32 s{sT0}, s{sK}, {4*XS}')
    I(f's_mov_b64 exec, {sp(sE52)}')
    for bb in range(4):
        I(f's_add_u32 m0, s{sT0}, {XB + bb*XS}')
        I('s_nop 0')
        I(f'buffer_load_dwordx4 v{vIDX+bb}, {srd(S_TAB)}, 0 offen lds')
    I('s_mov_b64 exec, -1')
    ST(e, 'pre1')
    if b1_at >= 7:
        I('s_waitcnt vmcnt(13)')
        I('s_barrier')
        ST(e, 'b1')
    if opts.get('lprio'): I(f's_setprio {opts["lprio"]}')
    for _ in range(opts.get('dly_p', 0)): I('s_nop 15')
    F.drain(e)
    prev = None
    for u in range(7):
        if u == 6:
            I(f's_cmp_ge_u32 s{sK}, 2'); I('s_cbranch_scc1 L_plast')
        n = 2 * (5 - u) + 4 if u <= 5 else 4
        I(f's_waitcnt vmcnt({0 if opts.get("safe_p") else n})')
        f = FF + 8 * u
        unit(e, f, f + 4, EF, EF + 4, DD[u & 1], None if prev is None else (DD[prev & 1], prev, FR_P))
        prev = u
    unit_store(e, DD[6 & 1], 6, FR_P)
    I('s_branch L_pend')
    e.label('L_plast')
    unit_store(e, DD[5 & 1], 5, FR_P)
    e.label('L_pend')
    ST(e, 'units')
    I('s_waitcnt lgkmcnt(0)')
    ST(e, 'fold')
    if opts.get('lprio'): I('s_setprio 0')
    I('s_barrier')
    ST(e, 'b2')
    e.ds_q = []
    if debug == 'fold':
        e.label('L_dbg')
        I('s_waitcnt vmcnt(0)'); I('s_barrier')
        dump_lds(e)
        return finish(e, opts)
    acc_init_cin(e)
    I('s_waitcnt lgkmcnt(0)')
    main_cin(e, debug, opts)
    final(e, debug, opts)
    return finish(e, opts)


def dma_step(e, step, tag):
    I = e.I
    slot = step % 4
    I(f's_mov_b32 s{sT3}, {step*26624}')
    for u in range(7):
        if u == 6:
            I(f's_cmp_ge_u32 s{sK}, 2'); I(f's_cbranch_scc1 L_dma_{tag}')
        I(f's_add_u32 m0, s{sDma}, {slot*SLOT + u*1024}')
        I('s_nop 0')
        I(f'buffer_load_dwordx4 v{vDMA+u}, {srd(S_W1)}, s{sT3} offen lds')
    e.label(f'L_dma_{tag}')

def unit(e, X0, X1, Y0, Y1, D, prev):
    I = e.I
    mf = []
    def m(dd, A, B, first):
        mf.append(f'v_mfma_f32_16x16x32_bf16 {vr(dd,4)}, {vr(A,4)}, {vr(B,4)}, ' + ('0' if first else vr(dd, 4)))
    m(D, X0, Y0, True); m(D + 4, X1, Y0, True); m(D + 8, X1, Y1, True)
    m(D, Y0, X0, False); m(D + 4, Y1, X0, False); m(D + 8, Y1, X1, False)
    fill = []
    if prev is not None:
        PD, pu, setbase = prev
        for ti in range(3):
            fill.append(f'v_cvt_pk_bf16_f32 v{DC+2*ti}, v{PD+4*ti}, v{PD+4*ti+1}')
            fill.append(f'v_cvt_pk_bf16_f32 v{DC+2*ti+1}, v{PD+4*ti+2}, v{PD+4*ti+3}')
        for ti in range(3):
            fill.append(f'ds_write_b32 v{vWA+ti}, v{DC+2*ti} offset:{setbase + pu*16}')
            fill.append(f'ds_write_b32 v{vWB+ti}, v{DC+2*ti+1} offset:{setbase + pu*16}')
    for i in range(6):
        I(mf[i])
        for f in fill[2*i:2*i+2]:
            I(f)

def unit_store(e, D, u, setbase):
    I = e.I
    for ti in range(3):
        I(f'v_cvt_pk_bf16_f32 v{DC+2*ti}, v{D+4*ti}, v{D+4*ti+1}')
        I(f'v_cvt_pk_bf16_f32 v{DC+2*ti+1}, v{D+4*ti+2}, v{D+4*ti+3}')
    for ti in range(3):
        I(f'ds_write_b32 v{vWA+ti}, v{DC+2*ti} offset:{setbase + u*16}')
        I(f'ds_write_b32 v{vWB+ti}, v{DC+2*ti+1} offset:{setbase + u*16}')

def dump_lds(e):
    I = e.I
    I('v_mbcnt_lo_u32_b32 v1, -1, 0'); I('v_mbcnt_hi_u32_b32 v1, -1, v1')
    I(f's_lshl_b32 s{sT0}, s{sW}, 10')
    I('v_lshlrev_b32 v1, 4, v1')
    I(f'v_add_u32 v1, s{sT0}, v1')
    I(f's_mul_i32 s{sT1}, s2, {LDS_TOTAL}')
    I(f'v_add_u32 v2, s{sT1}, v1')
    I(f's_mov_b32 s{sT2}, 0')
    e.label('L_dump')
    I('ds_read_b128 v[4:7], v1')
    I('s_waitcnt lgkmcnt(0)')
    I('global_store_dwordx4 v2, v[4:7], s[22:23]')
    I('s_waitcnt vmcnt(0)')
    I('v_add_u32 v1, 8192, v1'); I('v_add_u32 v2, 8192, v2')
    I(f's_add_u32 s{sT2}, s{sT2}, 1')
    I(f's_cmp_lt_u32 s{sT2}, 20')
    e.raw('    s_cbranch_scc1 L_dump')

def main_cin(e, debug, opts):
    I = e.I
    steps = step_list()
    hs = opts.get('hsched', [3, 5, 5, 5, 5, 5, 5, 5, 5, 5, 5, 3, 0])
    assert sum(hs) == 56 and len(hs) == 13
    halves = [(s_, X_) for s_ in range(28) for X_ in range(2)]
    sc = []; si = 0
    for n in hs:
        sc.append(halves[si:si + n]); si += n
    XR = [XA, XBB]; ZZ = [ZA, ZBB]
    af_ids = {}
    def af_read(s):
        buf = AF[s & 1]
        I(f'ds_read_b128 {vr(buf,4)}, v{vAF} offset:{FR_P + s*FST}')
        af_ids[s] = I(f'ds_read_b128 {vr(buf+4,4)}, v{vAF} offset:{FR_Q + s*FST}')
    def z_half(X, s, pi):
        aa, bb = steps[s]
        mod = ' div:2' if aa == bb else ''
        t = ZT + 4 * pi
        x = XR[X]
        for qi in range(4):
            if mod: I(f'v_mul_f32_e64 v{t+qi}, v{x+4*aa+pi}, v{x+4*bb+qi}{mod}')
            else: I(f'v_mul_f32 v{t+qi}, v{x+4*aa+pi}, v{x+4*bb+qi}')
        z = ZZ[X][s & 1]
        I(f'v_cvt_pk_bf16_f32 v{z+2*pi}, v{t}, v{t+1}')
        I(f'v_cvt_pk_bf16_f32 v{z+2*pi+1}, v{t+2}, v{t+3}')
    def epilogue():
        t = TMP
        for X in range(2):
            P, Q = ACC[('P', X)], ACC[('Q', X)]
            t = TMP + 4 * X
            I(f'v_mul_f32 v{t}, v{P}, v{Q}')
            I(f'v_mul_f32 v{t+1}, v{P+12}, v{Q+12}')
            I(f'v_mul_f32 v{t+2}, v{P+1}, v{Q+1}')
            I(f'v_fmac_f32 v{t+1}, v{P+13}, v{Q+13}')
            for r in range(2, 12):
                I(f'v_fmac_f32 v{t + 2*(r&1)}, v{P+r}, v{Q+r}')
        I(f'v_cmp_gt_u32 vcc, 32, v{vL}')
        for X in range(2):
            t = TMP + 4 * X
            I(f'v_add_f32 v{t}, v{t}, v{t+2}')
        for X in range(2):
            t = TMP + 4 * X
            I(f'v_cndmask_b32 v{t+1}, 0, v{t+1}, vcc')
        for X in range(2):
            t = TMP + 4 * X
            I(f'v_add_f32 v{t}, v{t}, v{t+1}')
        t = TMP
        I(f'v_and_b32 v{t+2}, 1, v{vG}')
        I(f'v_lshlrev_b32 v{t+2}, 6, v{t+2}')
        I(f'v_lshrrev_b32 v{t+3}, 1, v{vG}')
        I(f'v_lshl_add_u32 v{t+2}, v{t+3}, 2, v{t+2}')
        I(f's_lshl_b32 s{sT0}, s{sK}, 8')
        I(f's_add_u32 s{sT0}, s{sT0}, {RED + 16}')
        I(f'v_add_u32 v{t+2}, s{sT0}, v{t+2}')
        for sh in (8, 4, 2, 1):
            for X in range(2):
                tt = TMP + 4 * X
                I(f'v_add_f32_dpp v{tt}, v{tt}, v{tt} row_ror:{sh} row_mask:0xf bank_mask:0xf')
        I(f's_mov_b32 exec_lo, 0x00010001'); I(f's_mov_b32 exec_hi, 0x00010001')
        I(f'ds_write_b32 v{t+2}, v{TMP}')
        I(f'ds_write_b32 v{t+2}, v{TMP+4} offset:128')
        I('s_mov_b64 exec, -1')
    for j in range(13):
        e.comment(f'---- CIN interval {j}')
        if j == 0:
            I(f'v_mov_b32 v{TMP}, {XCNT}'); I(f'v_mov_b32 v{TMP+1}, 1')
            I('s_waitcnt vmcnt(0)')
            I('s_nop 15')
            if opts.get('cp0', 2): I(f's_setprio {opts.get("cp0", 2)}')
            I('s_mov_b64 exec, 1')
            I(f'ds_add_u32 v{TMP}, v{TMP+1} offset:4')
            I('s_mov_b64 exec, -1')
        if j == 1 and opts.get('cp0', 2): I(f's_setprio {opts.get("cp1", 0)}')
        ST(e, f'it{j}')
        if j == 0:
            xa = [I(f'ds_read_b64_tr_b16 {vr(XPA+2*q,2)}, v{vTRX} offset:{128*q}') for q in range(7)]
            xb = [I(f'ds_read_b64_tr_b16 {vr(XPB+2*q,2)}, v{vTRX} offset:{2*XS + 128*q}') for q in range(7)]
            I('s_waitcnt lgkmcnt(0)')
            I('s_mov_b64 exec, 1')
            I(f'ds_add_u32 v{TMP}, v{TMP+1}')
            I('s_mov_b64 exec, -1')
            if opts.get('safe_x'): I('s_barrier')
            af_read(0); af_read(1)
            for q in range(7):
                for h in range(2):
                    I(f'v_lshlrev_b32 v{XA+4*q+2*h}, 16, v{XPA+2*q+h}')
                    I(f'v_and_b32 v{XA+4*q+2*h+1}, 0xffff0000, v{XPA+2*q+h}')
            z_half(0, 0, 0); z_half(0, 0, 1)
            for q in range(7):
                for h in range(2):
                    I(f'v_lshlrev_b32 v{XBB+4*q+2*h}, 16, v{XPB+2*q+h}')
                    I(f'v_and_b32 v{XBB+4*q+2*h+1}, 0xffff0000, v{XPB+2*q+h}')
            z_half(1, 0, 0); z_half(1, 0, 1)
        for (s, X) in ([] if opts.get('no_cin') else sc[j]):
            if X == 0: e.wait_ds(af_ids[s])
            buf = AF[s & 1]
            z = ZZ[X][s & 1]
            P, Q = ACC[('P', X)], ACC[('Q', X)]
            I(f'v_mfma_f32_32x32x16_bf16 {vr(P,16)}, {vr(buf,4)}, {vr(z,4)}, ' + ('0' if s == 0 else vr(P,16)))
            if s + 1 < 28: z_half(X, s + 1, 0)
            I(f'v_mfma_f32_32x32x16_bf16 {vr(Q,16)}, {vr(buf+4,4)}, {vr(z,4)}, ' + (vr(QI,16) if s == 0 else vr(Q,16)))
            if X == 1 and s + 2 < 28: af_read(s + 2)
            if s + 1 < 28: z_half(X, s + 1, 1)
        if (not sc[j]) and j > 0 and sc[j-1]:
            if opts.get('cpe', 2): I(f's_setprio {opts.get("cpe", 2)}')
            epilogue()
    if sc[12]:
        epilogue()
    I('s_waitcnt lgkmcnt(0)')
    ST(e, 'gelu')

def main_dnn(e, debug, opts):
    I = e.I
    e.last = {}
    I(f's_cmp_ge_u32 s{sK}, 2')
    I('s_cselect_b64 vcc, -1, 0')
    def dma_one(step, u, tag, between=None):
        if u == 6: I(f's_cbranch_vccnz L_d6_{tag}')
        I(f's_add_u32 m0, s{sDma}, {(step % 4)*SLOT + u*1024}')
        if between: between()
        else: I('s_nop 0')
        I(f'buffer_load_dwordx4 v{vDMA+u}, {srd(S_W1)}, s{sT3} offen lds')
        if u == 6: e.label(f'L_d6_{tag}')
    def mf(j, u):
        I(f'v_mfma_f32_16x16x32_bf16 {vr(DACC+4*u,4)}, {vr(XF+4*j,4)}, {vr(WF[j&1]+4*u,4)}, {vr(DACC+4*u,4)}')
    plan = {j: ([j + 3] if j + 3 <= 12 else []) for j in range(13)}
    order = [(st_, u) for st_ in range(3) for u in range(7)]
    tops = {}
    for j in range(13):
        tops[j] = list(order)
        order += [(st_, u) for st_ in plan[j] for u in range(7)]
    def later_count(j, cls7):
        seq = [x for x in tops[j] if cls7 or x[1] < 6]
        jj_ = min(j + 1, 12)
        last = max(i for i, x in enumerate(seq) if x[0] == jj_)
        return len(seq) - 1 - last
    if not opts.get('dnn0_early', 1): dma_step(e, 0, 'C0')
    dma_step(e, 1, 'C1')
    dma_step(e, 2, 'C2')
    e.label('L_xl_dnn')
    I(f'ds_read_b32 v{vXCT}, v{vXCA} offset:4')
    I('s_waitcnt lgkmcnt(0)')
    I(f'v_readfirstlane_b32 s{sT0}, v{vXCT}')
    I(f's_cmp_ge_u32 s{sT0}, 4')
    e.raw('    s_cbranch_scc0 L_xl_dnn')
    ST(e, 'it0')
    for q in range(13):
        I(f'ds_read_b64 {vr(XF+4*q,2)}, v{vXF} offset:{64*q}')
        I(f'ds_read_b64 {vr(XF+4*q+2,2)}, v{vXF} offset:{64*q+16}')
    I('s_waitcnt lgkmcnt(0)')
    I('s_mov_b64 exec, 1')
    I(f'ds_add_u32 v{vXCA}, v{vONE}')
    I('s_mov_b64 exec, -1')
    for j in range(13):
        e.comment(f'---- DNN interval {j}')
        n7, n6 = later_count(j, True), later_count(j, False)
        if opts.get('safe_dv'): n7 = n6 = 0
        if n7 != n6:
            I(f's_cbranch_vccnz L_vw6_{j}')
            I(f's_waitcnt vmcnt({n7})')
            I(f's_branch L_vwd_{j}')
            e.label(f'L_vw6_{j}')
            I(f's_waitcnt vmcnt({n6})')
            e.label(f'L_vwd_{j}')
        else:
            I(f's_waitcnt vmcnt({n7})')
        if j > 0: ST(e, f'it{j}')
        slot = j % 4
        tb = vT + 4 * (slot >> 1)
        for u in range(7):
            if u == 6: I(f's_cbranch_vccnz L_r6_{j}')
            for jj in range(2):
                I(f'ds_read_b64_tr_b16 {vr(WF[j&1]+4*u+2*jj,2)}, v{tb+2*jj+(u&1)} offset:{(slot&1)*SLOT + (u>>1)*64}')
        e.label(f'L_r6_{j}')
        steps_ = [] if opts.get('no_dma') else plan[j]
        first = steps_[0] if steps_ else None
        if j == 0:
            e.label('L_xspin')
            I(f'ds_read_b32 v{vXCT}, v{vXCA}')
            I('s_waitcnt lgkmcnt(0)')
            I(f'v_readfirstlane_b32 s{sT0}, v{vXCT}')
            I(f's_cmp_ge_u32 s{sT0}, 8')
            e.raw('    s_cbranch_scc0 L_xspin')
            I(f's_mov_b32 s{sT3}, {first*26624}')
            for u in range(7): dma_one(first, u, '0')
        else:
            I('s_waitcnt lgkmcnt(12)')
            if first is not None: I(f's_mov_b32 s{sT3}, {first*26624}')
            for u in range(7):
                if u == 6:
                    I(f's_cbranch_vccnz L_m6_{j}')
                    if first is not None:
                        I(f's_add_u32 m0, s{sDma}, {(first % 4)*SLOT + u*1024}'); mf(j - 1, u)
                        I(f'buffer_load_dwordx4 v{vDMA+u}, {srd(S_W1)}, s{sT3} offen lds')
                    else: mf(j - 1, u)
                    e.label(f'L_m6_{j}')
                elif first is not None:
                    dma_one(first, u, f'{j}', between=lambda: mf(j - 1, u))
                else:
                    mf(j - 1, u)
    I('s_waitcnt lgkmcnt(0)')
    for u in range(7):
        if u == 6: I('s_cbranch_vccnz L_m6_end')
        mf(12, u)
    e.label('L_m6_end')
    ST(e, 'gelu')
    G = TMP
    T = TMP + 4
    C1, C0, ONE = CST, CST + 2, CST + 4
    def gelu(pairs, first):
        def each(fn):
            for k_, (x, u, h) in enumerate(pairs):
                fn(x, T + 2 * k_, u, h, k_)
        each(lambda x, t, u, h, k_: I(f'v_pk_mul_f32 {vr(t,2)}, {vr(x,2)}, {vr(x,2)}'))
        each(lambda x, t, u, h, k_: I(f'v_pk_fma_f32 {vr(t,2)}, {vr(t,2)}, {vr(C1,2)}, {vr(C0,2)}'))
        each(lambda x, t, u, h, k_: I(f'v_pk_mul_f32 {vr(t,2)}, {vr(t,2)}, {vr(x,2)}'))
        each(lambda x, t, u, h, k_: (I(f'v_exp_f32 v{t}, v{t}'), I(f'v_exp_f32 v{t+1}, v{t+1}')))
        each(lambda x, t, u, h, k_: I(f'v_pk_mul_f32 {vr(x,2)}, {vr(x,2)}, {vr(W2V + (u & ~1), 2)} op_sel:[0,{u&1}] op_sel_hi:[1,{u&1}]'))
        each(lambda x, t, u, h, k_: I(f'v_pk_add_f32 {vr(t,2)}, {vr(t,2)}, {vr(ONE,2)}'))
        each(lambda x, t, u, h, k_: (I(f'v_rcp_f32 v{t}, v{t}'), I(f'v_rcp_f32 v{t+1}, v{t+1}')))
        def last(x, t, u, h, k_):
            if first and k_ < 2: I(f'v_pk_mul_f32 {vr(G+2*h,2)}, {vr(t,2)}, {vr(x,2)}')
            else: I(f'v_pk_fma_f32 {vr(G+2*h,2)}, {vr(t,2)}, {vr(x,2)}, {vr(G+2*h,2)}')
        each(last)
    allp = [(DACC + 4*u + 2*h, u, h) for u in range(6) for h in range(2)]
    gelu(allp[0:4], True); gelu(allp[4:8], False); gelu(allp[8:12], False)
    I(f's_cmp_ge_u32 s{sK}, 2'); I(f's_cbranch_scc1 L_g6')
    gelu([(DACC + 24 + 2*h, 6, h) for h in range(2)], False)
    e.label('L_g6')
    I(f'v_lshlrev_b32 v{T}, 8, v{vG}')
    I(f's_lshl_b32 s{sT0}, s{sK}, 2')
    I(f's_add_u32 s{sT0}, s{sT0}, {RED}')
    I(f'v_add_u32 v{T}, s{sT0}, v{T}')
    for sh in (8, 4, 2, 1):
        for r in range(4):
            I(f'v_add_f32_dpp v{G+r}, v{G+r}, v{G+r} row_ror:{sh} row_mask:0xf bank_mask:0xf')
    I(f's_mov_b32 exec_lo, 0x00010001'); I(f's_mov_b32 exec_hi, 0x00010001')
    for r in range(4):
        I(f'ds_write_b32 v{T}, v{G+r} offset:{64*r}')
    I('s_mov_b64 exec, -1')
    I('s_waitcnt lgkmcnt(0)')

def final(e, debug, opts):
    I = e.I
    T = TMP + 4
    e.label('L_join')
    e.last = {}
    if opts.get('pad_line'):
        for q in range(opts['pad_line']): I(f'v_mov_b32 v{60 + (q % 8)}, 0x12345678')
    if opts.get('pad_loop'):
        I(f's_mov_b32 s{sT0}, 0')
        e.label('L_pl')
        for q in range(32): I(f'v_mov_b32 v{60 + (q % 8)}, 0x12345678')
        I(f's_add_u32 s{sT0}, s{sT0}, 1')
        I(f's_cmp_lt_u32 s{sT0}, {opts["pad_loop"]}')
        e.raw('    s_cbranch_scc1 L_pl')
    if opts.get('delay_end'):
        I(f's_mov_b32 s{sT0}, 0')
        e.label('L_dly')
        for _ in range(8): I('s_nop 15')
        I(f's_add_u32 s{sT0}, s{sT0}, 1')
        I(f's_cmp_lt_u32 s{sT0}, {opts["delay_end"]}')
        e.raw('    s_cbranch_scc1 L_dly')
    I('s_barrier')
    if debug == 'red':
        dump_lds(e); return
    if debug == 'stamp':
        ST(e, 'fin')
        ST.flush(e)
        open(sys.argv[1] + '.names', 'w').write(' '.join(ST.names))
        return
    if debug == 'hstamp':
        ST(e, 'fin')
        sel = opts.get('hsel', ['b0', 'pre1', 'b1', 'units', 'b2', 'it0', 'it12', 'fin'])
        I(f's_cmp_eq_u32 s2, {opts.get("hwg", 128)}'); I('s_cbranch_scc0 L_nohs')
        I(f's_and_b32 s{sT0}, s{sW}, 3'); I(f's_cmp_eq_u32 s{sT0}, 0'); I('s_cbranch_scc0 L_nohs')
        I('s_waitcnt lgkmcnt(0)')
        r0 = STAMP_SLOTS[0]
        for i, nm in enumerate(sel):
            r = STAMP_SLOTS[ST.names.index(nm)]
            I(f's_sub_u32 s{sT1}, s{r}, s{r0}')
            I(f'v_writelane_b32 v200, s{sT1}, {i}')
        I(f's_lshl_b32 s{sT0}, s{sW}, 3')
        I(f'v_lshlrev_b32 v201, 2, v{vL}')
        I(f'v_add_u32 v201, s{sT0}, v201')
        I('s_mov_b32 exec_lo, 0xff'); I('s_mov_b32 exec_hi, 0')
        I('global_store_dword v201, v200, s[22:23]')
        I('s_mov_b64 exec, -1')
        I('s_waitcnt vmcnt(0)')
        e.label('L_nohs')
    I(f's_cmp_lg_u32 s{sW}, 0'); I('s_cbranch_scc1 L_end')
    I('s_mov_b32 exec_lo, 0xffff'); I('s_mov_b32 exec_hi, 0')
    I(f'v_lshlrev_b32 v{T}, 6, v{vL}')
    I(f'v_add_u32 v{T}, {RED}, v{T}')
    I(f'ds_read_b128 {vr(8,4)}, v{T}')
    I(f'ds_read_b64 {vr(12,2)}, v{T} offset:16')
    if debug == 'redout':
        I('s_waitcnt lgkmcnt(0)')
        I(f's_lshl_b32 s{sT0}, s2, 9')
        I(f'v_lshlrev_b32 v20, 5, v{vL}')
        I(f'v_add_u32 v20, s{sT0}, v20')
        I('global_store_dwordx4 v20, v[8:11], s[22:23]')
        I('global_store_dwordx2 v20, v[12:13], s[22:23] offset:16')
        I('s_waitcnt vmcnt(0)')
    I(f's_mov_b32 s{S_OUT}, s20'); I(f's_mov_b32 s{S_OUT+1}, s21')
    I(f's_mov_b32 s{S_OUT+2}, 8192'); I(f's_mov_b32 s{S_OUT+3}, 0x20000')
    I(f's_lshl_b32 s{sBO}, s{sBO}, 16')
    I(f's_lshl_b32 s{sT0}, s2, 5')
    I(f'v_lshlrev_b32 v{T+1}, 1, v{vL}')
    I(f'v_add_u32 v{T+1}, s{sT0}, v{T+1}')
    I('s_waitcnt lgkmcnt(0)')
    I('v_add_f32 v8, v8, v9'); I('v_add_f32 v10, v10, v11'); I('v_add_f32 v12, v12, v13')
    I('v_add_f32 v8, v8, v10')
    I(f'v_add_f32 v12, s{sBO}, v12')
    I('v_add_f32 v8, v8, v12')
    I('v_cvt_pk_bf16_f32 v8, v8, v8')
    I(f'buffer_store_short v8, v{T+1}, {srd(S_OUT)}, 0 offen')

def finish(e, opts):
    e.label('L_end')
    body = e.text()
    hdr = f"""; xDeepFM (CIN + DNN) fused kernel, generated by my own generator script.
; One workgroup = 16 batch rows, 8 waves.  CIN layers are folded at run time into two quadratic forms.
; @launch grid=(256,1,1) block=(512,1,1) lds={LDS_TOTAL}
.amdgcn_target "amdgcn-amd-amdhsa--gfx950"
.text
.globl {KN}
.p2align 8
.type {KN},@function
{KN}:
"""
    ftr = f"""    s_endpgm
.section .rodata,"a"
.p2align 6
.amdhsa_kernel {KN}
  .amdhsa_next_free_vgpr 256
  .amdhsa_next_free_sgpr 102
  .amdhsa_accum_offset 256
  .amdhsa_group_segment_fixed_size 0
  .amdhsa_kernarg_size 88
  .amdhsa_user_sgpr_count 2
  .amdhsa_user_sgpr_kernarg_segment_ptr 1
  .amdhsa_system_sgpr_workgroup_id_x 1
  .amdhsa_ieee_mode 0
.end_amdhsa_kernel
"""
    return hdr + body + ftr

if __name__ == '__main__':
    dbg = sys.argv[2] if len(sys.argv) > 2 and sys.argv[2] != 'none' else None
    opts = eval(sys.argv[3]) if len(sys.argv) > 3 else {}
    out = build(dbg, opts)
    open(sys.argv[1], 'w').write(out)
    print('wrote', sys.argv[1], len(out), 'bytes')
```

```python
import sys, os
from emit import Emit

KN = "standalone__deep_cross_xdeepfm__recsys_kernel"

FST = 848; FR_P = 0; FR_Q = 28 * FST
RB = 47616; SLOT = 26624; WROW = 832
WS2 = RB + SLOT - 4 * 13312
WS1 = RB + SLOT
STG = 13312
XB = RB + 3 * SLOT; XS = 912
HB = RB + 4 * SLOT
SM = HB + 2048; SM_A0 = SM; SM_B1 = SM + 64; SM_W2 = SM + 896
RED = SM + 1728
XCNT = RED + 1024
XLND = XCNT + 4
LDS_TOTAL = 163840
OOB_LDS = 0x40000
CIN_L = 35152
assert WS1 % 512 == 0 and 28 * FST * 2 <= RB and RED + 1024 <= LDS_TOTAL and WS2 % 512 == 0 and WS2 >= 0

S_IDX, S_TAB, S_CIN, S_W1 = 24, 28, 32, 36
S_A0, S_B1, S_W2, S_OUT = 40, 52, 56, 60
sA2 = 96
sW, sK = 64, 65
sBO = 66
sI0 = 67
sT0, sT1, sT2, sT3 = 68, 69, 70, 71
sMN10 = 78
sE52 = 80
sStage, sSrc = 82, 83
sC0, sC1, sC2 = 84, 85, 86
sX0 = 88
sF0, sF1, sF2 = 84, 85, 86
sDma = 92
sSL = 93
SA = 44
def srd(n): return f"s[{n}:{n+3}]"
def sp(n): return f"s[{n}:{n+1}]"
def vr(a, n=1): return f"v{a}" if n == 1 else f"v[{a}:{a+n-1}]"

vL = 0
TMP = 122
fa, fb, fc, fd, fe = 132, 133, 134, 135, 136
vN, vG, vR4, vC4 = 142, 143, 144, 145
vWA = 146
vWB = 149
DD = [152, 164]
DC = 176
vSO = 182
vDUM = 186
UD = 2; SELA = 212; HF = 204
TAD = 188
UB = 68
FF = 2; EF = 60; vIDX = 68; vFO = 72
XA = 2; XBB = 30
ZA = [58, 62]; ZBB = [66, 70]
ZT = 74
AF = [82, 90]
vAF = 100; vTRX = 101
XPA = 104; XPB = 152
QI = 166
ACC = {('P', 0): 192, ('Q', 0): 208, ('P', 1): 224, ('Q', 1): 240}
vDMA = 100
vT = 108
vXF = 116
WF = [2, 30]
XF = 152
DACC = 208
W2V = 236
CST = 244
vXCA = 118; vONE = 119; vXCT = 120

STAMP_SLOTS = [94, 96, 98, 100, 90, 40, 42] + list(range(44, 60, 2)) + [24, 26, 28, 30, 4, 6, 8, 10, 14, 16, 12, 18]
class Stamps:
    def __init__(self, on): self.on = on; self.names = []
    def __call__(self, e, name):
        if not self.on: return
        if name in self.names: i = self.names.index(name)
        else:
            i = len(self.names); self.names.append(name)
        r = STAMP_SLOTS[i]
        e.I(f's_memtime s[{r}:{r+1}]')
    def flush(self, e):
        if not self.on: return
        I = e.I
        I('s_mov_b64 exec, -1')
        I('s_waitcnt vmcnt(0) lgkmcnt(0)')
        for i in range(len(self.names)):
            I(f'v_writelane_b32 v200, s{STAMP_SLOTS[i]}, {i}')
        I('s_memrealtime s[68:69]')
        I('s_waitcnt lgkmcnt(0)')
        I('v_writelane_b32 v200, s68, 31')
        I('v_mbcnt_lo_u32_b32 v201, -1, 0'); I('v_mbcnt_hi_u32_b32 v201, -1, v201')
        I('v_lshlrev_b32 v201, 2, v201')
        I(f's_lshl_b32 s70, s2, 3'); I(f's_add_u32 s70, s70, s{sW}'); I('s_lshl_b32 s70, s70, 8')
        I('v_add_u32 v201, s70, v201')
        I('global_store_dword v201, v200, s[22:23]')
        I('s_waitcnt vmcnt(0)')
ST = Stamps(False)

def step_list():
    return [(a, b) for b in range(7) for a in range(b + 1)]

def mk_srd(e, n, lo, size, add=0):
    I = e.I
    if add:
        I(f's_add_u32 s{n}, s{lo}, {add}')
        I(f's_addc_u32 s{n+1}, s{lo+1}, 0')
    else:
        I(f's_mov_b32 s{n}, s{lo}')
        I(f's_mov_b32 s{n+1}, s{lo+1}')
    I(f's_mov_b32 s{n+2}, {size}')
    I(f's_mov_b32 s{n+3}, 0x20000')


class FQ:
    def __init__(self): self.q = []
    def add(self, *items): self.q.extend(items)
    def drain(self, e, n=10**9):
        k = 0
        while self.q and k < n:
            it = self.q.pop(0)
            if isinstance(it, list):
                for x in it: e.I(x)
                k += len(it)
            else:
                e.I(it); k += 1

def f_srd(n, lo, size):
    return [f's_mov_b32 s{n}, s{lo}', f's_mov_b32 s{n+1}, s{lo+1}', f's_mov_b32 s{n+2}, {size}', f's_mov_b32 s{n+3}, 0x20000']

def f_common_a():
    L = [f'v_bfe_u32 v{fa}, v{vN}, 1, 1', f'v_mul_u32_u24 v{fb}, 420, v{fa}', f'v_and_b32 v{fc}, 1, v{vN}',
         f'v_lshl_add_u32 v{fb}, v{fc}, 3, v{fb}', f's_lshl_b32 s{sF0}, s{sI0}, 4', f'v_lshrrev_b32 v{fc}, 2, v{vN}',
         f'v_add_u32 v{fa}, 1, v{vG}', f'v_mul_u32_u24 v{fa}, v{fa}, v{vG}', f'v_cmp_le_u32 s[72:73], v{fc}, v{vG}',
         f'v_lshrrev_b32 v{fa}, 1, v{fa}', f'v_cmp_ge_u32 s[74:75], 2, v{vG}', f'v_add_u32 v{fa}, v{fa}, v{fc}',
         f's_movk_i32 s{sF2}, {FST}', f'v_add_u32 v{fb}, s{sF0}, v{fb}', f'v_lshlrev_b32 v{fe}, 2, v{vL}',
         f'v_mad_u32_u24 v{fd}, v{fa}, s{sF2}, v{fb}', f's_and_b64 s[76:77], s[72:73], s[74:75]', f'v_add_u32 v{fe}, {OOB_LDS}, v{fe}',
         f's_movk_i32 s{sF1}, {4*FST}', f'v_cndmask_b32 v{vWA}, v{fe}, v{fd}, s[72:73]',
         f'v_mad_u32_u24 v{fd}, v{vG}, s{sF1}, v{fd}', f'v_xor_b32 v{vWB}, 4, v{vWA}', f'v_add_u32 v{fd}, {10*FST}, v{fd}',
         f'v_cndmask_b32 v{vWA+1}, v{fe}, v{fd}, s[74:75]', f'v_add_u32 v{fd}, {4*FST}, v{fd}', f'v_xor_b32 v{vWB+1}, 4, v{vWA+1}',
         f'v_cndmask_b32 v{vWA+2}, v{fe}, v{fd}, s[76:77]', f'v_xor_b32 v{vWB+2}, 4, v{vWA+2}']
    return L

def f_setup_cin():
    L = [f'v_and_b32 v{fa}, 31, v{vL}', f'v_lshlrev_b32 v{fa}, 4, v{fa}', f'v_lshrrev_b32 v{fb}, 5, v{vL}',
         f's_movk_i32 s{sF1}, 416', f'v_mad_u32_u24 v{vAF}, v{fb}, s{sF1}, v{fa}',
         f'v_lshrrev_b32 v{fb}, 1, v{vG}', f'v_and_b32 v{fc}, 1, v{vG}', f's_movk_i32 s{sF1}, {XS}',
         f'v_lshlrev_b32 v{fa}, 1, v{fb}', f'v_xor_b32 v{fa}, v{fa}, v{vR4}', f'v_lshlrev_b32 v{fa}, 5, v{fa}',
         f'v_lshl_add_u32 v{fa}, v{vC4}, 3, v{fa}', f'v_mad_u32_u24 v{fa}, v{fc}, s{sF1}, v{fa}',
         f's_mul_i32 s{sF0}, s{sK}, {4*XS}', f's_add_u32 s{sF0}, s{sF0}, {XB}', f'v_add_u32 v{vTRX}, s{sF0}, v{fa}']
    return L

def f_setup_dnn():
    sCPR, sMAG, sSWZ, sRS = 72, 73, 74, 75
    L = [f's_cmp_lt_u32 s{sK}, 2', f's_cselect_b32 s{sCPR}, 14, 12', f's_mov_b32 s{sF1}, 87382', f's_cselect_b32 s{sMAG}, 74899, s{sF1}',
         f's_cselect_b32 s{sSWZ}, 0, 2', f's_lshl_b32 s{sRS}, s{sCPR}, 4', f's_lshl_b32 s{sF0}, s{sI0}, 5', f's_movk_i32 s{sF2}, 832']
    L += [f's_sub_u32 s{sF2}, s{sF2}, s{sRS}']
    for u in range(7):
        L += [f'v_add_u32 v{fa}, {64*u}, v{vL}', f'v_mul_u32_u24 v{fc}, s{sMAG}, v{fa}', f'v_lshrrev_b32 v{fc}, 20, v{fc}',
              f'v_lshrrev_b32 v{fd}, 1, v{fc}', f'v_and_b32 v{fd}, s{sSWZ}, v{fd}', f'v_xor_b32 v{fa}, v{fa}, v{fd}',
              f'v_lshl_add_u32 v{fa}, v{fa}, 4, s{sF0}', f'v_mad_u32_u24 v{vDMA+u}, v{fc}, s{sF2}, v{fa}']
    L += [f's_lshl_b32 s{sDma}, s{sI0}, 10', f's_add_u32 s{sDma}, s{sDma}, {RB}']
    L += [f'v_lshrrev_b32 v{fb}, 1, v{vG}', f'v_and_b32 v{fc}, 1, v{vG}', f'v_lshlrev_b32 v{fa}, 4, v{fb}',
          f'v_lshl_add_u32 v{fa}, v{fc}, 2, v{fa}', f'v_add_u32 v{fa}, v{fa}, v{vR4}', f'v_mul_u32_u24 v{fa}, s{sRS}, v{fa}',
          f'v_lshl_add_u32 v{fa}, v{vC4}, 3, v{fa}', f'v_add_u32 v{fa}, s{sDma}, v{fa}',
          f's_lshl_b32 s{sF1}, s{sSWZ}, 4', f'v_lshlrev_b32 v{fd}, 5, v{fc}', f'v_and_b32 v{fd}, s{sF1}, v{fd}',
          f'v_add_u32 v{vT}, v{fa}, v{fd}', f'v_sub_u32 v{vT+1}, v{fa}, v{fd}', f'v_add_u32 v{vT+1}, 32, v{vT+1}',
          f's_lshl_b32 s{sF1}, s{sRS}, 3',
          f'v_add_u32 v{vT+2}, s{sF1}, v{vT}', f'v_add_u32 v{vT+3}, s{sF1}, v{vT+1}']
    L += [f'v_add_u32 v{vT+4+q}, {2*SLOT}, v{vT+q}' for q in range(4)]
    L += [f's_movk_i32 s{sF1}, {XS}', f'v_lshlrev_b32 v{fa}, 5, v{fb}', f'v_lshl_add_u32 v{fa}, v{fc}, 3, v{fa}',
          f'v_mad_u32_u24 v{fa}, v{vN}, s{sF1}, v{fa}', f'v_add_u32 v{vXF}, {XB}, v{fa}']
    return L

def acc_init_cin(e):
    I = e.I
    I(f'v_lshrrev_b32 v{fa}, 5, v{vL}')
    I(f'v_lshlrev_b32 v{fa}, 3, v{fa}')
    I(f'v_add_u32 v{fa}, {SM_A0}, v{fa}')
    ids = [I(f'ds_read_b64 {vr(XPA+2*g,2)}, v{fa} offset:{16*g}') for g in range(4)]
    e.wait_ds(ids[-1])
    for g in range(4):
        for q in range(2):
            I(f'v_lshlrev_b32 v{QI+4*g+2*q}, 16, v{XPA+2*g+q}')
            I(f'v_and_b32 v{QI+4*g+2*q+1}, 0xffff0000, v{XPA+2*g+q}')

def acc_init_dnn(e):
    I = e.I
    I(f's_lshl_b32 s{sF0}, s{sI0}, 5')
    I(f's_add_u32 s{sF0}, s{sF0}, {SM_B1}')
    I(f'v_lshlrev_b32 v{fb}, 1, v{vN}')
    I(f'v_add_u32 v{fb}, s{sF0}, v{fb}')
    B = 60
    for u in range(7):
        I(f'v_mov_b32 v{B+u}, 0')
        I(f'v_mov_b32 v{W2V+u}, 0')
    ids = []
    for u in range(7):
        ids.append(I(f'ds_read_u16_d16_hi v{B+u}, v{fb} offset:{32*u}'))
        ids.append(I(f'ds_read_u16_d16_hi v{W2V+u}, v{fb} offset:{832 + 32*u}'))
    for q, val in enumerate(('0xbdd2d3e8', '0xbdd2d3e8', '0xc0135761', '0xc0135761', '1.0', '1.0')):
        I(f'v_mov_b32 v{CST+q}, {val}')
    e.wait_ds(ids[-1])
    for u in range(7):
        for r in range(4):
            I(f'v_mov_b32 v{DACC+4*u+r}, v{B+u}')

def build(debug=None, opts=None):
    global ST
    opts = opts or {}
    e = Emit(); I = e.I
    a, b, c, d = TMP, TMP + 1, TMP + 2, TMP + 3
    touch = opts.get('touch', True)
    gapL = opts.get('gapL', 10)
    sRT = sC1
    I('s_cmp_ge_u32 s2, 256')
    I('s_cbranch_scc1 L_end')
    I('s_load_dwordx16 s[4:19], s[0:1], 0')
    I(f'v_lshrrev_b32 v1, 6, v0')
    I(f'v_and_b32 v{vL}, 63, v0')
    I(f'v_readfirstlane_b32 s{sW}, v1')
    I(f's_bfe_u32 s{sSL}, s2, 0x50003')
    ST = Stamps(debug in ('stamp', 'hstamp'))
    ST(e, 'start')
    if touch:
        I(f's_getpc_b64 {sp(sX0)}')
        I(f's_lshl_b32 s{sT0}, s{sSL}, 3')
        I(f's_add_u32 s{sT0}, s{sT0}, s{sW}')
        I(f's_lshl_b32 s{sT1}, s{sT0}, 7')
        I(f's_min_u32 s{sT1}, s{sT1}, L_end-{KN}')
        I(f's_and_b32 s{sX0}, s{sX0}, 0xffffff00')
        I(f'v_mov_b32 v{a}, s{sT1}')
        I(f'global_load_dword v{vDUM}, v{a}, {sp(sX0)}')
        I(f's_mul_i32 s{sT1}, s{sT0}, 11')
        I(f's_lshl_b32 s{sT2}, s{sT0}, 2')
        I(f'v_add_u32 v{b}, s{sT1}, v{vL}')
        I(f'v_add_u32 v{c}, s{sT2}, v{vL}')
        I(f'v_lshlrev_b32 v{b}, 7, v{b}')
        I(f'v_lshlrev_b32 v{c}, 7, v{c}')
    I(f's_and_b32 s{sK}, s{sW}, 3')
    I(f's_lshl_b32 s{sT0}, s2, 4')
    I(f's_lshl_b32 s{sT1}, s{sK}, 2')
    I(f's_add_u32 s{sT0}, s{sT0}, s{sT1}')
    I(f's_mul_i32 s{sT0}, s{sT0}, 104')
    I(f'v_lshrrev_b32 v{d}, 1, v{vL}')
    I(f'v_lshlrev_b32 v{d}, 2, v{d}')
    I(f'v_add_u32 v{d}, s{sT0}, v{d}')
    I(f's_cmp_ge_u32 s{sW}, 4')
    I('s_waitcnt lgkmcnt(0)')
    if opts.get('fine'):
        ST(e, 'ka'); I(f's_cmp_ge_u32 s{sW}, 4')
    I('s_cbranch_scc0 L_eN')
    mk_srd(e, S_IDX, 4, 4096 * 104)
    for bb in range(4):
        I(f'buffer_load_dword v{vIDX+bb}, v{d}, {srd(S_IDX)}, 0 offen offset:{bb*104}')
    e.label('L_eN')
    I(f's_mov_b32 s{S_CIN}, s8'); I(f's_mov_b32 s{S_CIN+1}, s9')
    I(f's_mov_b32 s{S_CIN+2}, {3*CIN_L}'); I(f's_mov_b32 s{S_CIN+3}, 0x20000')
    mk_srd(e, S_W1, 12, 346112)
    if touch:
        I('s_mov_b32 exec_lo, 0xf'); I('s_mov_b32 exec_hi, 0')
        I(f'buffer_load_dword v{vDUM}, v{c}, {srd(S_CIN)}, 0 offen')
        I('s_mov_b32 exec_lo, 0x7ff')
        I(f'buffer_load_dword v{vDUM}, v{b}, {srd(S_W1)}, 0 offen')
        I('s_mov_b64 exec, -1')
    if opts.get('fine'): ST(e, 'tch')
    I(f'v_lshrrev_b32 v{a}, 5, v{vL}')
    I(f'v_and_b32 v{b}, 1, v{vL}')
    I(f'v_lshlrev_b32 v{b}, 4, v{b}')
    I(f's_movk_i32 s{sC0}, 1352')
    I(f'v_bfe_u32 v{c}, v{vL}, 1, 4')
    I(f'v_mad_u32_u24 v{b}, v{a}, s{sC0}, v{b}')
    I(f'v_xor_b32 v{c}, v{c}, v{a}')
    I(f's_mul_i32 s{sI0}, s{sK}, 7')
    I(f's_cmp_eq_u32 s{sK}, 3')
    I(f's_cselect_b32 s{sT0}, 1, 0')
    I(f's_sub_u32 s{sI0}, s{sI0}, s{sT0}')
    I(f'v_and_b32 v{a}, 1, v{c}')
    I(f'v_lshl_add_u32 v{b}, v{a}, 5, v{b}')
    I(f's_mul_i32 s{sStage}, s{sK}, {STG}')
    I(f's_mul_i32 s{sT0}, s{sK}, 208')
    I(f's_add_u32 s{sT0}, s{sT0}, {2*CIN_L}')
    I(f's_mul_i32 s{sT1}, s{sI0}, 52')
    I(f's_add_u32 s{sT1}, s{sT1}, {CIN_L}')
    I(f's_movk_i32 s{sT2}, 832')
    I(f's_cmp_ge_u32 s{sW}, 4')
    I(f's_cselect_b32 s{sSrc}, s{sT1}, s{sT0}')
    I(f's_cselect_b32 s{sRT}, 208, s{sT2}')
    I(f's_movk_i32 s{sT2}, {WS2}')
    I(f's_cselect_b32 s{sT0}, {WS1}, s{sT2}')
    I(f's_add_u32 s{sStage}, s{sStage}, s{sT0}')
    I(f'v_lshrrev_b32 v{a}, 3, v{c}')
    I(f'v_mad_u32_u24 v{b}, v{a}, s{sRT}, v{b}')
    I(f'v_bfe_u32 v{c}, v{c}, 1, 2')
    I(f's_mov_b32 m0, s{sStage}')
    I(f'v_mad_u32_u24 v{vSO}, v{c}, 52, v{b}')
    I(f's_movk_i32 s{sT3}, 2704')
    I(f's_movk_i32 s{sT2}, 1024')
    for tm in range(1, 4):
        I(f'v_xor_b32 v{a}, {tm}, v{c}')
        I(f'v_mad_u32_u24 v{vSO+tm}, v{a}, 52, v{b}')
    if opts.get('fine'): ST(e, 'dma0')
    for t in range(13):
        I(f'buffer_load_dwordx4 v{vSO + (t & 3)}, {srd(S_CIN)}, s{sSrc} offen lds')
        if t < 12:
            I(f's_add_u32 m0, m0, s{sT2}')
            I(f's_add_u32 s{sSrc}, s{sSrc}, s{sT3}')
    ST(e, 'b0')
    I(f's_load_dwordx2 s[20:21], s[0:1], 64')
    if debug == 'hstamp':
        I('s_load_dwordx2 s[22:23], s[0:1], 72')
    elif debug:
        I('s_load_dwordx2 s[22:23], s[0:1], 80')
    I(f's_load_dword s{sBO}, s[18:19], 0')
    I(f'v_and_b32 v{vN}, 15, v{vL}')
    I(f'v_lshrrev_b32 v{vG}, 4, v{vL}')
    I(f'v_bfe_u32 v{vR4}, v{vL}, 2, 2')
    I(f'v_and_b32 v{vC4}, 3, v{vL}')
    I(f's_cmp_lt_u32 s{sW}, 4')
    I('s_cbranch_scc1 L_Upath')

    ms = ['s[72:73]', 's[74:75]', 's[76:77]', 'vcc']
    I(f's_mov_b32 s{sE52}, -1')
    I(f's_mov_b32 s{sE52+1}, 0x000fffff')
    I(f'v_lshlrev_b32 v{b}, 4, v{vG}')
    I(f'v_mad_u32_u24 v{vFO}, v{vN}, 52, v{b}')
    I(f'v_cmp_gt_u32 vcc, 10, v{vN}')
    I(f'v_add_u32 v{vFO+1}, 832, v{vFO}')
    I(f'v_mov_b32 v{c}, 0x7ff00000')
    I(f'v_cndmask_b32 v{vFO+1}, v{c}, v{vFO+1}, vcc')
    I(f's_mul_i32 s{sT0}, s{sI0}, 1352')
    F = FQ()
    g0 = f_srd(S_A0, 10, 52) + f_srd(S_B1, 14, 832) + f_srd(S_W2, 16, 832) + [f'v_lshlrev_b32 v{fe}, 4, v{vL}']
    F.add(f'v_lshrrev_b32 v{fa}, 4, v{vL}', f'v_mul_u32_u24 v{fa}, {XS}, v{fa}', f'v_lshl_add_u32 v{fa}, v{vN}, 2, v{fa}',
          f's_mul_i32 s{sF0}, s{sK}, {4*XS}', f's_add_u32 s{sF0}, s{sF0}, {XB + 832}', f'v_add_u32 v{fa}, s{sF0}, v{fa}',
          f'v_cmp_gt_u32 vcc, 8, v{vN}', f'v_mov_b32 v{fb}, 0x3f803f80', f'v_mov_b32 v{fc}, {XCNT}', f'v_mov_b32 v{fd}, 0',
          f'v_cndmask_b32 v{fb}, 0, v{fb}, vcc', f'ds_write_b32 v{fa}, v{fb}', f'ds_write_b32 v{fc}, v{fd}', f'ds_write_b32 v{fc}, v{fd} offset:4')
    F.add(f'v_and_b32 v{fa}, 1, v{vL}', f'v_lshlrev_b32 v{fa}, 4, v{fa}', f'v_mov_b32 v{fb}, 0x3f80', f'v_lshlrev_b32 v{fb}, v{fa}, v{fb}',
          's_mov_b32 s73, 0', 's_mov_b32 s74, 0')
    for dw in range(4):
        m0_ = (3 << (2*dw)) | (3 << (16 + 2*dw + 8))
        m1_ = (3 << (2*dw)) | ((3 << 24) if dw == 0 else 0)
        F.add(f's_mov_b32 s72, {hex(m0_)}', f'v_cndmask_b32 v{EF+dw}, 0, v{fb}, s[72:73]',
              f's_mov_b32 s75, {hex(m1_)}', f'v_cndmask_b32 v{EF+4+dw}, 0, v{fb}, s[74:75]')
    F.add(*f_common_a())
    F.add(*f_setup_cin())
    def small_dma():
        I(f's_cmp_eq_u32 s{sK}, 0'); I('s_cbranch_scc0 L_sm1')
        I('s_mov_b32 exec_lo, 15'); I('s_mov_b32 exec_hi, 0')
        I(f's_mov_b32 m0, {SM_A0}'); I('s_nop 0')
        I(f'buffer_load_dwordx4 v{fe}, {srd(S_A0)}, 0 offen lds')
        I('s_branch L_smdone')
        e.label('L_sm1')
        I(f's_mov_b64 exec, {sp(sE52)}')
        I(f's_cmp_eq_u32 s{sK}, 1'); I('s_cbranch_scc0 L_sm2')
        I(f's_mov_b32 m0, {SM_B1}'); I('s_nop 0')
        I(f'buffer_load_dwordx4 v{fe}, {srd(S_B1)}, 0 offen lds')
        I('s_branch L_smdone')
        e.label('L_sm2')
        I(f's_cmp_eq_u32 s{sK}, 2'); I('s_cbranch_scc0 L_smdone')
        I(f's_mov_b32 m0, {SM_W2}'); I('s_nop 0')
        I(f'buffer_load_dwordx4 v{fe}, {srd(S_W2)}, 0 offen lds')
        e.label('L_smdone')
        I('s_mov_b64 exec, -1')
    for x in g0: I(x)
    small_dma()
    b1_at = opts.get('b1_at', 99)
    for u in range(7):
        if u == 6:
            I(f's_cmp_ge_u32 s{sK}, 2'); I('s_cbranch_scc1 L_w0done')
        if u == b1_at:
            I(f's_waitcnt vmcnt({0 if opts.get("safe_b1") else max(0, 2*u - 3)})')
            I('s_barrier')
            ST(e, 'b1')
        I(f's_add_u32 s{sT1}, s{sT0}, {u*1352}')
        for R in range(2):
            I(f'buffer_load_dwordx4 {vr(FF+8*u+4*R,4)}, v{vFO+R}, {srd(S_CIN)}, s{sT1} offen')
            if u < 6: F.drain(e, opts.get('gapW0', 0))
    e.label('L_w0done')
    if b1_at >= 7: I(f's_waitcnt vmcnt({25 + (2 if touch else 0)})')
    for _ in range(opts.get('dly_g', 0)): I('s_nop 15')
    mk_srd(e, S_TAB, 6, 3200000)
    I(f'v_and_b32 v{a}, 1, v{vL}')
    I(f'v_lshlrev_b32 v{a}, 4, v{a}')
    for bb in range(4):
        I(f'v_lshl_add_u32 v{vIDX+bb}, v{vIDX+bb}, 5, v{a}')
    I(f's_mul_i32 s{sT0}, s{sK}, {4*XS}')
    I(f's_mov_b64 exec, {sp(sE52)}')
    for bb in range(4):
        I(f's_add_u32 m0, s{sT0}, {XB + bb*XS}')
        I('s_nop 0')
        I(f'buffer_load_dwordx4 v{vIDX+bb}, {srd(S_TAB)}, 0 offen lds')
    I('s_mov_b64 exec, -1')
    ST(e, 'pre1')
    if b1_at >= 7:
        I('s_waitcnt vmcnt(13)')
        I('s_barrier')
        ST(e, 'b1')
    if opts.get('lprio'): I(f's_setprio {opts["lprio"]}')
    for _ in range(opts.get('dly_p', 0)): I('s_nop 15')
    F.drain(e)
    prev = None
    for u in range(7):
        if u == 6:
            I(f's_cmp_ge_u32 s{sK}, 2'); I('s_cbranch_scc1 L_plast')
        n = 2 * (5 - u) + 4 if u <= 5 else 4
        I(f's_waitcnt vmcnt({0 if opts.get("safe_p") else n})')
        f = FF + 8 * u
        unit(e, f, f + 4, EF, EF + 4, DD[u & 1], None if prev is None else (DD[prev & 1], prev, FR_P))
        prev = u
    unit_store(e, DD[6 & 1], 6, FR_P)
    I('s_branch L_pend')
    e.label('L_plast')
    unit_store(e, DD[5 & 1], 5, FR_P)
    e.label('L_pend')
    ST(e, 'units')
    I('s_waitcnt lgkmcnt(0)')
    ST(e, 'fold')
    if opts.get('lprio'): I('s_setprio 0')
    I('s_barrier')
    ST(e, 'b2')
    e.ds_q = []
    if debug == 'fold':
        I('s_branch L_dbg')
    else:
        acc_init_cin(e)
        I('s_waitcnt lgkmcnt(0)')
        main_cin(e, debug, opts)
        I('s_branch L_join')

    e.last = {}; e.ds_q = []
    e.label('L_Upath')
    I(f's_lshl_b32 s{sT2}, s{sK}, 3')
    I(f's_add_u32 s{sT2}, s{sT2}, 52')
    I(f's_add_u32 s{sT3}, s{sT2}, 32')
    I(f's_load_dwordx16 s[{SA}:{SA+15}], s[10:11], 104')
    I(f's_load_dwordx2 s[60:61], s[10:11], s{sT2}')
    I(f's_load_dwordx2 s[62:63], s[10:11], s{sT3}')
    for j in range(2):
        I(f'v_lshl_add_u32 v{fa}, v{vG}, 2, v{vR4}')
        if j:
            I(f'v_add_u32 v{fa}, 16, v{fa}'); I(f'v_min_u32 v{fa}, 25, v{fa}')
        I(f'v_and_b32 v{fb}, 7, v{fa}'); I(f'v_lshlrev_b32 v{fb}, 5, v{fb}'); I(f'v_lshl_add_u32 v{fb}, v{fa}, 9, v{fb}')
        I(f'v_lshl_add_u32 v{fb}, v{vC4}, 3, v{fb}'); I(f'v_add_u32 v{TAD+8*j}, s{sStage}, v{fb}')
        for x in range(1, 8):
            I(f'v_xor_b32 v{TAD+8*j+x}, {x*32}, v{TAD+8*j}')
    for u in range(4, 8):
        for R in range(2): I(f'v_mov_b32 v{UD+8*u+4*R}, 0')
    for dw in range(4): I(f'v_mov_b32 v{SELA+dw}, 0')
    I(f'v_lshlrev_b32 v{a}, 4, v{vL}')
    I(f'v_add_u32 v{a}, {HB}, v{a}')
    I(f'v_cmp_gt_u32 {sp(sMN10)}, 10, v{vN}')
    I(f's_lshl_b32 s{sF0}, s{sK}, 2')
    I(f's_lshl_b32 s{sF1}, 1, s{sF0}')
    I(f's_lshl_b32 s{sF2}, s{sF1}, 16')
    I('s_waitcnt lgkmcnt(0)')
    for q in (13, 14, 15): I(f's_mov_b32 s{SA+q}, 0')
    for g in range(4):
        if g < 2:
            I(f's_mov_b32 exec_lo, s{sF1 if g == 0 else sF2}'); I('s_mov_b32 exec_hi, 0') if g == 0 else None
        else:
            I('s_mov_b32 exec_lo, 0') if g == 2 else None
            I(f's_mov_b32 exec_hi, s{sF1 if g == 2 else sF2}')
        for dw, src in enumerate((2*g, 2*g+1, 8+2*g, 9+2*g)):
            I(f'v_mov_b32 v{SELA+dw}, s{SA+src}')
    I('s_mov_b64 exec, -1')
    I(f's_cmp_le_u32 s{sK}, 2'); I('s_cselect_b32 s62, s62, 0'); I(f's_cmp_le_u32 s{sK}, 1'); I('s_cselect_b32 s63, s63, 0')
    for q in range(4):
        I(f's_lshl_b32 s{SA+2*q}, s{60+q}, 16'); I(f's_and_b32 s{SA+2*q+1}, s{60+q}, 0xffff0000')
    I('s_waitcnt vmcnt(0)')
    ST(e, 'pre1')
    for _ in range(opts.get('dly_u2', 0)): I('s_nop 15')
    for x in f_common_a(): I(x)
    def frag_reads(u, nbuf=4, off=0):
        buf = UB + 8 * (u % nbuf)
        ids = []
        for R in range(2):
            pg = 2 * u + R
            for j in range(2):
                ids.append(I(f'ds_read_b64_tr_b16 {vr(buf+4*R+2*j,2)}, v{TAD+8*j+(pg&7)} offset:{off + (pg>>3)*256}'))
        return ids
    pend = {u: frag_reads(u) for u in range(3)}
    for u in range(8):
        if u == 4:
            I(f's_cmp_eq_u32 s{sK}, 3'); I('s_cbranch_scc1 L_u2done')
        if u == 6:
            I(f's_cmp_eq_u32 s{sK}, 2'); I('s_cbranch_scc1 L_u2done')
        if u + 3 < 8:
            pend[u + 3] = frag_reads(u + 3)
        e.wait_ds(pend[u][-1])
        buf = UB + 8 * (u % 4)
        for R in range(2):
            I(f'v_mfma_f32_16x16x32_bf16 {vr(UD+8*u+4*R,4)}, {vr(SELA,4)}, {vr(buf+4*R,4)}, 0')
    e.label('L_u2done')
    I(f's_mov_b32 s{sX0}, 0xffff')
    I(f's_mov_b32 s{sX0+1}, 0')
    I(f's_lshl_b32 s{sT0}, s{sK}, 4')
    for u in range(4):
        I(f'v_cvt_pk_bf16_f32 v{HF+u}, v{UD+16*u}, v{UD+16*u+8}')
    for u in range(8):
        I(f'v_cndmask_b32 v{UD+8*u+4}, 0, v{UD+8*u+4}, {sp(sMN10)}')
    I('s_mov_b32 exec_lo, 0x04000400'); I('s_mov_b32 exec_hi, 0x04000400')
    for u in range(8):
        I(f'v_mov_b32 v{UD+8*u+4}, s{SA+u}')
    I('s_mov_b64 exec, -1')
    for u in range(4):
        I(f'v_cvt_pk_bf16_f32 v{HF+4+u}, v{UD+16*u+4}, v{UD+16*u+12}')
    I(f's_lshl_b64 exec, {sp(sX0)}, s{sT0}')
    I(f'ds_write_b128 v{a}, {vr(HF,4)}')
    I(f'ds_write_b128 v{a}, {vr(HF+4,4)} offset:1024')
    I('s_mov_b64 exec, -1')
    if opts.get('dnnsetup_early', 1):
        for x in f_setup_dnn(): I(x)
    I('s_waitcnt lgkmcnt(0)')
    I('s_barrier')
    ST(e, 'b1')
    for _ in range(opts.get('dly_t', 0)): I('s_nop 15')
    I(f'ds_read_b128 {vr(HF,4)}, v{a} offset:0')
    I(f'ds_read_b128 {vr(HF+4,4)}, v{a} offset:1024')
    pend = {u: frag_reads(u, off=WS1 - WS2) for u in range(3)}
    prev = None
    for u in range(7):
        if u == 6:
            I(f's_cmp_ge_u32 s{sK}, 2'); I('s_cbranch_scc1 L_tlast')
        if u + 3 < 7:
            pend[u + 3] = frag_reads(u + 3, off=WS1 - WS2)
        e.wait_ds(pend[u][-1])
        g = UB + 8 * (u % 4)
        for dw in range(4):
            I(f'v_cndmask_b32 v{g+4+dw}, 0, v{g+4+dw}, {sp(sMN10)}')
        unit(e, g, g + 4, HF, HF + 4, DD[u & 1], None if prev is None else (DD[prev & 1], prev, FR_Q))
        prev = u
    unit_store(e, DD[6 & 1], 6, FR_Q)
    I('s_branch L_tend')
    e.label('L_tlast')
    unit_store(e, DD[5 & 1], 5, FR_Q)
    e.label('L_tend')
    ST(e, 'units')
    I('s_waitcnt lgkmcnt(0)')
    e.ds_q = []
    if not opts.get('dnnsetup_early', 1):
        for x in f_setup_dnn(): I(x)
    if opts.get('dnn0_early', 1): dma_step(e, 0, 'U0')
    I(f'v_mov_b32 v{vXCA}, {XCNT}')
    I(f'v_mov_b32 v{vONE}, 1')
    acc_init_dnn(e)
    I('s_waitcnt lgkmcnt(0)')
    ST(e, 'fold')
    I('s_barrier')
    ST(e, 'b2')
    e.ds_q = []
    if debug == 'fold':
        e.label('L_dbg')
        I('s_waitcnt vmcnt(0)'); I('s_barrier')
        dump_lds(e)
        return finish(e, opts)
    main_dnn(e, debug, opts)
    final(e, debug, opts)
    return finish(e, opts)

def dma_step(e, step, tag):
    I = e.I
    slot = step % 4
    I(f's_mov_b32 s{sT3}, {step*26624}')
    for u in range(7):
        if u == 6:
            I(f's_cmp_ge_u32 s{sK}, 2'); I(f's_cbranch_scc1 L_dma_{tag}')
        I(f's_add_u32 m0, s{sDma}, {slot*SLOT + u*1024}')
        I('s_nop 0')
        I(f'buffer_load_dwordx4 v{vDMA+u}, {srd(S_W1)}, s{sT3} offen lds')
    e.label(f'L_dma_{tag}')

def unit(e, X0, X1, Y0, Y1, D, prev):
    I = e.I
    mf = []
    def m(dd, A, B, first):
        mf.append(f'v_mfma_f32_16x16x32_bf16 {vr(dd,4)}, {vr(A,4)}, {vr(B,4)}, ' + ('0' if first else vr(dd, 4)))
    m(D, X0, Y0, True); m(D + 4, X1, Y0, True); m(D + 8, X1, Y1, True)
    m(D, Y0, X0, False); m(D + 4, Y1, X0, False); m(D + 8, Y1, X1, False)
    fill = []
    if prev is not None:
        PD, pu, setbase = prev
        for ti in range(3):
            fill.append(f'v_cvt_pk_bf16_f32 v{DC+2*ti}, v{PD+4*ti}, v{PD+4*ti+1}')
            fill.append(f'v_cvt_pk_bf16_f32 v{DC+2*ti+1}, v{PD+4*ti+2}, v{PD+4*ti+3}')
        for ti in range(3):
            fill.append(f'ds_write_b32 v{vWA+ti}, v{DC+2*ti} offset:{setbase + pu*16}')
            fill.append(f'ds_write_b32 v{vWB+ti}, v{DC+2*ti+1} offset:{setbase + pu*16}')
    for i in range(6):
        I(mf[i])
        for f in fill[2*i:2*i+2]:
            I(f)

def unit_store(e, D, u, setbase):
    I = e.I
    for ti in range(3):
        I(f'v_cvt_pk_bf16_f32 v{DC+2*ti}, v{D+4*ti}, v{D+4*ti+1}')
        I(f'v_cvt_pk_bf16_f32 v{DC+2*ti+1}, v{D+4*ti+2}, v{D+4*ti+3}')
    for ti in range(3):
        I(f'ds_write_b32 v{vWA+ti}, v{DC+2*ti} offset:{setbase + u*16}')
        I(f'ds_write_b32 v{vWB+ti}, v{DC+2*ti+1} offset:{setbase + u*16}')

def dump_lds(e):
    I = e.I
    I('v_mbcnt_lo_u32_b32 v1, -1, 0'); I('v_mbcnt_hi_u32_b32 v1, -1, v1')
    I(f's_lshl_b32 s{sT0}, s{sW}, 10')
    I('v_lshlrev_b32 v1, 4, v1')
    I(f'v_add_u32 v1, s{sT0}, v1')
    I(f's_mul_i32 s{sT1}, s2, {LDS_TOTAL}')
    I(f'v_add_u32 v2, s{sT1}, v1')
    I(f's_mov_b32 s{sT2}, 0')
    e.label('L_dump')
    I('ds_read_b128 v[4:7], v1')
    I('s_waitcnt lgkmcnt(0)')
    I('global_store_dwordx4 v2, v[4:7], s[22:23]')
    I('s_waitcnt vmcnt(0)')
    I('v_add_u32 v1, 8192, v1'); I('v_add_u32 v2, 8192, v2')
    I(f's_add_u32 s{sT2}, s{sT2}, 1')
    I(f's_cmp_lt_u32 s{sT2}, 20')
    e.raw('    s_cbranch_scc1 L_dump')

def main_cin(e, debug, opts):
    I = e.I
    steps = step_list()
    hs = opts.get('hsched', [3, 5, 5, 5, 5, 5, 5, 5, 5, 5, 5, 3, 0])
    assert sum(hs) == 56 and len(hs) == 13
    halves = [(s_, X_) for s_ in range(28) for X_ in range(2)]
    sc = []; si = 0
    for n in hs:
        sc.append(halves[si:si + n]); si += n
    XR = [XA, XBB]; ZZ = [ZA, ZBB]
    af_ids = {}
    def af_read(s):
        buf = AF[s & 1]
        I(f'ds_read_b128 {vr(buf,4)}, v{vAF} offset:{FR_P + s*FST}')
        af_ids[s] = I(f'ds_read_b128 {vr(buf+4,4)}, v{vAF} offset:{FR_Q + s*FST}')
    def z_half(X, s, pi):
        aa, bb = steps[s]
        mod = ' div:2' if aa == bb else ''
        t = ZT + 4 * pi
        x = XR[X]
        for qi in range(4):
            if mod: I(f'v_mul_f32_e64 v{t+qi}, v{x+4*aa+pi}, v{x+4*bb+qi}{mod}')
            else: I(f'v_mul_f32 v{t+qi}, v{x+4*aa+pi}, v{x+4*bb+qi}')
        z = ZZ[X][s & 1]
        I(f'v_cvt_pk_bf16_f32 v{z+2*pi}, v{t}, v{t+1}')
        I(f'v_cvt_pk_bf16_f32 v{z+2*pi+1}, v{t+2}, v{t+3}')
    def epilogue():
        t = TMP
        for X in range(2):
            P, Q = ACC[('P', X)], ACC[('Q', X)]
            t = TMP + 4 * X
            I(f'v_mul_f32 v{t}, v{P}, v{Q}')
            I(f'v_mul_f32 v{t+1}, v{P+12}, v{Q+12}')
            I(f'v_mul_f32 v{t+2}, v{P+1}, v{Q+1}')
            I(f'v_fmac_f32 v{t+1}, v{P+13}, v{Q+13}')
            for r in range(2, 12):
                I(f'v_fmac_f32 v{t + 2*(r&1)}, v{P+r}, v{Q+r}')
        I(f'v_cmp_gt_u32 vcc, 32, v{vL}')
        for X in range(2):
            t = TMP + 4 * X
            I(f'v_add_f32 v{t}, v{t}, v{t+2}')
        for X in range(2):
            t = TMP + 4 * X
            I(f'v_cndmask_b32 v{t+1}, 0, v{t+1}, vcc')
        for X in range(2):
            t = TMP + 4 * X
            I(f'v_add_f32 v{t}, v{t}, v{t+1}')
        t = TMP
        I(f'v_and_b32 v{t+2}, 1, v{vG}')
        I(f'v_lshlrev_b32 v{t+2}, 6, v{t+2}')
        I(f'v_lshrrev_b32 v{t+3}, 1, v{vG}')
        I(f'v_lshl_add_u32 v{t+2}, v{t+3}, 2, v{t+2}')
        I(f's_lshl_b32 s{sT0}, s{sK}, 8')
        I(f's_add_u32 s{sT0}, s{sT0}, {RED + 16}')
        I(f'v_add_u32 v{t+2}, s{sT0}, v{t+2}')
        for sh in (8, 4, 2, 1):
            for X in range(2):
                tt = TMP + 4 * X
                I(f'v_add_f32_dpp v{tt}, v{tt}, v{tt} row_ror:{sh} row_mask:0xf bank_mask:0xf')
        I(f's_mov_b32 exec_lo, 0x00010001'); I(f's_mov_b32 exec_hi, 0x00010001')
        I(f'ds_write_b32 v{t+2}, v{TMP}')
        I(f'ds_write_b32 v{t+2}, v{TMP+4} offset:128')
        I('s_mov_b64 exec, -1')
    for j in range(13):
        e.comment(f'---- CIN interval {j}')
        if j == 0:
            I(f'v_mov_b32 v{TMP}, {XCNT}'); I(f'v_mov_b32 v{TMP+1}, 1')
            I('s_waitcnt vmcnt(0)')
            I('s_nop 15')
            if opts.get('cp0', 2): I(f's_setprio {opts.get("cp0", 2)}')
            I('s_mov_b64 exec, 1')
            I(f'ds_add_u32 v{TMP}, v{TMP+1} offset:4')
            I('s_mov_b64 exec, -1')
            I('s_nop 15')
        if j == 1 and opts.get('cp0', 2): I(f's_setprio {opts.get("cp1", 0)}')
        ST(e, f'it{j}')
        if j == 0:
            xa = [I(f'ds_read_b64_tr_b16 {vr(XPA+2*q,2)}, v{vTRX} offset:{128*q}') for q in range(7)]
            xb = [I(f'ds_read_b64_tr_b16 {vr(XPB+2*q,2)}, v{vTRX} offset:{2*XS + 128*q}') for q in range(7)]
            I('s_waitcnt lgkmcnt(0)')
            I('s_mov_b64 exec, 1')
            I(f'ds_add_u32 v{TMP}, v{TMP+1}')
            I('s_mov_b64 exec, -1')
            for _ in range(opts.get('dly_c', 0)): I('s_nop 15')
            if opts.get('safe_x'): I('s_barrier')
            af_read(0); af_read(1)
            for q in range(7):
                for h in range(2):
                    I(f'v_lshlrev_b32 v{XA+4*q+2*h}, 16, v{XPA+2*q+h}')
                    I(f'v_and_b32 v{XA+4*q+2*h+1}, 0xffff0000, v{XPA+2*q+h}')
            z_half(0, 0, 0); z_half(0, 0, 1)
            for q in range(7):
                for h in range(2):
                    I(f'v_lshlrev_b32 v{XBB+4*q+2*h}, 16, v{XPB+2*q+h}')
                    I(f'v_and_b32 v{XBB+4*q+2*h+1}, 0xffff0000, v{XPB+2*q+h}')
            z_half(1, 0, 0); z_half(1, 0, 1)
        for (s, X) in ([] if opts.get('no_cin') else sc[j]):
            if X == 0: e.wait_ds(af_ids[s])
            buf = AF[s & 1]
            z = ZZ[X][s & 1]
            P, Q = ACC[('P', X)], ACC[('Q', X)]
            I(f'v_mfma_f32_32x32x16_bf16 {vr(P,16)}, {vr(buf,4)}, {vr(z,4)}, ' + ('0' if s == 0 else vr(P,16)))
            if s + 1 < 28: z_half(X, s + 1, 0)
            I(f'v_mfma_f32_32x32x16_bf16 {vr(Q,16)}, {vr(buf+4,4)}, {vr(z,4)}, ' + (vr(QI,16) if s == 0 else vr(Q,16)))
            if X == 1 and s + 2 < 28: af_read(s + 2)
            if s + 1 < 28: z_half(X, s + 1, 1)
        if (not sc[j]) and j > 0 and sc[j-1]:
            if opts.get('cpe', 2): I(f's_setprio {opts.get("cpe", 2)}')
            epilogue()
    if sc[12]:
        epilogue()
    I('s_waitcnt lgkmcnt(0)')
    ST(e, 'gelu')

def main_dnn(e, debug, opts):
    I = e.I
    e.last = {}
    I(f's_cmp_ge_u32 s{sK}, 2')
    I('s_cselect_b64 vcc, -1, 0')
    def dma_one(step, u, tag, between=None):
        if u == 6: I(f's_cbranch_vccnz L_d6_{tag}')
        I(f's_add_u32 m0, s{sDma}, {(step % 4)*SLOT + u*1024}')
        if between: between()
        else: I('s_nop 0')
        I(f'buffer_load_dwordx4 v{vDMA+u}, {srd(S_W1)}, s{sT3} offen lds')
        if u == 6: e.label(f'L_d6_{tag}')
    def mf(j, u):
        I(f'v_mfma_f32_16x16x32_bf16 {vr(DACC+4*u,4)}, {vr(XF+4*j,4)}, {vr(WF[j&1]+4*u,4)}, {vr(DACC+4*u,4)}')
    plan = {j: ([j + 3] if j + 3 <= 12 else []) for j in range(13)}
    order = [(st_, u) for st_ in range(3) for u in range(7)]
    tops = {}
    for j in range(13):
        tops[j] = list(order)
        order += [(st_, u) for st_ in plan[j] for u in range(7)]
    def later_count(j, cls7):
        seq = [x for x in tops[j] if cls7 or x[1] < 6]
        jj_ = min(j + 1, 12)
        last = max(i for i, x in enumerate(seq) if x[0] == jj_)
        return len(seq) - 1 - last
    if not opts.get('dnn0_early', 1): dma_step(e, 0, 'C0')
    dma_step(e, 1, 'C1')
    dma_step(e, 2, 'C2')
    e.label('L_xl_dnn')
    I(f'ds_read_b32 v{vXCT}, v{vXCA} offset:4')
    I('s_waitcnt lgkmcnt(0)')
    I(f'v_readfirstlane_b32 s{sT0}, v{vXCT}')
    I(f's_cmp_ge_u32 s{sT0}, 4')
    e.raw('    s_cbranch_scc0 L_xl_dnn')
    ST(e, 'it0')
    for _ in range(opts.get('dly_d', 0)): I('s_nop 15')
    for q in range(13):
        I(f'ds_read_b64 {vr(XF+4*q,2)}, v{vXF} offset:{64*q}')
        I(f'ds_read_b64 {vr(XF+4*q+2,2)}, v{vXF} offset:{64*q+16}')
    I('s_waitcnt lgkmcnt(0)')
    I('s_mov_b64 exec, 1')
    I(f'ds_add_u32 v{vXCA}, v{vONE}')
    I('s_mov_b64 exec, -1')
    for j in range(13):
        e.comment(f'---- DNN interval {j}')
        n7, n6 = later_count(j, True), later_count(j, False)
        if opts.get('safe_dv'): n7 = n6 = 0
        if n7 != n6:
            I(f's_cbranch_vccnz L_vw6_{j}')
            I(f's_waitcnt vmcnt({n7})')
            I(f's_branch L_vwd_{j}')
            e.label(f'L_vw6_{j}')
            I(f's_waitcnt vmcnt({n6})')
            e.label(f'L_vwd_{j}')
        else:
            I(f's_waitcnt vmcnt({n7})')
        if j > 0: ST(e, f'it{j}')
        slot = j % 4
        tb = vT + 4 * (slot >> 1)
        for u in range(7):
            if u == 6: I(f's_cbranch_vccnz L_r6_{j}')
            for jj in range(2):
                I(f'ds_read_b64_tr_b16 {vr(WF[j&1]+4*u+2*jj,2)}, v{tb+2*jj+(u&1)} offset:{(slot&1)*SLOT + (u>>1)*64}')
        e.label(f'L_r6_{j}')
        steps_ = [] if opts.get('no_dma') else plan[j]
        first = steps_[0] if steps_ else None
        if j == 0:
            e.label('L_xspin')
            I(f'ds_read_b32 v{vXCT}, v{vXCA}')
            I('s_waitcnt lgkmcnt(0)')
            I(f'v_readfirstlane_b32 s{sT0}, v{vXCT}')
            I(f's_cmp_ge_u32 s{sT0}, 8')
            e.raw('    s_cbranch_scc0 L_xspin')
            I(f's_mov_b32 s{sT3}, {first*26624}')
            for u in range(7): dma_one(first, u, '0')
        else:
            I('s_waitcnt lgkmcnt(12)')
            if first is not None: I(f's_mov_b32 s{sT3}, {first*26624}')
            for u in range(7):
                if u == 6:
                    I(f's_cbranch_vccnz L_m6_{j}')
                    if first is not None:
                        I(f's_add_u32 m0, s{sDma}, {(first % 4)*SLOT + u*1024}'); mf(j - 1, u)
                        I(f'buffer_load_dwordx4 v{vDMA+u}, {srd(S_W1)}, s{sT3} offen lds')
                    else: mf(j - 1, u)
                    e.label(f'L_m6_{j}')
                elif first is not None:
                    dma_one(first, u, f'{j}', between=lambda: mf(j - 1, u))
                else:
                    mf(j - 1, u)
    I('s_waitcnt lgkmcnt(0)')
    for u in range(7):
        if u == 6: I('s_cbranch_vccnz L_m6_end')
        mf(12, u)
    e.label('L_m6_end')
    ST(e, 'gelu')
    G = TMP
    T = TMP + 4
    C1, C0, ONE = CST, CST + 2, CST + 4
    def gelu(pairs, first):
        def each(fn):
            for k_, (x, u, h) in enumerate(pairs):
                fn(x, T + 2 * k_, u, h, k_)
        each(lambda x, t, u, h, k_: I(f'v_pk_mul_f32 {vr(t,2)}, {vr(x,2)}, {vr(x,2)}'))
        each(lambda x, t, u, h, k_: I(f'v_pk_fma_f32 {vr(t,2)}, {vr(t,2)}, {vr(C1,2)}, {vr(C0,2)}'))
        each(lambda x, t, u, h, k_: I(f'v_pk_mul_f32 {vr(t,2)}, {vr(t,2)}, {vr(x,2)}'))
        each(lambda x, t, u, h, k_: (I(f'v_exp_f32 v{t}, v{t}'), I(f'v_exp_f32 v{t+1}, v{t+1}')))
        each(lambda x, t, u, h, k_: I(f'v_pk_mul_f32 {vr(x,2)}, {vr(x,2)}, {vr(W2V + (u & ~1), 2)} op_sel:[0,{u&1}] op_sel_hi:[1,{u&1}]'))
        each(lambda x, t, u, h, k_: I(f'v_pk_add_f32 {vr(t,2)}, {vr(t,2)}, {vr(ONE,2)}'))
        each(lambda x, t, u, h, k_: (I(f'v_rcp_f32 v{t}, v{t}'), I(f'v_rcp_f32 v{t+1}, v{t+1}')))
        def last(x, t, u, h, k_):
            if first and k_ < 2: I(f'v_pk_mul_f32 {vr(G+2*h,2)}, {vr(t,2)}, {vr(x,2)}')
            else: I(f'v_pk_fma_f32 {vr(G+2*h,2)}, {vr(t,2)}, {vr(x,2)}, {vr(G+2*h,2)}')
        each(last)
    allp = [(DACC + 4*u + 2*h, u, h) for u in range(6) for h in range(2)]
    gelu(allp[0:4], True); gelu(allp[4:8], False); gelu(allp[8:12], False)
    I(f's_cmp_ge_u32 s{sK}, 2'); I(f's_cbranch_scc1 L_g6')
    gelu([(DACC + 24 + 2*h, 6, h) for h in range(2)], False)
    e.label('L_g6')
    I(f'v_lshlrev_b32 v{T}, 8, v{vG}')
    I(f's_lshl_b32 s{sT0}, s{sK}, 2')
    I(f's_add_u32 s{sT0}, s{sT0}, {RED}')
    I(f'v_add_u32 v{T}, s{sT0}, v{T}')
    for sh in (8, 4, 2, 1):
        for r in range(4):
            I(f'v_add_f32_dpp v{G+r}, v{G+r}, v{G+r} row_ror:{sh} row_mask:0xf bank_mask:0xf')
    I(f's_mov_b32 exec_lo, 0x00010001'); I(f's_mov_b32 exec_hi, 0x00010001')
    for r in range(4):
        I(f'ds_write_b32 v{T}, v{G+r} offset:{64*r}')
    I('s_mov_b64 exec, -1')
    I('s_waitcnt lgkmcnt(0)')

def final(e, debug, opts):
    I = e.I
    T = TMP + 4
    e.label('L_join')
    e.last = {}
    if opts.get('pad_line'):
        for q in range(opts['pad_line']): I(f'v_mov_b32 v{60 + (q % 8)}, 0x12345678')
    if opts.get('pad_loop'):
        I(f's_mov_b32 s{sT0}, 0')
        e.label('L_pl')
        for q in range(32): I(f'v_mov_b32 v{60 + (q % 8)}, 0x12345678')
        I(f's_add_u32 s{sT0}, s{sT0}, 1')
        I(f's_cmp_lt_u32 s{sT0}, {opts["pad_loop"]}')
        e.raw('    s_cbranch_scc1 L_pl')
    if opts.get('delay_end'):
        I(f's_mov_b32 s{sT0}, 0')
        e.label('L_dly')
        for _ in range(8): I('s_nop 15')
        I(f's_add_u32 s{sT0}, s{sT0}, 1')
        I(f's_cmp_lt_u32 s{sT0}, {opts["delay_end"]}')
        e.raw('    s_cbranch_scc1 L_dly')
    I('s_barrier')
    if debug == 'red':
        dump_lds(e); return
    if debug == 'stamp':
        ST(e, 'fin')
        ST.flush(e)
        open(sys.argv[1] + '.names', 'w').write(' '.join(ST.names))
        return
    if debug == 'hstamp':
        ST(e, 'fin')
        sel = opts.get('hsel', ['b0', 'pre1', 'b1', 'units', 'b2', 'it0', 'it12', 'fin'])
        I(f's_cmp_eq_u32 s2, {opts.get("hwg", 128)}'); I('s_cbranch_scc0 L_nohs')
        I(f's_and_b32 s{sT0}, s{sW}, 3'); I(f's_cmp_eq_u32 s{sT0}, 0'); I('s_cbranch_scc0 L_nohs')
        I('s_waitcnt lgkmcnt(0)')
        r0 = STAMP_SLOTS[0]
        for i, nm in enumerate(sel):
            r = STAMP_SLOTS[ST.names.index(nm)]
            I(f's_sub_u32 s{sT1}, s{r}, s{r0}')
            I(f'v_writelane_b32 v200, s{sT1}, {i}')
        I(f's_lshl_b32 s{sT0}, s{sW}, 3')
        I(f'v_lshlrev_b32 v201, 2, v{vL}')
        I(f'v_add_u32 v201, s{sT0}, v201')
        I('s_mov_b32 exec_lo, 0xff'); I('s_mov_b32 exec_hi, 0')
        I('global_store_dword v201, v200, s[22:23]')
        I('s_mov_b64 exec, -1')
        I('s_waitcnt vmcnt(0)')
        e.label('L_nohs')
    I(f's_cmp_lg_u32 s{sW}, 0'); I('s_cbranch_scc1 L_end')
    I('s_mov_b32 exec_lo, 0xffff'); I('s_mov_b32 exec_hi, 0')
    I(f'v_lshlrev_b32 v{T}, 6, v{vL}')
    I(f'v_add_u32 v{T}, {RED}, v{T}')
    I(f'ds_read_b128 {vr(8,4)}, v{T}')
    I(f'ds_read_b64 {vr(12,2)}, v{T} offset:16')
    if debug == 'redout':
        I('s_waitcnt lgkmcnt(0)')
        I(f's_lshl_b32 s{sT0}, s2, 9')
        I(f'v_lshlrev_b32 v20, 5, v{vL}')
        I(f'v_add_u32 v20, s{sT0}, v20')
        I('global_store_dwordx4 v20, v[8:11], s[22:23]')
        I('global_store_dwordx2 v20, v[12:13], s[22:23] offset:16')
        I('s_waitcnt vmcnt(0)')
    I(f's_mov_b32 s{S_OUT}, s20'); I(f's_mov_b32 s{S_OUT+1}, s21')
    I(f's_mov_b32 s{S_OUT+2}, 8192'); I(f's_mov_b32 s{S_OUT+3}, 0x20000')
    I(f's_lshl_b32 s{sBO}, s{sBO}, 16')
    I(f's_lshl_b32 s{sT0}, s2, 5')
    I(f'v_lshlrev_b32 v{T+1}, 1, v{vL}')
    I(f'v_add_u32 v{T+1}, s{sT0}, v{T+1}')
    I('s_waitcnt lgkmcnt(0)')
    I('v_add_f32 v8, v8, v9'); I('v_add_f32 v10, v10, v11'); I('v_add_f32 v12, v12, v13')
    I('v_add_f32 v8, v8, v10')
    I(f'v_add_f32 v12, s{sBO}, v12')
    I('v_add_f32 v8, v8, v12')
    I('v_cvt_pk_bf16_f32 v8, v8, v8')
    I(f'buffer_store_short v8, v{T+1}, {srd(S_OUT)}, 0 offen')

def finish(e, opts):
    e.label('L_end')
    body = e.text()
    hdr = f"""; xDeepFM (CIN + DNN) fused kernel, generated by my own generator script.
; One workgroup = 16 batch rows, 8 waves.  CIN layers are folded at run time into two quadratic forms.
; @launch grid=(256,1,1) block=(512,1,1) lds={LDS_TOTAL}
.amdgcn_target "amdgcn-amd-amdhsa--gfx950"
.text
.globl {KN}
.p2align 8
.type {KN},@function
{KN}:
"""
    ftr = f"""    s_endpgm
.section .rodata,"a"
.p2align 6
.amdhsa_kernel {KN}
  .amdhsa_next_free_vgpr 256
  .amdhsa_next_free_sgpr 102
  .amdhsa_accum_offset 256
  .amdhsa_group_segment_fixed_size 0
  .amdhsa_kernarg_size 88
  .amdhsa_user_sgpr_count 2
  .amdhsa_user_sgpr_kernarg_segment_ptr 1
  .amdhsa_system_sgpr_workgroup_id_x 1
  .amdhsa_ieee_mode 0
.end_amdhsa_kernel
"""
    return hdr + body + ftr

if __name__ == '__main__':
    dbg = sys.argv[2] if len(sys.argv) > 2 and sys.argv[2] != 'none' else None
    opts = eval(sys.argv[3]) if len(sys.argv) > 3 else {}
    out = build(dbg, opts)
    open(sys.argv[1], 'w').write(out)
    print('wrote', sys.argv[1], len(out), 'bytes')
```

```python
import sys, os
from emit import Emit

KN = "standalone__deep_cross_xdeepfm__recsys_kernel"

FST = 848; FR_P = 0; FR_Q = 28 * FST
RB = 47616; SLOT = 26624; WROW = 832
WS2 = RB + SLOT - 4 * 13312
WS1 = RB + SLOT
STG = 13312
XB = RB + 3 * SLOT; XS = 912
HB = RB + 4 * SLOT
SM = HB + 2048; SM_A0 = SM; SM_B1 = SM + 64; SM_W2 = SM + 896
RED = SM + 1728
XCNT = RED + 1024
XLND = XCNT + 4
LDS_TOTAL = 163840
OOB_LDS = 0x40000
CIN_L = 35152
assert WS1 % 512 == 0 and 28 * FST * 2 <= RB and RED + 1024 <= LDS_TOTAL and WS2 % 512 == 0 and WS2 >= 0

S_IDX, S_TAB, S_CIN, S_W1 = 24, 28, 32, 36
S_A0, S_B1, S_W2, S_OUT = 40, 52, 56, 60
sA2 = 96
sW, sK = 64, 65
sBO = 66
sI0 = 67
sT0, sT1, sT2, sT3 = 68, 69, 70, 71
sMN10 = 78
sE52 = 80
sStage, sSrc = 82, 83
sC0, sC1, sC2 = 84, 85, 86
sX0 = 88
sF0, sF1, sF2 = 84, 85, 86
sDma = 92
sSL = 93
SA = 44
def srd(n): return f"s[{n}:{n+3}]"
def sp(n): return f"s[{n}:{n+1}]"
def vr(a, n=1): return f"v{a}" if n == 1 else f"v[{a}:{a+n-1}]"

vL = 0
TMP = 122
fa, fb, fc, fd, fe = 132, 133, 134, 135, 136
vN, vG, vR4, vC4 = 142, 143, 144, 145
vWA = 146
vWB = 149
DD = [152, 164]
DC = 176
vSO = 182
vDUM = 186
UD = 2; SELA = 212; HF = 204
TAD = 188
UB = 68
FF = 2; EF = 60; vIDX = 68; vFO = 72
XA = 2; XBB = 30
ZA = [58, 62]; ZBB = [66, 70]
ZT = 74
AF = [82, 90]
vAF = 100; vTRX = 101
XPA = 104; XPB = 152
QI = 166
XPR = [[124 + i for i in range(14)], [138, 139, 140, 141, 146, 147, 148, 149, 150, 151, 182, 183, 184, 185]]
ACC = {('P', 0): 192, ('Q', 0): 208, ('P', 1): 224, ('Q', 1): 240}
vDMA = 100
vT = 108
vXF = 116
WF = [2, 30]
XF = 152
DACC = 208
W2V = 236
CST = 244
vXCA = 118; vONE = 119; vXCT = 120

STAMP_SLOTS = [94, 96, 98, 100, 90, 40, 42] + list(range(44, 60, 2)) + [24, 26, 28, 30, 4, 6, 8, 10, 14, 16, 12, 18]
class Stamps:
    def __init__(self, on): self.on = on; self.names = []
    def __call__(self, e, name):
        if not self.on: return
        if name in self.names: i = self.names.index(name)
        else:
            i = len(self.names); self.names.append(name)
        r = STAMP_SLOTS[i]
        e.I(f's_memtime s[{r}:{r+1}]')
    def flush(self, e):
        if not self.on: return
        I = e.I
        I('s_mov_b64 exec, -1')
        I('s_waitcnt vmcnt(0) lgkmcnt(0)')
        for i in range(len(self.names)):
            I(f'v_writelane_b32 v200, s{STAMP_SLOTS[i]}, {i}')
        I('s_memrealtime s[68:69]')
        I('s_waitcnt lgkmcnt(0)')
        I('v_writelane_b32 v200, s68, 31')
        I('v_mbcnt_lo_u32_b32 v201, -1, 0'); I('v_mbcnt_hi_u32_b32 v201, -1, v201')
        I('v_lshlrev_b32 v201, 2, v201')
        I(f's_lshl_b32 s70, s2, 3'); I(f's_add_u32 s70, s70, s{sW}'); I('s_lshl_b32 s70, s70, 8')
        I('v_add_u32 v201, s70, v201')
        I('global_store_dword v201, v200, s[22:23]')
        I('s_waitcnt vmcnt(0)')
ST = Stamps(False)

def step_list():
    return [(a, b) for b in range(7) for a in range(b + 1)]

def mk_srd(e, n, lo, size, add=0):
    I = e.I
    if add:
        I(f's_add_u32 s{n}, s{lo}, {add}')
        I(f's_addc_u32 s{n+1}, s{lo+1}, 0')
    else:
        I(f's_mov_b32 s{n}, s{lo}')
        I(f's_mov_b32 s{n+1}, s{lo+1}')
    I(f's_mov_b32 s{n+2}, {size}')
    I(f's_mov_b32 s{n+3}, 0x20000')


class FQ:
    def __init__(self): self.q = []
    def add(self, *items): self.q.extend(items)
    def drain(self, e, n=10**9):
        k = 0
        while self.q and k < n:
            it = self.q.pop(0)
            if isinstance(it, list):
                for x in it: e.I(x)
                k += len(it)
            else:
                e.I(it); k += 1

def f_srd(n, lo, size):
    return [f's_mov_b32 s{n}, s{lo}', f's_mov_b32 s{n+1}, s{lo+1}', f's_mov_b32 s{n+2}, {size}', f's_mov_b32 s{n+3}, 0x20000']

def f_common_a():
    L = [f's_movk_i32 s{sF1}, 416', f'v_bfe_u32 v{fa}, v{vN}, 1, 1', f'v_mul_u32_u24 v{fb}, s{sF1}, v{fa}', f'v_and_b32 v{fc}, 1, v{vN}',
         f'v_lshl_add_u32 v{fb}, v{fc}, 3, v{fb}', f's_lshl_b32 s{sF0}, s{sI0}, 4', f'v_lshrrev_b32 v{fc}, 2, v{vN}',
         f'v_add_u32 v{fa}, 1, v{vG}', f'v_mul_u32_u24 v{fa}, v{fa}, v{vG}', f'v_cmp_le_u32 s[72:73], v{fc}, v{vG}',
         f'v_lshrrev_b32 v{fa}, 1, v{fa}', f'v_cmp_ge_u32 s[74:75], 2, v{vG}', f'v_add_u32 v{fa}, v{fa}, v{fc}',
         f's_movk_i32 s{sF2}, {FST}', f'v_add_u32 v{fb}, s{sF0}, v{fb}', f'v_lshlrev_b32 v{fe}, 3, v{vL}',
         f'v_mad_u32_u24 v{fd}, v{fa}, s{sF2}, v{fb}', f's_and_b64 s[76:77], s[72:73], s[74:75]', f'v_add_u32 v{fe}, {OOB_LDS}, v{fe}',
         f's_movk_i32 s{sF1}, {4*FST}', f'v_cndmask_b32 v{vWA}, v{fe}, v{fd}, s[72:73]',
         f'v_mad_u32_u24 v{fd}, v{vG}, s{sF1}, v{fd}', f'v_add_u32 v{fd}, {10*FST}, v{fd}',
         f'v_cndmask_b32 v{vWA+1}, v{fe}, v{fd}, s[74:75]', f'v_add_u32 v{fd}, {4*FST}, v{fd}',
         f'v_cndmask_b32 v{vWA+2}, v{fe}, v{fd}, s[76:77]']
    return L

def f_setup_cin():
    L = [f'v_and_b32 v{fa}, 31, v{vL}', f'v_lshlrev_b32 v{fa}, 4, v{fa}', f'v_lshrrev_b32 v{fb}, 5, v{vL}',
         f's_movk_i32 s{sF1}, 416', f'v_mad_u32_u24 v{vAF}, v{fb}, s{sF1}, v{fa}',
         f'v_lshrrev_b32 v{fb}, 1, v{vG}', f'v_and_b32 v{fc}, 1, v{vG}', f's_movk_i32 s{sF1}, {XS}',
         f'v_lshlrev_b32 v{fa}, 5, v{vR4}',
         f'v_lshl_add_u32 v{fa}, v{vC4}, 3, v{fa}', f'v_mad_u32_u24 v{fa}, v{fc}, s{sF1}, v{fa}',
         f's_mul_i32 s{sF0}, s{sK}, {4*XS}', f's_add_u32 s{sF0}, s{sF0}, {XB}', f'v_add_u32 v{vTRX}, s{sF0}, v{fa}']
    return L

def f_setup_dnn():
    sCPR, sMAG, sSWZ, sRS = 72, 73, 74, 75
    L = [f's_cmp_lt_u32 s{sK}, 2', f's_cselect_b32 s{sCPR}, 14, 12', f's_mov_b32 s{sF1}, 87382', f's_cselect_b32 s{sMAG}, 74899, s{sF1}',
         f's_cselect_b32 s{sSWZ}, 0, 2', f's_lshl_b32 s{sRS}, s{sCPR}, 4', f's_lshl_b32 s{sF0}, s{sI0}, 5', f's_movk_i32 s{sF2}, 832']
    L += [f's_sub_u32 s{sF2}, s{sF2}, s{sRS}']
    for u in range(7):
        L += [f'v_add_u32 v{fa}, {64*u}, v{vL}', f'v_mul_u32_u24 v{fc}, s{sMAG}, v{fa}', f'v_lshrrev_b32 v{fc}, 20, v{fc}',
              f'v_lshrrev_b32 v{fd}, 1, v{fc}', f'v_and_b32 v{fd}, s{sSWZ}, v{fd}', f'v_xor_b32 v{fa}, v{fa}, v{fd}',
              f'v_lshl_add_u32 v{fa}, v{fa}, 4, s{sF0}', f'v_mad_u32_u24 v{vDMA+u}, v{fc}, s{sF2}, v{fa}']
    L += [f's_lshl_b32 s{sDma}, s{sI0}, 10', f's_add_u32 s{sDma}, s{sDma}, {RB}']
    L += [f'v_lshrrev_b32 v{fb}, 1, v{vG}', f'v_and_b32 v{fc}, 1, v{vG}', f'v_lshlrev_b32 v{fa}, 4, v{fb}',
          f'v_lshl_add_u32 v{fa}, v{fc}, 2, v{fa}', f'v_add_u32 v{fa}, v{fa}, v{vR4}', f'v_mul_u32_u24 v{fa}, s{sRS}, v{fa}',
          f'v_lshl_add_u32 v{fa}, v{vC4}, 3, v{fa}', f'v_add_u32 v{fa}, s{sDma}, v{fa}',
          f's_lshl_b32 s{sF1}, s{sSWZ}, 4', f'v_lshlrev_b32 v{fd}, 5, v{fc}', f'v_and_b32 v{fd}, s{sF1}, v{fd}',
          f'v_add_u32 v{vT}, v{fa}, v{fd}', f'v_sub_u32 v{vT+1}, v{fa}, v{fd}', f'v_add_u32 v{vT+1}, 32, v{vT+1}',
          f's_lshl_b32 s{sF1}, s{sRS}, 3',
          f'v_add_u32 v{vT+2}, s{sF1}, v{vT}', f'v_add_u32 v{vT+3}, s{sF1}, v{vT+1}']
    L += [f'v_add_u32 v{vT+4+q}, {2*SLOT}, v{vT+q}' for q in range(4)]
    L += [f's_movk_i32 s{sF1}, {XS}', f'v_lshlrev_b32 v{fa}, 5, v{fb}', f'v_lshl_add_u32 v{fa}, v{fc}, 3, v{fa}',
          f'v_mad_u32_u24 v{fa}, v{vN}, s{sF1}, v{fa}', f'v_add_u32 v{vXF}, {XB}, v{fa}']
    return L

def acc_init_cin(e):
    I = e.I
    I(f'v_lshrrev_b32 v{fa}, 5, v{vL}')
    I(f'v_lshlrev_b32 v{fa}, 3, v{fa}')
    I(f'v_add_u32 v{fa}, {SM_A0}, v{fa}')
    ids = [I(f'ds_read_b64 {vr(XPA+2*g,2)}, v{fa} offset:{16*g}') for g in range(4)]
    e.wait_ds(ids[-1])
    for g in range(4):
        for q in range(2):
            I(f'v_lshlrev_b32 v{QI+4*g+2*q}, 16, v{XPA+2*g+q}')
            I(f'v_and_b32 v{QI+4*g+2*q+1}, 0xffff0000, v{XPA+2*g+q}')

def acc_init_dnn(e):
    I = e.I
    I(f's_lshl_b32 s{sF0}, s{sI0}, 5')
    I(f's_add_u32 s{sF0}, s{sF0}, {SM_B1}')
    I(f'v_lshlrev_b32 v{fb}, 1, v{vN}')
    I(f'v_add_u32 v{fb}, s{sF0}, v{fb}')
    B = 60
    for u in range(7):
        I(f'v_mov_b32 v{B+u}, 0')
        I(f'v_mov_b32 v{W2V+u}, 0')
    ids = []
    for u in range(7):
        ids.append(I(f'ds_read_u16_d16_hi v{B+u}, v{fb} offset:{32*u}'))
        ids.append(I(f'ds_read_u16_d16_hi v{W2V+u}, v{fb} offset:{832 + 32*u}'))
    for q, val in enumerate(('0xbdd2d3e8', '0xbdd2d3e8', '0xc0135761', '0xc0135761', '1.0', '1.0')):
        I(f'v_mov_b32 v{CST+q}, {val}')
    e.wait_ds(ids[-1])
    for u in range(7):
        for r in range(4):
            I(f'v_mov_b32 v{DACC+4*u+r}, v{B+u}')

def build(debug=None, opts=None):
    global ST
    opts = opts or {}
    e = Emit(); I = e.I
    a, b, c, d = TMP, TMP + 1, TMP + 2, TMP + 3
    touch = opts.get('touch', True)
    gapL = opts.get('gapL', 10)
    sRT = sC1
    I('s_cmp_ge_u32 s2, 256')
    I('s_cbranch_scc1 L_end')
    I('s_load_dwordx16 s[4:19], s[0:1], 0')
    I(f'v_lshrrev_b32 v1, 6, v0')
    I(f'v_and_b32 v{vL}, 63, v0')
    I(f'v_readfirstlane_b32 s{sW}, v1')
    I(f's_bfe_u32 s{sSL}, s2, 0x50003')
    ST = Stamps(debug in ('stamp', 'hstamp'))
    ST(e, 'start')
    if touch:
        I(f's_getpc_b64 {sp(sX0)}')
        I(f's_lshl_b32 s{sT0}, s{sSL}, 3')
        I(f's_add_u32 s{sT0}, s{sT0}, s{sW}')
        I(f's_lshl_b32 s{sT1}, s{sT0}, 7')
        I(f's_min_u32 s{sT1}, s{sT1}, L_end-{KN}')
        I(f's_and_b32 s{sX0}, s{sX0}, 0xffffff00')
        I(f'v_mov_b32 v{a}, s{sT1}')
        I(f'global_load_dword v{vDUM}, v{a}, {sp(sX0)}')
        I(f's_mul_i32 s{sT1}, s{sT0}, 11')
        I(f's_lshl_b32 s{sT2}, s{sT0}, 2')
        I(f'v_add_u32 v{b}, s{sT1}, v{vL}')
        I(f'v_add_u32 v{c}, s{sT2}, v{vL}')
        I(f'v_lshlrev_b32 v{b}, 7, v{b}')
        I(f'v_lshlrev_b32 v{c}, 7, v{c}')
    I(f's_and_b32 s{sK}, s{sW}, 3')
    I(f's_lshl_b32 s{sT0}, s2, 4')
    I(f's_lshl_b32 s{sT1}, s{sK}, 2')
    I(f's_add_u32 s{sT0}, s{sT0}, s{sT1}')
    I(f's_mul_i32 s{sT0}, s{sT0}, 104')
    I(f'v_lshrrev_b32 v{d}, 1, v{vL}')
    I(f'v_lshlrev_b32 v{d}, 2, v{d}')
    I(f'v_add_u32 v{d}, s{sT0}, v{d}')
    I(f's_cmp_ge_u32 s{sW}, 4')
    I('s_waitcnt lgkmcnt(0)')
    if opts.get('fine'):
        ST(e, 'ka'); I(f's_cmp_ge_u32 s{sW}, 4')
    I('s_cbranch_scc0 L_eN')
    mk_srd(e, S_IDX, 4, 4096 * 104)
    for bb in range(4):
        I(f'buffer_load_dword v{vIDX+bb}, v{d}, {srd(S_IDX)}, 0 offen offset:{bb*104}')
    e.label('L_eN')
    I(f's_mov_b32 s{S_CIN}, s8'); I(f's_mov_b32 s{S_CIN+1}, s9')
    I(f's_mov_b32 s{S_CIN+2}, {3*CIN_L}'); I(f's_mov_b32 s{S_CIN+3}, 0x20000')
    mk_srd(e, S_W1, 12, 346112)
    if touch:
        I('s_mov_b32 exec_lo, 0xf'); I('s_mov_b32 exec_hi, 0')
        I(f'buffer_load_dword v{vDUM}, v{c}, {srd(S_CIN)}, 0 offen')
        I('s_mov_b32 exec_lo, 0x7ff')
        I(f'buffer_load_dword v{vDUM}, v{b}, {srd(S_W1)}, 0 offen')
        I('s_mov_b64 exec, -1')
    if opts.get('fine'): ST(e, 'tch')
    I(f'v_lshrrev_b32 v{a}, 5, v{vL}')
    I(f'v_and_b32 v{b}, 1, v{vL}')
    I(f'v_lshlrev_b32 v{b}, 4, v{b}')
    I(f's_movk_i32 s{sC0}, 1352')
    I(f'v_bfe_u32 v{c}, v{vL}, 1, 4')
    I(f'v_mad_u32_u24 v{b}, v{a}, s{sC0}, v{b}')
    I(f'v_xor_b32 v{c}, v{c}, v{a}')
    I(f's_mul_i32 s{sI0}, s{sK}, 7')
    I(f's_cmp_eq_u32 s{sK}, 3')
    I(f's_cselect_b32 s{sT0}, 1, 0')
    I(f's_sub_u32 s{sI0}, s{sI0}, s{sT0}')
    I(f'v_and_b32 v{a}, 1, v{c}')
    I(f'v_lshl_add_u32 v{b}, v{a}, 5, v{b}')
    I(f's_mul_i32 s{sStage}, s{sK}, {STG}')
    I(f's_mul_i32 s{sT0}, s{sK}, 208')
    I(f's_add_u32 s{sT0}, s{sT0}, {2*CIN_L}')
    I(f's_mul_i32 s{sT1}, s{sI0}, 52')
    I(f's_add_u32 s{sT1}, s{sT1}, {CIN_L}')
    I(f's_movk_i32 s{sT2}, 832')
    I(f's_cmp_ge_u32 s{sW}, 4')
    I(f's_cselect_b32 s{sSrc}, s{sT1}, s{sT0}')
    I(f's_cselect_b32 s{sRT}, 208, s{sT2}')
    I(f's_movk_i32 s{sT2}, {WS2}')
    I(f's_cselect_b32 s{sT0}, {WS1}, s{sT2}')
    I(f's_add_u32 s{sStage}, s{sStage}, s{sT0}')
    I(f'v_lshrrev_b32 v{a}, 3, v{c}')
    I(f'v_mad_u32_u24 v{b}, v{a}, s{sRT}, v{b}')
    I(f'v_bfe_u32 v{c}, v{c}, 1, 2')
    I(f's_mov_b32 m0, s{sStage}')
    I(f'v_mad_u32_u24 v{vSO}, v{c}, 52, v{b}')
    I(f's_movk_i32 s{sT3}, 2704')
    I(f's_movk_i32 s{sT2}, 1024')
    for tm in range(1, 4):
        I(f'v_xor_b32 v{a}, {tm}, v{c}')
        I(f'v_mad_u32_u24 v{vSO+tm}, v{a}, 52, v{b}')
    if opts.get('fine'): ST(e, 'dma0')
    for t in range(13):
        I(f'buffer_load_dwordx4 v{vSO + (t & 3)}, {srd(S_CIN)}, s{sSrc} offen lds')
        if t < 12:
            I(f's_add_u32 m0, m0, s{sT2}')
            I(f's_add_u32 s{sSrc}, s{sSrc}, s{sT3}')
    ST(e, 'b0')
    I(f's_load_dwordx2 s[20:21], s[0:1], 64')
    if debug == 'hstamp':
        I('s_load_dwordx2 s[22:23], s[0:1], 72')
    elif debug:
        I('s_load_dwordx2 s[22:23], s[0:1], 80')
    I(f's_load_dword s{sBO}, s[18:19], 0')
    I(f'v_and_b32 v{vN}, 15, v{vL}')
    I(f'v_lshrrev_b32 v{vG}, 4, v{vL}')
    I(f'v_bfe_u32 v{vR4}, v{vL}, 2, 2')
    I(f'v_and_b32 v{vC4}, 3, v{vL}')
    I(f's_cmp_lt_u32 s{sW}, 4')
    I('s_cbranch_scc1 L_Upath')

    ms = ['s[72:73]', 's[74:75]', 's[76:77]', 'vcc']
    I(f's_mov_b32 s{sE52}, -1')
    I(f's_mov_b32 s{sE52+1}, 0x000fffff')
    I(f'v_lshlrev_b32 v{b}, 4, v{vG}')
    I(f'v_mad_u32_u24 v{vFO}, v{vN}, 52, v{b}')
    I(f'v_cmp_gt_u32 vcc, 10, v{vN}')
    I(f'v_add_u32 v{vFO+1}, 832, v{vFO}')
    I(f'v_mov_b32 v{c}, 0x7ff00000')
    I(f'v_cndmask_b32 v{vFO+1}, v{c}, v{vFO+1}, vcc')
    I(f's_mul_i32 s{sT0}, s{sI0}, 1352')
    F = FQ()
    g0 = f_srd(S_A0, 10, 52) + f_srd(S_B1, 14, 832) + f_srd(S_W2, 16, 832) + [f'v_lshlrev_b32 v{fe}, 4, v{vL}']
    F.add(f'v_lshrrev_b32 v{fa}, 4, v{vL}', f'v_mul_u32_u24 v{fa}, {XS}, v{fa}', f'v_lshl_add_u32 v{fa}, v{vN}, 2, v{fa}',
          f's_mul_i32 s{sF0}, s{sK}, {4*XS}', f's_add_u32 s{sF0}, s{sF0}, {XB + 832}', f'v_add_u32 v{fa}, s{sF0}, v{fa}',
          f'v_cmp_gt_u32 vcc, 8, v{vN}', f'v_mov_b32 v{fb}, 0x3f803f80', f'v_mov_b32 v{fc}, {XCNT}', f'v_mov_b32 v{fd}, 0',
          f'v_cndmask_b32 v{fb}, 0, v{fb}, vcc', f'ds_write_b32 v{fa}, v{fb}', f'ds_write_b32 v{fc}, v{fd}', f'ds_write_b32 v{fc}, v{fd} offset:4')
    F.add(f'v_and_b32 v{fa}, 1, v{vL}', f'v_lshlrev_b32 v{fa}, 4, v{fa}', f'v_mov_b32 v{fb}, 0x3f80', f'v_lshlrev_b32 v{fb}, v{fa}, v{fb}',
          's_mov_b32 s73, 0', 's_mov_b32 s74, 0')
    for dw in range(4):
        m0_ = (3 << (2*dw)) | (3 << (16 + 2*dw + 8))
        m1_ = (3 << (2*dw)) | ((3 << 24) if dw == 0 else 0)
        F.add(f's_mov_b32 s72, {hex(m0_)}', f'v_cndmask_b32 v{EF+dw}, 0, v{fb}, s[72:73]',
              f's_mov_b32 s75, {hex(m1_)}', f'v_cndmask_b32 v{EF+4+dw}, 0, v{fb}, s[74:75]')
    F.add(*f_common_a())
    F.add(*f_setup_cin())
    def small_dma():
        I(f's_cmp_eq_u32 s{sK}, 0'); I('s_cbranch_scc0 L_sm1')
        I('s_mov_b32 exec_lo, 15'); I('s_mov_b32 exec_hi, 0')
        I(f's_mov_b32 m0, {SM_A0}'); I('s_nop 0')
        I(f'buffer_load_dwordx4 v{fe}, {srd(S_A0)}, 0 offen lds')
        I('s_branch L_smdone')
        e.label('L_sm1')
        I(f's_mov_b64 exec, {sp(sE52)}')
        I(f's_cmp_eq_u32 s{sK}, 1'); I('s_cbranch_scc0 L_sm2')
        I(f's_mov_b32 m0, {SM_B1}'); I('s_nop 0')
        I(f'buffer_load_dwordx4 v{fe}, {srd(S_B1)}, 0 offen lds')
        I('s_branch L_smdone')
        e.label('L_sm2')
        I(f's_cmp_eq_u32 s{sK}, 2'); I('s_cbranch_scc0 L_smdone')
        I(f's_mov_b32 m0, {SM_W2}'); I('s_nop 0')
        I(f'buffer_load_dwordx4 v{fe}, {srd(S_W2)}, 0 offen lds')
        e.label('L_smdone')
        I('s_mov_b64 exec, -1')
    for x in g0: I(x)
    small_dma()
    b1_at = opts.get('b1_at', 99)
    for u in range(7):
        if u == 6:
            I(f's_cmp_ge_u32 s{sK}, 2'); I('s_cbranch_scc1 L_w0done')
        if u == b1_at:
            I(f's_waitcnt vmcnt({0 if opts.get("safe_b1") else max(0, 2*u - 3)})')
            I('s_barrier')
            ST(e, 'b1')
        I(f's_add_u32 s{sT1}, s{sT0}, {u*1352}')
        for R in range(2):
            I(f'buffer_load_dwordx4 {vr(FF+8*u+4*R,4)}, v{vFO+R}, {srd(S_CIN)}, s{sT1} offen')
            if u < 6: F.drain(e, opts.get('gapW0', 0))
    e.label('L_w0done')
    if b1_at >= 7: I(f's_waitcnt vmcnt({25 + (2 if touch else 0)})')
    for _ in range(opts.get('dly_g', 0)): I('s_nop 15')
    mk_srd(e, S_TAB, 6, 3200000)
    I(f'v_and_b32 v{a}, 1, v{vL}')
    I(f'v_lshlrev_b32 v{a}, 4, v{a}')
    for bb in range(4):
        I(f'v_lshl_add_u32 v{vIDX+bb}, v{vIDX+bb}, 5, v{a}')
    I(f's_mul_i32 s{sT0}, s{sK}, {4*XS}')
    I(f's_mov_b64 exec, {sp(sE52)}')
    for bb in range(4):
        I(f's_add_u32 m0, s{sT0}, {XB + bb*XS}')
        I('s_nop 0')
        I(f'buffer_load_dwordx4 v{vIDX+bb}, {srd(S_TAB)}, 0 offen lds')
    I('s_mov_b64 exec, -1')
    ST(e, 'pre1')
    if b1_at >= 7:
        I('s_waitcnt vmcnt(13)')
        I('s_barrier')
        ST(e, 'b1')
    if opts.get('lprio'): I(f's_setprio {opts["lprio"]}')
    for _ in range(opts.get('dly_p', 0)): I('s_nop 15')
    F.drain(e)
    prev = None
    for u in range(7):
        if u == 6:
            I(f's_cmp_ge_u32 s{sK}, 2'); I('s_cbranch_scc1 L_plast')
        n = 2 * (5 - u) + 4 if u <= 5 else 4
        I(f's_waitcnt vmcnt({0 if opts.get("safe_p") else n})')
        f = FF + 8 * u
        unit(e, f, f + 4, EF, EF + 4, DD[u & 1], None if prev is None else (DD[prev & 1], prev, FR_P))
        prev = u
    unit_store(e, DD[6 & 1], 6, FR_P)
    I('s_branch L_pend')
    e.label('L_plast')
    unit_store(e, DD[5 & 1], 5, FR_P)
    e.label('L_pend')
    ST(e, 'units')
    I('s_waitcnt lgkmcnt(0)')
    ST(e, 'fold')
    if opts.get('lprio'): I('s_setprio 0')
    I('s_barrier')
    ST(e, 'b2')
    e.ds_q = []
    if debug == 'fold':
        I('s_branch L_dbg')
    else:
        acc_init_cin(e)
        I('s_waitcnt lgkmcnt(0)')
        main_cin(e, debug, opts)
        I('s_branch L_join')

    e.last = {}; e.ds_q = []
    e.label('L_Upath')
    I(f's_lshl_b32 s{sT2}, s{sK}, 3')
    I(f's_add_u32 s{sT2}, s{sT2}, 52')
    I(f's_add_u32 s{sT3}, s{sT2}, 32')
    I(f's_load_dwordx16 s[{SA}:{SA+15}], s[10:11], 104')
    I(f's_load_dwordx2 s[60:61], s[10:11], s{sT2}')
    I(f's_load_dwordx2 s[62:63], s[10:11], s{sT3}')
    for j in range(2):
        I(f'v_lshl_add_u32 v{fa}, v{vG}, 2, v{vR4}')
        if j:
            I(f'v_add_u32 v{fa}, 16, v{fa}'); I(f'v_min_u32 v{fa}, 25, v{fa}')
        I(f'v_and_b32 v{fb}, 7, v{fa}'); I(f'v_lshlrev_b32 v{fb}, 5, v{fb}'); I(f'v_lshl_add_u32 v{fb}, v{fa}, 9, v{fb}')
        I(f'v_lshl_add_u32 v{fb}, v{vC4}, 3, v{fb}'); I(f'v_add_u32 v{TAD+8*j}, s{sStage}, v{fb}')
        for x in range(1, 8):
            I(f'v_xor_b32 v{TAD+8*j+x}, {x*32}, v{TAD+8*j}')
    for u in range(4, 8):
        for R in range(2): I(f'v_mov_b32 v{UD+8*u+4*R}, 0')
    for dw in range(4): I(f'v_mov_b32 v{SELA+dw}, 0')
    I(f'v_lshlrev_b32 v{a}, 4, v{vL}')
    I(f'v_add_u32 v{a}, {HB}, v{a}')
    I(f'v_cmp_gt_u32 {sp(sMN10)}, 10, v{vN}')
    I(f's_lshl_b32 s{sF0}, s{sK}, 2')
    I(f's_lshl_b32 s{sF1}, 1, s{sF0}')
    I(f's_lshl_b32 s{sF2}, s{sF1}, 16')
    I('s_waitcnt lgkmcnt(0)')
    for q in (13, 14, 15): I(f's_mov_b32 s{SA+q}, 0')
    for g in range(4):
        if g < 2:
            I(f's_mov_b32 exec_lo, s{sF1 if g == 0 else sF2}'); I('s_mov_b32 exec_hi, 0') if g == 0 else None
        else:
            I('s_mov_b32 exec_lo, 0') if g == 2 else None
            I(f's_mov_b32 exec_hi, s{sF1 if g == 2 else sF2}')
        for dw, src in enumerate((2*g, 2*g+1, 8+2*g, 9+2*g)):
            I(f'v_mov_b32 v{SELA+dw}, s{SA+src}')
    I('s_mov_b64 exec, -1')
    I(f's_cmp_le_u32 s{sK}, 2'); I('s_cselect_b32 s62, s62, 0'); I(f's_cmp_le_u32 s{sK}, 1'); I('s_cselect_b32 s63, s63, 0')
    for q in range(4):
        I(f's_lshl_b32 s{SA+2*q}, s{60+q}, 16'); I(f's_and_b32 s{SA+2*q+1}, s{60+q}, 0xffff0000')
    I('s_waitcnt vmcnt(0)')
    ST(e, 'pre1')
    for _ in range(opts.get('dly_u2', 0)): I('s_nop 15')
    for x in f_common_a(): I(x)
    def frag_reads(u, nbuf=4, off=0):
        buf = UB + 8 * (u % nbuf)
        ids = []
        for R in range(2):
            pg = 2 * u + R
            for j in range(2):
                ids.append(I(f'ds_read_b64_tr_b16 {vr(buf+4*R+2*j,2)}, v{TAD+8*j+(pg&7)} offset:{off + (pg>>3)*256}'))
        return ids
    pend = {u: frag_reads(u) for u in range(3)}
    for u in range(8):
        if u == 4:
            I(f's_cmp_eq_u32 s{sK}, 3'); I('s_cbranch_scc1 L_u2done')
        if u == 6:
            I(f's_cmp_eq_u32 s{sK}, 2'); I('s_cbranch_scc1 L_u2done')
        if u + 3 < 8:
            pend[u + 3] = frag_reads(u + 3)
        e.wait_ds(pend[u][-1])
        buf = UB + 8 * (u % 4)
        for R in range(2):
            I(f'v_mfma_f32_16x16x32_bf16 {vr(UD+8*u+4*R,4)}, {vr(SELA,4)}, {vr(buf+4*R,4)}, 0')
    e.label('L_u2done')
    I(f's_mov_b32 s{sX0}, 0xffff')
    I(f's_mov_b32 s{sX0+1}, 0')
    I(f's_lshl_b32 s{sT0}, s{sK}, 4')
    for u in range(4):
        I(f'v_cvt_pk_bf16_f32 v{HF+u}, v{UD+16*u}, v{UD+16*u+8}')
    for u in range(8):
        I(f'v_cndmask_b32 v{UD+8*u+4}, 0, v{UD+8*u+4}, {sp(sMN10)}')
    I('s_mov_b32 exec_lo, 0x04000400'); I('s_mov_b32 exec_hi, 0x04000400')
    for u in range(8):
        I(f'v_mov_b32 v{UD+8*u+4}, s{SA+u}')
    I('s_mov_b64 exec, -1')
    for u in range(4):
        I(f'v_cvt_pk_bf16_f32 v{HF+4+u}, v{UD+16*u+4}, v{UD+16*u+12}')
    I(f's_lshl_b64 exec, {sp(sX0)}, s{sT0}')
    I(f'ds_write_b128 v{a}, {vr(HF,4)}')
    I(f'ds_write_b128 v{a}, {vr(HF+4,4)} offset:1024')
    I('s_mov_b64 exec, -1')
    if opts.get('dnnsetup_early', 1):
        for x in f_setup_dnn(): I(x)
    I('s_waitcnt lgkmcnt(0)')
    I('s_barrier')
    ST(e, 'b1')
    for _ in range(opts.get('dly_t', 0)): I('s_nop 15')
    I(f'ds_read_b128 {vr(HF,4)}, v{a} offset:0')
    I(f'ds_read_b128 {vr(HF+4,4)}, v{a} offset:1024')
    def one_read(u, R, j):
        buf = UB + 8 * (u % 4); pg = 2 * u + R
        return I(f'ds_read_b64_tr_b16 {vr(buf+4*R+2*j,2)}, v{TAD+8*j+(pg&7)} offset:{WS1 - WS2 + (pg>>3)*256}')
    pend = {u: frag_reads(u, off=WS1 - WS2) for u in range(3)}
    def mask_g1(u, dws):
        g_ = UB + 8 * (u % 4)
        for dw in dws:
            I(f'v_cndmask_b32 v{g_+4+dw}, 0, v{g_+4+dw}, {sp(sMN10)}')
    e.wait_ds(pend[0][-1])
    mask_g1(0, range(4))
    prev = None
    for u in range(7):
        if u == 6:
            I(f's_cmp_ge_u32 s{sK}, 2'); I('s_cbranch_scc1 L_tlast')
        g = UB + 8 * (u % 4)
        extra = [[] for _ in range(6)]
        if u + 3 < 7:
            pend[u + 3] = []
            for q_, (R_, j_) in enumerate(((0, 0), (0, 1), (1, 0), (1, 1))):
                extra[q_].append(lambda R_=R_, j_=j_, u=u: pend[u + 3].append(one_read(u + 3, R_, j_)))
        if u + 1 < 7:
            extra[4].append(lambda u=u: e.wait_ds(pend[u + 1][-1]))
            extra[4].append(lambda u=u: mask_g1(u + 1, (0, 1)))
            extra[5].append(lambda u=u: mask_g1(u + 1, (2, 3)))
        unit(e, g, g + 4, HF, HF + 4, DD[u & 1], None if prev is None else (DD[prev & 1], prev, FR_Q), extra)
        prev = u
    unit_store(e, DD[6 & 1], 6, FR_Q)
    I('s_branch L_tend')
    e.label('L_tlast')
    unit_store(e, DD[5 & 1], 5, FR_Q)
    e.label('L_tend')
    ST(e, 'units')
    I('s_waitcnt lgkmcnt(0)')
    e.ds_q = []
    if not opts.get('dnnsetup_early', 1):
        for x in f_setup_dnn(): I(x)
    if opts.get('dnn0_early', 1): dma_step(e, 0, 'U0')
    I(f'v_mov_b32 v{vXCA}, {XCNT}')
    I(f'v_mov_b32 v{vONE}, 1')
    acc_init_dnn(e)
    I('s_waitcnt lgkmcnt(0)')
    ST(e, 'fold')
    I('s_barrier')
    ST(e, 'b2')
    e.ds_q = []
    if debug == 'fold':
        e.label('L_dbg')
        I('s_waitcnt vmcnt(0)'); I('s_barrier')
        dump_lds(e)
        return finish(e, opts)
    main_dnn(e, debug, opts)
    final(e, debug, opts)
    return finish(e, opts)

def dma_step(e, step, tag):
    I = e.I
    slot = step % 4
    I(f's_mov_b32 s{sT3}, {step*26624}')
    for u in range(7):
        if u == 6:
            I(f's_cmp_ge_u32 s{sK}, 2'); I(f's_cbranch_scc1 L_dma_{tag}')
        I(f's_add_u32 m0, s{sDma}, {slot*SLOT + u*1024}')
        I('s_nop 0')
        I(f'buffer_load_dwordx4 v{vDMA+u}, {srd(S_W1)}, s{sT3} offen lds')
    e.label(f'L_dma_{tag}')

def unit(e, X0, X1, Y0, Y1, D, prev, extra=None):
    I = e.I
    mf = []
    def m(dd, A, B, first):
        mf.append(f'v_mfma_f32_16x16x32_bf16 {vr(dd,4)}, {vr(A,4)}, {vr(B,4)}, ' + ('0' if first else vr(dd, 4)))
    m(D, X0, Y0, True); m(D + 4, X1, Y0, True); m(D + 8, X1, Y1, True)
    m(D, Y0, X0, False); m(D + 4, Y1, X0, False); m(D + 8, Y1, X1, False)
    fill = []
    if prev is not None:
        PD, pu, setbase = prev
        for ti in range(3):
            fill.append(f'v_cvt_pk_bf16_f32 v{DC+2*ti}, v{PD+4*ti}, v{PD+4*ti+1}')
            fill.append(f'v_cvt_pk_bf16_f32 v{DC+2*ti+1}, v{PD+4*ti+2}, v{PD+4*ti+3}')
        for ti in range(3):
            fill.append(f'ds_write_b64 v{vWA+ti}, {vr(DC+2*ti,2)} offset:{setbase + pu*16}')
    cuts = [0, 2, 4, 6, 7, 8, 9]
    for i in range(6):
        I(mf[i])
        for f in fill[cuts[i]:cuts[i+1]]:
            I(f)
        if extra:
            for fn in extra[i]: fn()

def unit_store(e, D, u, setbase):
    I = e.I
    for ti in range(3):
        I(f'v_cvt_pk_bf16_f32 v{DC+2*ti}, v{D+4*ti}, v{D+4*ti+1}')
        I(f'v_cvt_pk_bf16_f32 v{DC+2*ti+1}, v{D+4*ti+2}, v{D+4*ti+3}')
    for ti in range(3):
        I(f'ds_write_b64 v{vWA+ti}, {vr(DC+2*ti,2)} offset:{setbase + u*16}')

def dump_lds(e):
    I = e.I
    I('v_mbcnt_lo_u32_b32 v1, -1, 0'); I('v_mbcnt_hi_u32_b32 v1, -1, v1')
    I(f's_lshl_b32 s{sT0}, s{sW}, 10')
    I('v_lshlrev_b32 v1, 4, v1')
    I(f'v_add_u32 v1, s{sT0}, v1')
    I(f's_mul_i32 s{sT1}, s2, {LDS_TOTAL}')
    I(f'v_add_u32 v2, s{sT1}, v1')
    I(f's_mov_b32 s{sT2}, 0')
    e.label('L_dump')
    I('ds_read_b128 v[4:7], v1')
    I('s_waitcnt lgkmcnt(0)')
    I('global_store_dwordx4 v2, v[4:7], s[22:23]')
    I('s_waitcnt vmcnt(0)')
    I('v_add_u32 v1, 8192, v1'); I('v_add_u32 v2, 8192, v2')
    I(f's_add_u32 s{sT2}, s{sT2}, 1')
    I(f's_cmp_lt_u32 s{sT2}, 20')
    e.raw('    s_cbranch_scc1 L_dump')

def main_cin(e, debug, opts):
    I = e.I
    steps = step_list()
    hs = opts.get('hsched', [10, 5, 5, 5, 5, 5, 5, 5, 5, 3, 3, 0, 0])
    assert sum(hs) == 56 and len(hs) == 13
    halves = [(s_, X_) for s_ in range(28) for X_ in range(2)]
    sc = []; si = 0
    for n in hs:
        sc.append(halves[si:si + n]); si += n
    XR = [XA, XBB]; ZZ = [ZA, ZBB]
    af_ids = {}
    def af_read(s):
        buf = AF[s & 1]
        I(f'ds_read_b128 {vr(buf,4)}, v{vAF} offset:{FR_P + s*FST}')
        af_ids[s] = I(f'ds_read_b128 {vr(buf+4,4)}, v{vAF} offset:{FR_Q + s*FST}')
    def z_half(X, s, pi):
        aa, bb = steps[s]
        mod = ' div:2' if aa == bb else ''
        t = ZT + 4 * pi
        x = XR[X]
        for qi in range(4):
            pr = XPR[X][2*aa+pi]
            if mod: I(f'v_mul_f32_e64 v{t+qi}, v{pr}, v{x+4*bb+qi}{mod}')
            else: I(f'v_mul_f32 v{t+qi}, v{pr}, v{x+4*bb+qi}')
        z = ZZ[X][s & 1]
        I(f'v_cvt_pk_bf16_f32 v{z+2*pi}, v{t}, v{t+1}')
        I(f'v_cvt_pk_bf16_f32 v{z+2*pi+1}, v{t+2}, v{t+3}')
    def p_role(X, XPx):
        for q in range(7):
            I(f'v_cndmask_b32 v{XPx+2*q}, v{XPx+2*q}, v{XPx+2*q+1}, s[72:73]')
        for q in range(7):
            I(f'v_lshlrev_b32 v{XPR[X][2*q]}, 16, v{XPx+2*q}')
            I(f'v_and_b32 v{XPR[X][2*q+1]}, 0xffff0000, v{XPx+2*q}')
    def epilogue():
        t = TMP
        for X in range(2):
            P, Q = ACC[('P', X)], ACC[('Q', X)]
            t = TMP + 4 * X
            I(f'v_mul_f32 v{t}, v{P}, v{Q}')
            I(f'v_mul_f32 v{t+1}, v{P+12}, v{Q+12}')
            I(f'v_mul_f32 v{t+2}, v{P+1}, v{Q+1}')
            I(f'v_fmac_f32 v{t+1}, v{P+13}, v{Q+13}')
            for r in range(2, 12):
                I(f'v_fmac_f32 v{t + 2*(r&1)}, v{P+r}, v{Q+r}')
        I(f'v_cmp_gt_u32 vcc, 32, v{vL}')
        for X in range(2):
            t = TMP + 4 * X
            I(f'v_add_f32 v{t}, v{t}, v{t+2}')
        for X in range(2):
            t = TMP + 4 * X
            I(f'v_cndmask_b32 v{t+1}, 0, v{t+1}, vcc')
        for X in range(2):
            t = TMP + 4 * X
            I(f'v_add_f32 v{t}, v{t}, v{t+1}')
        t = TMP
        I(f'v_and_b32 v{t+2}, 1, v{vG}')
        I(f'v_lshlrev_b32 v{t+2}, 6, v{t+2}')
        I(f'v_lshrrev_b32 v{t+3}, 1, v{vG}')
        I(f'v_lshl_add_u32 v{t+2}, v{t+3}, 2, v{t+2}')
        I(f's_lshl_b32 s{sT0}, s{sK}, 8')
        I(f's_add_u32 s{sT0}, s{sT0}, {RED + 16}')
        I(f'v_add_u32 v{t+2}, s{sT0}, v{t+2}')
        for sh in (8, 4, 2, 1):
            for X in range(2):
                tt = TMP + 4 * X
                I(f'v_add_f32_dpp v{tt}, v{tt}, v{tt} row_ror:{sh} row_mask:0xf bank_mask:0xf')
        I(f's_mov_b32 exec_lo, 0x00010001'); I(f's_mov_b32 exec_hi, 0x00010001')
        I(f'ds_write_b32 v{t+2}, v{TMP}')
        I(f'ds_write_b32 v{t+2}, v{TMP+4} offset:128')
        I('s_mov_b64 exec, -1')
    for j in range(13):
        e.comment(f'---- CIN interval {j}')
        if j == 0:
            I(f'v_mov_b32 v{TMP}, {XCNT}'); I(f'v_mov_b32 v{TMP+1}, 1')
            I('s_waitcnt vmcnt(0)')
            I('s_nop 15')
            if opts.get('cp0', 2): I(f's_setprio {opts.get("cp0", 2)}')
            I('s_mov_b64 exec, 1')
            I(f'ds_add_u32 v{TMP}, v{TMP+1} offset:4')
            I('s_mov_b64 exec, -1')
            I('s_nop 15')
        if j == 1 and opts.get('cp0', 2): I(f's_setprio {opts.get("cp1", 0)}')
        ST(e, f'it{j}')
        if j == 0:
            I('s_mov_b32 s72, 0'); I('s_mov_b32 s73, -1')
            xa = [I(f'ds_read_b64_tr_b16 {vr(XPA+2*q,2)}, v{vTRX} offset:{128*q}') for q in range(7)]
            xb = [I(f'ds_read_b64_tr_b16 {vr(XPB+2*q,2)}, v{vTRX} offset:{2*XS + 128*q}') for q in range(7)]
            I('s_waitcnt lgkmcnt(0)')
            I('s_mov_b64 exec, 1')
            I(f'ds_add_u32 v{TMP}, v{TMP+1}')
            I('s_mov_b64 exec, -1')
            for _ in range(opts.get('dly_c', 0)): I('s_nop 15')
            if opts.get('safe_x'): I('s_barrier')
            af_read(0); af_read(1)
            for q in range(7):
                for h in range(2):
                    I(f'v_lshlrev_b32 v{XA+4*q+2*h}, 16, v{XPA+2*q+h}')
                    I(f'v_and_b32 v{XA+4*q+2*h+1}, 0xffff0000, v{XPA+2*q+h}')
            p_role(0, XPA)
            z_half(0, 0, 0); z_half(0, 0, 1)
            for q in range(7):
                for h in range(2):
                    I(f'v_lshlrev_b32 v{XBB+4*q+2*h}, 16, v{XPB+2*q+h}')
                    I(f'v_and_b32 v{XBB+4*q+2*h+1}, 0xffff0000, v{XPB+2*q+h}')
            p_role(1, XPB)
            z_half(1, 0, 0); z_half(1, 0, 1)
        for (s, X) in ([] if opts.get('no_cin') else sc[j]):
            if X == 0: e.wait_ds(af_ids[s])
            buf = AF[s & 1]
            z = ZZ[X][s & 1]
            P, Q = ACC[('P', X)], ACC[('Q', X)]
            I(f'v_mfma_f32_32x32x16_bf16 {vr(P,16)}, {vr(buf,4)}, {vr(z,4)}, ' + ('0' if s == 0 else vr(P,16)))
            if s + 1 < 28: z_half(X, s + 1, 0)
            I(f'v_mfma_f32_32x32x16_bf16 {vr(Q,16)}, {vr(buf+4,4)}, {vr(z,4)}, ' + (vr(QI,16) if s == 0 else vr(Q,16)))
            if X == 1 and s + 2 < 28: af_read(s + 2)
            if s + 1 < 28: z_half(X, s + 1, 1)
        if (not sc[j]) and j > 0 and sc[j-1]:
            if opts.get('cpe', 0): I(f's_setprio {opts.get("cpe", 0)}')
            epilogue()
    if sc[12]:
        epilogue()
    I('s_waitcnt lgkmcnt(0)')
    ST(e, 'gelu')

def main_dnn(e, debug, opts):
    I = e.I
    e.last = {}
    I(f's_cmp_ge_u32 s{sK}, 2')
    I('s_cselect_b64 vcc, -1, 0')
    def dma_one(step, u, tag, between=None):
        if u == 6: I(f's_cbranch_vccnz L_d6_{tag}')
        I(f's_add_u32 m0, s{sDma}, {(step % 4)*SLOT + u*1024}')
        if between: between()
        else: I('s_nop 0')
        I(f'buffer_load_dwordx4 v{vDMA+u}, {srd(S_W1)}, s{sT3} offen lds')
        if u == 6: e.label(f'L_d6_{tag}')
    def mf(j, u):
        I(f'v_mfma_f32_16x16x32_bf16 {vr(DACC+4*u,4)}, {vr(XF+4*j,4)}, {vr(WF[j&1]+4*u,4)}, {vr(DACC+4*u,4)}')
    plan = {j: ([j + 3] if j + 3 <= 12 else []) for j in range(13)}
    order = [(st_, u) for st_ in range(3) for u in range(7)]
    tops = {}
    for j in range(13):
        tops[j] = list(order)
        order += [(st_, u) for st_ in plan[j] for u in range(7)]
    def later_count(j, cls7):
        seq = [x for x in tops[j] if cls7 or x[1] < 6]
        jj_ = min(j + 1, 12)
        last = max(i for i, x in enumerate(seq) if x[0] == jj_)
        return len(seq) - 1 - last
    if not opts.get('dnn0_early', 1): dma_step(e, 0, 'C0')
    dma_step(e, 1, 'C1')
    dma_step(e, 2, 'C2')
    e.label('L_xl_dnn')
    I(f'ds_read_b32 v{vXCT}, v{vXCA} offset:4')
    I('s_waitcnt lgkmcnt(0)')
    I(f'v_readfirstlane_b32 s{sT0}, v{vXCT}')
    I(f's_cmp_ge_u32 s{sT0}, 4')
    e.raw('    s_cbranch_scc0 L_xl_dnn')
    ST(e, 'it0')
    for _ in range(opts.get('dly_d', 0)): I('s_nop 15')
    for q in range(13):
        I(f'ds_read_b64 {vr(XF+4*q,2)}, v{vXF} offset:{64*q}')
        I(f'ds_read_b64 {vr(XF+4*q+2,2)}, v{vXF} offset:{64*q+16}')
    I('s_waitcnt lgkmcnt(0)')
    I('s_mov_b64 exec, 1')
    I(f'ds_add_u32 v{vXCA}, v{vONE}')
    I('s_mov_b64 exec, -1')
    for j in range(13):
        e.comment(f'---- DNN interval {j}')
        n7, n6 = later_count(j, True), later_count(j, False)
        if opts.get('safe_dv'): n7 = n6 = 0
        if n7 != n6:
            I(f's_cbranch_vccnz L_vw6_{j}')
            I(f's_waitcnt vmcnt({n7})')
            I(f's_branch L_vwd_{j}')
            e.label(f'L_vw6_{j}')
            I(f's_waitcnt vmcnt({n6})')
            e.label(f'L_vwd_{j}')
        else:
            I(f's_waitcnt vmcnt({n7})')
        if j > 0: ST(e, f'it{j}')
        slot = j % 4
        tb = vT + 4 * (slot >> 1)
        for u in range(7):
            if u == 6: I(f's_cbranch_vccnz L_r6_{j}')
            for jj in range(2):
                I(f'ds_read_b64_tr_b16 {vr(WF[j&1]+4*u+2*jj,2)}, v{tb+2*jj+(u&1)} offset:{(slot&1)*SLOT + (u>>1)*64}')
        e.label(f'L_r6_{j}')
        steps_ = [] if opts.get('no_dma') else plan[j]
        first = steps_[0] if steps_ else None
        if j == 0:
            e.label('L_xspin')
            I(f'ds_read_b32 v{vXCT}, v{vXCA}')
            I('s_waitcnt lgkmcnt(0)')
            I(f'v_readfirstlane_b32 s{sT0}, v{vXCT}')
            I(f's_cmp_ge_u32 s{sT0}, 8')
            e.raw('    s_cbranch_scc0 L_xspin')
            I(f's_mov_b32 s{sT3}, {first*26624}')
            for u in range(7): dma_one(first, u, '0')
        else:
            I('s_waitcnt lgkmcnt(12)')
            if first is not None: I(f's_mov_b32 s{sT3}, {first*26624}')
            for u in range(7):
                if u == 6:
                    I(f's_cbranch_vccnz L_m6_{j}')
                    if first is not None:
                        I(f's_add_u32 m0, s{sDma}, {(first % 4)*SLOT + u*1024}'); mf(j - 1, u)
                        I(f'buffer_load_dwordx4 v{vDMA+u}, {srd(S_W1)}, s{sT3} offen lds')
                    else: mf(j - 1, u)
                    e.label(f'L_m6_{j}')
                elif first is not None:
                    dma_one(first, u, f'{j}', between=lambda: mf(j - 1, u))
                else:
                    mf(j - 1, u)
    I('s_waitcnt lgkmcnt(0)')
    for u in range(7):
        if u == 6: I('s_cbranch_vccnz L_m6_end')
        mf(12, u)
    e.label('L_m6_end')
    ST(e, 'gelu')
    G = TMP
    T = TMP + 4
    C1, C0, ONE = CST, CST + 2, CST + 4
    def gelu(pairs, first):
        def each(fn):
            for k_, (x, u, h) in enumerate(pairs):
                fn(x, T + 2 * k_, u, h, k_)
        each(lambda x, t, u, h, k_: I(f'v_pk_mul_f32 {vr(t,2)}, {vr(x,2)}, {vr(x,2)}'))
        each(lambda x, t, u, h, k_: I(f'v_pk_fma_f32 {vr(t,2)}, {vr(t,2)}, {vr(C1,2)}, {vr(C0,2)}'))
        each(lambda x, t, u, h, k_: I(f'v_pk_mul_f32 {vr(t,2)}, {vr(t,2)}, {vr(x,2)}'))
        each(lambda x, t, u, h, k_: (I(f'v_exp_f32 v{t}, v{t}'), I(f'v_exp_f32 v{t+1}, v{t+1}')))
        each(lambda x, t, u, h, k_: I(f'v_pk_mul_f32 {vr(x,2)}, {vr(x,2)}, {vr(W2V + (u & ~1), 2)} op_sel:[0,{u&1}] op_sel_hi:[1,{u&1}]'))
        each(lambda x, t, u, h, k_: I(f'v_pk_add_f32 {vr(t,2)}, {vr(t,2)}, {vr(ONE,2)}'))
        each(lambda x, t, u, h, k_: (I(f'v_rcp_f32 v{t}, v{t}'), I(f'v_rcp_f32 v{t+1}, v{t+1}')))
        def last(x, t, u, h, k_):
            if first and k_ < 2: I(f'v_pk_mul_f32 {vr(G+2*h,2)}, {vr(t,2)}, {vr(x,2)}')
            else: I(f'v_pk_fma_f32 {vr(G+2*h,2)}, {vr(t,2)}, {vr(x,2)}, {vr(G+2*h,2)}')
        each(last)
    allp = [(DACC + 4*u + 2*h, u, h) for u in range(6) for h in range(2)]
    gelu(allp[0:4], True); gelu(allp[4:8], False); gelu(allp[8:12], False)
    I(f's_cmp_ge_u32 s{sK}, 2'); I(f's_cbranch_scc1 L_g6')
    gelu([(DACC + 24 + 2*h, 6, h) for h in range(2)], False)
    e.label('L_g6')
    I(f'v_lshlrev_b32 v{T}, 8, v{vG}')
    I(f's_lshl_b32 s{sT0}, s{sK}, 2')
    I(f's_add_u32 s{sT0}, s{sT0}, {RED}')
    I(f'v_add_u32 v{T}, s{sT0}, v{T}')
    for sh in (8, 4, 2, 1):
        for r in range(4):
            I(f'v_add_f32_dpp v{G+r}, v{G+r}, v{G+r} row_ror:{sh} row_mask:0xf bank_mask:0xf')
    I(f's_mov_b32 exec_lo, 0x00010001'); I(f's_mov_b32 exec_hi, 0x00010001')
    for r in range(4):
        I(f'ds_write_b32 v{T}, v{G+r} offset:{64*r}')
    I('s_mov_b64 exec, -1')
    I('s_waitcnt lgkmcnt(0)')

def final(e, debug, opts):
    I = e.I
    T = TMP + 4
    e.label('L_join')
    e.last = {}
    if opts.get('pad_line'):
        for q in range(opts['pad_line']): I(f'v_mov_b32 v{60 + (q % 8)}, 0x12345678')
    if opts.get('pad_loop'):
        I(f's_mov_b32 s{sT0}, 0')
        e.label('L_pl')
        for q in range(32): I(f'v_mov_b32 v{60 + (q % 8)}, 0x12345678')
        I(f's_add_u32 s{sT0}, s{sT0}, 1')
        I(f's_cmp_lt_u32 s{sT0}, {opts["pad_loop"]}')
        e.raw('    s_cbranch_scc1 L_pl')
    if opts.get('delay_end'):
        I(f's_mov_b32 s{sT0}, 0')
        e.label('L_dly')
        for _ in range(8): I('s_nop 15')
        I(f's_add_u32 s{sT0}, s{sT0}, 1')
        I(f's_cmp_lt_u32 s{sT0}, {opts["delay_end"]}')
        e.raw('    s_cbranch_scc1 L_dly')
    I('s_barrier')
    if debug == 'red':
        dump_lds(e); return
    if debug == 'stamp':
        ST(e, 'fin')
        ST.flush(e)
        open(sys.argv[1] + '.names', 'w').write(' '.join(ST.names))
        return
    if debug == 'hstamp':
        ST(e, 'fin')
        sel = opts.get('hsel', ['b0', 'pre1', 'b1', 'units', 'b2', 'it0', 'it12', 'fin'])
        I(f's_cmp_eq_u32 s2, {opts.get("hwg", 128)}'); I('s_cbranch_scc0 L_nohs')
        I(f's_and_b32 s{sT0}, s{sW}, 3'); I(f's_cmp_eq_u32 s{sT0}, 0'); I('s_cbranch_scc0 L_nohs')
        I('s_waitcnt lgkmcnt(0)')
        r0 = STAMP_SLOTS[0]
        for i, nm in enumerate(sel):
            r = STAMP_SLOTS[ST.names.index(nm)]
            I(f's_sub_u32 s{sT1}, s{r}, s{r0}')
            I(f'v_writelane_b32 v200, s{sT1}, {i}')
        I(f's_lshl_b32 s{sT0}, s{sW}, 3')
        I(f'v_lshlrev_b32 v201, 2, v{vL}')
        I(f'v_add_u32 v201, s{sT0}, v201')
        I('s_mov_b32 exec_lo, 0xff'); I('s_mov_b32 exec_hi, 0')
        I('global_store_dword v201, v200, s[22:23]')
        I('s_mov_b64 exec, -1')
        I('s_waitcnt vmcnt(0)')
        e.label('L_nohs')
    I(f's_cmp_lg_u32 s{sW}, 0'); I('s_cbranch_scc1 L_end')
    I('s_mov_b32 exec_lo, 0xffff'); I('s_mov_b32 exec_hi, 0')
    I(f'v_lshlrev_b32 v{T}, 6, v{vL}')
    I(f'v_add_u32 v{T}, {RED}, v{T}')
    I(f'ds_read_b128 {vr(8,4)}, v{T}')
    I(f'ds_read_b64 {vr(12,2)}, v{T} offset:16')
    if debug == 'redout':
        I('s_waitcnt lgkmcnt(0)')
        I(f's_lshl_b32 s{sT0}, s2, 9')
        I(f'v_lshlrev_b32 v20, 5, v{vL}')
        I(f'v_add_u32 v20, s{sT0}, v20')
        I('global_store_dwordx4 v20, v[8:11], s[22:23]')
        I('global_store_dwordx2 v20, v[12:13], s[22:23] offset:16')
        I('s_waitcnt vmcnt(0)')
    I(f's_mov_b32 s{S_OUT}, s20'); I(f's_mov_b32 s{S_OUT+1}, s21')
    I(f's_mov_b32 s{S_OUT+2}, 8192'); I(f's_mov_b32 s{S_OUT+3}, 0x20000')
    I(f's_lshl_b32 s{sBO}, s{sBO}, 16')
    I(f's_lshl_b32 s{sT0}, s2, 5')
    I(f'v_lshlrev_b32 v{T+1}, 1, v{vL}')
    I(f'v_add_u32 v{T+1}, s{sT0}, v{T+1}')
    I('s_waitcnt lgkmcnt(0)')
    I('v_add_f32 v8, v8, v9'); I('v_add_f32 v10, v10, v11'); I('v_add_f32 v12, v12, v13')
    I('v_add_f32 v8, v8, v10')
    I(f'v_add_f32 v12, s{sBO}, v12')
    I('v_add_f32 v8, v8, v12')
    I('v_cvt_pk_bf16_f32 v8, v8, v8')
    I(f'buffer_store_short v8, v{T+1}, {srd(S_OUT)}, 0 offen')

def finish(e, opts):
    e.label('L_end')
    body = e.text()
    hdr = f"""; xDeepFM (CIN + DNN) fused kernel, generated by my own generator script.
; One workgroup = 16 batch rows, 8 waves.  CIN layers are folded at run time into two quadratic forms.
; @launch grid=(256,1,1) block=(512,1,1) lds={LDS_TOTAL}
.amdgcn_target "amdgcn-amd-amdhsa--gfx950"
.text
.globl {KN}
.p2align 8
.type {KN},@function
{KN}:
"""
    ftr = f"""    s_endpgm
.section .rodata,"a"
.p2align 6
.amdhsa_kernel {KN}
  .amdhsa_next_free_vgpr 256
  .amdhsa_next_free_sgpr 102
  .amdhsa_accum_offset 256
  .amdhsa_group_segment_fixed_size 0
  .amdhsa_kernarg_size 88
  .amdhsa_user_sgpr_count 2
  .amdhsa_user_sgpr_kernarg_segment_ptr 1
  .amdhsa_system_sgpr_workgroup_id_x 1
  .amdhsa_ieee_mode 0
.end_amdhsa_kernel
"""
    return hdr + body + ftr

if __name__ == '__main__':
    dbg = sys.argv[2] if len(sys.argv) > 2 and sys.argv[2] != 'none' else None
    opts = eval(sys.argv[3]) if len(sys.argv) > 3 else {}
    out = build(dbg, opts)
    open(sys.argv[1], 'w').write(out)
    print('wrote', sys.argv[1], len(out), 'bytes')
```

```python
import sys, os
from emit import Emit

KN = "standalone__deep_cross_xdeepfm__recsys_kernel"

FST = 848; FR_P = 0; FR_Q = 28 * FST
RB = 47616; SLOT = 26624; WROW = 832
WS2 = RB + SLOT - 4 * 13312
WS1 = RB + SLOT
STG = 13312
XB = RB + 3 * SLOT; XS = 912
HB = RB + 4 * SLOT
SM = HB + 2048; SM_A0 = SM; SM_B1 = SM + 64; SM_W2 = SM + 896
RED = SM + 1728
XCNT = RED + 1024
XLND = XCNT + 4
LDS_TOTAL = 163840
OOB_LDS = 0x40000
CIN_L = 35152
assert WS1 % 512 == 0 and 28 * FST * 2 <= RB and RED + 1024 <= LDS_TOTAL and WS2 % 512 == 0 and WS2 >= 0

S_IDX, S_TAB, S_CIN, S_W1 = 24, 28, 32, 36
S_A0, S_B1, S_W2, S_OUT = 40, 52, 56, 60
sA2 = 96
sW, sK = 64, 65
sBO = 66
sI0 = 67
sT0, sT1, sT2, sT3 = 68, 69, 70, 71
sMN10 = 78
sE52 = 80
sStage, sSrc = 82, 83
sC0, sC1, sC2 = 84, 85, 86
sX0 = 88
sF0, sF1, sF2 = 84, 85, 86
sDma = 92
sSL = 93
SA = 44
def srd(n): return f"s[{n}:{n+3}]"
def sp(n): return f"s[{n}:{n+1}]"
def vr(a, n=1): return f"v{a}" if n == 1 else f"v[{a}:{a+n-1}]"

vL = 0
TMP = 122
fa, fb, fc, fd, fe = 132, 133, 134, 135, 136
vN, vG, vR4, vC4 = 142, 143, 144, 145
vWA = 146
vWB = 149
DD = [152, 164]
DC = 176
vSO = 182
vDUM = 186
UD = 2; SELA = 212; HF = 204
TAD = 188
UB = 68
FF = 2; EF = 60; vIDX = 68; vFO = 72
XA = 2; XBB = 30
ZA = [58, 62]; ZBB = [66, 70]
ZT = 74
AF = [82, 90]
vAF = 100; vTRX = 101
XPA = 104; XPB = 152
QI = 166
ACC = {('P', 0): 192, ('Q', 0): 208, ('P', 1): 224, ('Q', 1): 240}
vDMA = 100
vT = 108
vXF = 116
WF = [2, 30]
XF = 152
DACC = 208
W2V = 236
CST = 244
vXCA = 118; vONE = 119; vXCT = 120

STAMP_SLOTS = [94, 96, 98, 100, 90, 40, 42] + list(range(44, 60, 2)) + [24, 26, 28, 30, 4, 6, 8, 10, 14, 16, 12, 18]
class Stamps:
    def __init__(self, on): self.on = on; self.names = []
    def __call__(self, e, name):
        if not self.on: return
        if name in self.names: i = self.names.index(name)
        else:
            i = len(self.names); self.names.append(name)
        r = STAMP_SLOTS[i]
        e.I(f's_memtime s[{r}:{r+1}]')
    def flush(self, e):
        if not self.on: return
        I = e.I
        I('s_mov_b64 exec, -1')
        I('s_waitcnt vmcnt(0) lgkmcnt(0)')
        for i in range(len(self.names)):
            I(f'v_writelane_b32 v200, s{STAMP_SLOTS[i]}, {i}')
        I('s_memrealtime s[68:69]')
        I('s_waitcnt lgkmcnt(0)')
        I('v_writelane_b32 v200, s68, 31')
        I('v_mbcnt_lo_u32_b32 v201, -1, 0'); I('v_mbcnt_hi_u32_b32 v201, -1, v201')
        I('v_lshlrev_b32 v201, 2, v201')
        I(f's_lshl_b32 s70, s2, 3'); I(f's_add_u32 s70, s70, s{sW}'); I('s_lshl_b32 s70, s70, 8')
        I('v_add_u32 v201, s70, v201')
        I('global_store_dword v201, v200, s[22:23]')
        I('s_waitcnt vmcnt(0)')
ST = Stamps(False)

def step_list():
    return [(a, b) for b in range(7) for a in range(b + 1)]

def mk_srd(e, n, lo, size, add=0):
    I = e.I
    if add:
        I(f's_add_u32 s{n}, s{lo}, {add}')
        I(f's_addc_u32 s{n+1}, s{lo+1}, 0')
    else:
        I(f's_mov_b32 s{n}, s{lo}')
        I(f's_mov_b32 s{n+1}, s{lo+1}')
    I(f's_mov_b32 s{n+2}, {size}')
    I(f's_mov_b32 s{n+3}, 0x20000')


class FQ:
    def __init__(self): self.q = []
    def add(self, *items): self.q.extend(items)
    def drain(self, e, n=10**9):
        k = 0
        while self.q and k < n:
            it = self.q.pop(0)
            if isinstance(it, list):
                for x in it: e.I(x)
                k += len(it)
            else:
                e.I(it); k += 1

def f_srd(n, lo, size):
    return [f's_mov_b32 s{n}, s{lo}', f's_mov_b32 s{n+1}, s{lo+1}', f's_mov_b32 s{n+2}, {size}', f's_mov_b32 s{n+3}, 0x20000']

def f_common_a():
    L = [f'v_bfe_u32 v{fa}, v{vN}, 1, 1', f'v_mul_u32_u24 v{fb}, 420, v{fa}', f'v_and_b32 v{fc}, 1, v{vN}',
         f'v_lshl_add_u32 v{fb}, v{fc}, 3, v{fb}', f's_lshl_b32 s{sF0}, s{sI0}, 4', f'v_lshrrev_b32 v{fc}, 2, v{vN}',
         f'v_add_u32 v{fa}, 1, v{vG}', f'v_mul_u32_u24 v{fa}, v{fa}, v{vG}', f'v_cmp_le_u32 s[72:73], v{fc}, v{vG}',
         f'v_lshrrev_b32 v{fa}, 1, v{fa}', f'v_cmp_ge_u32 s[74:75], 2, v{vG}', f'v_add_u32 v{fa}, v{fa}, v{fc}',
         f's_movk_i32 s{sF2}, {FST}', f'v_add_u32 v{fb}, s{sF0}, v{fb}', f'v_lshlrev_b32 v{fe}, 2, v{vL}',
         f'v_mad_u32_u24 v{fd}, v{fa}, s{sF2}, v{fb}', f's_and_b64 s[76:77], s[72:73], s[74:75]', f'v_add_u32 v{fe}, {OOB_LDS}, v{fe}',
         f's_movk_i32 s{sF1}, {4*FST}', f'v_cndmask_b32 v{vWA}, v{fe}, v{fd}, s[72:73]',
         f'v_mad_u32_u24 v{fd}, v{vG}, s{sF1}, v{fd}', f'v_xor_b32 v{vWB}, 4, v{vWA}', f'v_add_u32 v{fd}, {10*FST}, v{fd}',
         f'v_cndmask_b32 v{vWA+1}, v{fe}, v{fd}, s[74:75]', f'v_add_u32 v{fd}, {4*FST}, v{fd}', f'v_xor_b32 v{vWB+1}, 4, v{vWA+1}',
         f'v_cndmask_b32 v{vWA+2}, v{fe}, v{fd}, s[76:77]', f'v_xor_b32 v{vWB+2}, 4, v{vWA+2}']
    return L

def f_setup_cin():
    L = [f'v_and_b32 v{fa}, 31, v{vL}', f'v_lshlrev_b32 v{fa}, 4, v{fa}', f'v_lshrrev_b32 v{fb}, 5, v{vL}',
         f's_movk_i32 s{sF1}, 416', f'v_mad_u32_u24 v{vAF}, v{fb}, s{sF1}, v{fa}',
         f'v_lshrrev_b32 v{fb}, 1, v{vG}', f'v_and_b32 v{fc}, 1, v{vG}', f's_movk_i32 s{sF1}, {XS}',
         f'v_lshlrev_b32 v{fa}, 1, v{fb}', f'v_xor_b32 v{fa}, v{fa}, v{vR4}', f'v_lshlrev_b32 v{fa}, 5, v{fa}',
         f'v_lshl_add_u32 v{fa}, v{vC4}, 3, v{fa}', f'v_mad_u32_u24 v{fa}, v{fc}, s{sF1}, v{fa}',
         f's_mul_i32 s{sF0}, s{sK}, {4*XS}', f's_add_u32 s{sF0}, s{sF0}, {XB}', f'v_add_u32 v{vTRX}, s{sF0}, v{fa}']
    return L

def f_setup_dnn():
    sCPR, sMAG, sSWZ, sRS = 72, 73, 74, 75
    L = [f's_cmp_lt_u32 s{sK}, 2', f's_cselect_b32 s{sCPR}, 14, 12', f's_mov_b32 s{sF1}, 87382', f's_cselect_b32 s{sMAG}, 74899, s{sF1}',
         f's_cselect_b32 s{sSWZ}, 0, 2', f's_lshl_b32 s{sRS}, s{sCPR}, 4', f's_lshl_b32 s{sF0}, s{sI0}, 5', f's_movk_i32 s{sF2}, 832']
    L += [f's_sub_u32 s{sF2}, s{sF2}, s{sRS}']
    for u in range(7):
        L += [f'v_add_u32 v{fa}, {64*u}, v{vL}', f'v_mul_u32_u24 v{fc}, s{sMAG}, v{fa}', f'v_lshrrev_b32 v{fc}, 20, v{fc}',
              f'v_lshrrev_b32 v{fd}, 1, v{fc}', f'v_and_b32 v{fd}, s{sSWZ}, v{fd}', f'v_xor_b32 v{fa}, v{fa}, v{fd}',
              f'v_lshl_add_u32 v{fa}, v{fa}, 4, s{sF0}', f'v_mad_u32_u24 v{vDMA+u}, v{fc}, s{sF2}, v{fa}']
    L += [f's_lshl_b32 s{sDma}, s{sI0}, 10', f's_add_u32 s{sDma}, s{sDma}, {RB}']
    L += [f'v_lshrrev_b32 v{fb}, 1, v{vG}', f'v_and_b32 v{fc}, 1, v{vG}', f'v_lshlrev_b32 v{fa}, 4, v{fb}',
          f'v_lshl_add_u32 v{fa}, v{fc}, 2, v{fa}', f'v_add_u32 v{fa}, v{fa}, v{vR4}', f'v_mul_u32_u24 v{fa}, s{sRS}, v{fa}',
          f'v_lshl_add_u32 v{fa}, v{vC4}, 3, v{fa}', f'v_add_u32 v{fa}, s{sDma}, v{fa}',
          f's_lshl_b32 s{sF1}, s{sSWZ}, 4', f'v_lshlrev_b32 v{fd}, 5, v{fc}', f'v_and_b32 v{fd}, s{sF1}, v{fd}',
          f'v_add_u32 v{vT}, v{fa}, v{fd}', f'v_sub_u32 v{vT+1}, v{fa}, v{fd}', f'v_add_u32 v{vT+1}, 32, v{vT+1}',
          f's_lshl_b32 s{sF1}, s{sRS}, 3',
          f'v_add_u32 v{vT+2}, s{sF1}, v{vT}', f'v_add_u32 v{vT+3}, s{sF1}, v{vT+1}']
    L += [f'v_add_u32 v{vT+4+q}, {2*SLOT}, v{vT+q}' for q in range(4)]
    L += [f's_movk_i32 s{sF1}, {XS}', f'v_lshlrev_b32 v{fa}, 5, v{fb}', f'v_lshl_add_u32 v{fa}, v{fc}, 3, v{fa}',
          f'v_mad_u32_u24 v{fa}, v{vN}, s{sF1}, v{fa}', f'v_add_u32 v{vXF}, {XB}, v{fa}']
    return L

def acc_init_cin(e):
    I = e.I
    I(f'v_lshrrev_b32 v{fa}, 5, v{vL}')
    I(f'v_lshlrev_b32 v{fa}, 3, v{fa}')
    I(f'v_add_u32 v{fa}, {SM_A0}, v{fa}')
    ids = [I(f'ds_read_b64 {vr(XPA+2*g,2)}, v{fa} offset:{16*g}') for g in range(4)]
    e.wait_ds(ids[-1])
    for g in range(4):
        for q in range(2):
            I(f'v_lshlrev_b32 v{QI+4*g+2*q}, 16, v{XPA+2*g+q}')
            I(f'v_and_b32 v{QI+4*g+2*q+1}, 0xffff0000, v{XPA+2*g+q}')

def acc_init_dnn(e):
    I = e.I
    I(f's_lshl_b32 s{sF0}, s{sI0}, 5')
    I(f's_add_u32 s{sF0}, s{sF0}, {SM_B1}')
    I(f'v_lshlrev_b32 v{fb}, 1, v{vN}')
    I(f'v_add_u32 v{fb}, s{sF0}, v{fb}')
    B = 60
    for u in range(7):
        I(f'v_mov_b32 v{B+u}, 0')
        I(f'v_mov_b32 v{W2V+u}, 0')
    ids = []
    for u in range(7):
        ids.append(I(f'ds_read_u16_d16_hi v{B+u}, v{fb} offset:{32*u}'))
        ids.append(I(f'ds_read_u16_d16_hi v{W2V+u}, v{fb} offset:{832 + 32*u}'))
    for q, val in enumerate(('0xbdd2d3e8', '0xbdd2d3e8', '0xc0135761', '0xc0135761', '1.0', '1.0')):
        I(f'v_mov_b32 v{CST+q}, {val}')
    e.wait_ds(ids[-1])
    for u in range(7):
        for r in range(4):
            I(f'v_mov_b32 v{DACC+4*u+r}, v{B+u}')

def build(debug=None, opts=None):
    global ST
    opts = opts or {}
    e = Emit(); I = e.I
    a, b, c, d = TMP, TMP + 1, TMP + 2, TMP + 3
    touch = opts.get('touch', True)
    gapL = opts.get('gapL', 10)
    sRT = sC1
    I('s_cmp_ge_u32 s2, 256')
    I('s_cbranch_scc1 L_end')
    I('s_load_dwordx16 s[4:19], s[0:1], 0')
    if opts.get('tlb'): I('s_load_dwordx2 s[20:21], s[0:1], 64')
    I(f'v_lshrrev_b32 v1, 6, v0')
    I(f'v_and_b32 v{vL}, 63, v0')
    I(f'v_readfirstlane_b32 s{sW}, v1')
    I(f's_bfe_u32 s{sSL}, s2, 0x50003')
    ST = Stamps(debug in ('stamp', 'hstamp'))
    ST(e, 'start')
    if touch:
        I(f's_getpc_b64 {sp(sX0)}')
        I(f's_lshl_b32 s{sT0}, s{sSL}, 3')
        I(f's_add_u32 s{sT0}, s{sT0}, s{sW}')
        I(f's_lshl_b32 s{sT1}, s{sT0}, 7')
        I(f's_min_u32 s{sT1}, s{sT1}, L_end-{KN}')
        I(f's_and_b32 s{sX0}, s{sX0}, 0xffffff00')
        I(f'v_mov_b32 v{a}, s{sT1}')
        if not opts.get('no_code_touch'): I(f'global_load_dword v{vDUM}, v{a}, {sp(sX0)}')
        I(f's_mul_i32 s{sT1}, s{sT0}, 11')
        I(f's_lshl_b32 s{sT2}, s{sT0}, 2')
        I(f'v_add_u32 v{b}, s{sT1}, v{vL}')
        I(f'v_add_u32 v{c}, s{sT2}, v{vL}')
        I(f'v_lshlrev_b32 v{b}, 7, v{b}')
        I(f'v_lshlrev_b32 v{c}, 7, v{c}')
    I(f's_and_b32 s{sK}, s{sW}, 3')
    I(f's_lshl_b32 s{sT0}, s2, 4')
    I(f's_lshl_b32 s{sT1}, s{sK}, 2')
    I(f's_add_u32 s{sT0}, s{sT0}, s{sT1}')
    I(f's_mul_i32 s{sT0}, s{sT0}, 104')
    I(f'v_lshrrev_b32 v{d}, 1, v{vL}')
    I(f'v_lshlrev_b32 v{d}, 2, v{d}')
    I(f'v_add_u32 v{d}, s{sT0}, v{d}')
    I(f's_cmp_ge_u32 s{sW}, 4')
    I('s_waitcnt lgkmcnt(0)')
    if opts.get('fine'):
        ST(e, 'ka'); I(f's_cmp_ge_u32 s{sW}, 4')
    I('s_cbranch_scc0 L_eN')
    mk_srd(e, S_IDX, 4, 4096 * 104)
    for bb in range(4):
        I(f'buffer_load_dword v{vIDX+bb}, v{d}, {srd(S_IDX)}, 0 offen offset:{bb*104}')
    if opts.get('tlb'):
        I(f's_lshl_b32 s{sT0}, s2, 7')
        I(f'v_mov_b32 v{a}, s{sT0}')
        I('s_mov_b64 exec, 1')
        I(f'global_load_dword v{vDUM}, v{a}, s[6:7]')
        I(f'v_add_u32 v{a}, 0x200000, v{a}')
        I(f'global_load_dword v{vDUM}, v{a}, s[6:7]')
        I(f's_lshl_b32 s{sT0}, s2, 5')
        I(f'v_mov_b32 v{a}, s{sT0}')
        I(f'global_load_dword v{vDUM}, v{a}, s[20:21]')
        I('s_mov_b64 exec, -1')
    e.label('L_eN')
    I(f's_mov_b32 s{S_CIN}, s8'); I(f's_mov_b32 s{S_CIN+1}, s9')
    I(f's_mov_b32 s{S_CIN+2}, {3*CIN_L}'); I(f's_mov_b32 s{S_CIN+3}, 0x20000')
    mk_srd(e, S_W1, 12, 346112)
    ntouch = 0
    if touch:
        I('s_mov_b32 exec_lo, 0xf'); I('s_mov_b32 exec_hi, 0')
        if not opts.get('no_cin_touch'):
            I(f'buffer_load_dword v{vDUM}, v{c}, {srd(S_CIN)}, 0 offen'); ntouch += 1
        I('s_mov_b32 exec_lo, 0x7ff')
        if not opts.get('no_w_touch'):
            I(f'buffer_load_dword v{vDUM}, v{b}, {srd(S_W1)}, 0 offen'); ntouch += 1
        I('s_mov_b64 exec, -1')
    if opts.get('fine'): ST(e, 'tch')
    I(f'v_lshrrev_b32 v{a}, 5, v{vL}')
    I(f'v_and_b32 v{b}, 1, v{vL}')
    I(f'v_lshlrev_b32 v{b}, 4, v{b}')
    I(f's_movk_i32 s{sC0}, 1352')
    I(f'v_bfe_u32 v{c}, v{vL}, 1, 4')
    I(f'v_mad_u32_u24 v{b}, v{a}, s{sC0}, v{b}')
    I(f'v_xor_b32 v{c}, v{c}, v{a}')
    I(f's_mul_i32 s{sI0}, s{sK}, 7')
    I(f's_cmp_eq_u32 s{sK}, 3')
    I(f's_cselect_b32 s{sT0}, 1, 0')
    I(f's_sub_u32 s{sI0}, s{sI0}, s{sT0}')
    I(f'v_and_b32 v{a}, 1, v{c}')
    I(f'v_lshl_add_u32 v{b}, v{a}, 5, v{b}')
    I(f's_mul_i32 s{sStage}, s{sK}, {STG}')
    I(f's_mul_i32 s{sT0}, s{sK}, 208')
    I(f's_add_u32 s{sT0}, s{sT0}, {2*CIN_L}')
    I(f's_mul_i32 s{sT1}, s{sI0}, 52')
    I(f's_add_u32 s{sT1}, s{sT1}, {CIN_L}')
    I(f's_movk_i32 s{sT2}, 832')
    I(f's_cmp_ge_u32 s{sW}, 4')
    I(f's_cselect_b32 s{sSrc}, s{sT1}, s{sT0}')
    I(f's_cselect_b32 s{sRT}, 208, s{sT2}')
    I(f's_movk_i32 s{sT2}, {WS2}')
    I(f's_cselect_b32 s{sT0}, {WS1}, s{sT2}')
    I(f's_add_u32 s{sStage}, s{sStage}, s{sT0}')
    I(f'v_lshrrev_b32 v{a}, 3, v{c}')
    I(f'v_mad_u32_u24 v{b}, v{a}, s{sRT}, v{b}')
    I(f'v_bfe_u32 v{c}, v{c}, 1, 2')
    I(f's_mov_b32 m0, s{sStage}')
    I(f'v_mad_u32_u24 v{vSO}, v{c}, 52, v{b}')
    I(f's_movk_i32 s{sT3}, 2704')
    I(f's_movk_i32 s{sT2}, 1024')
    for tm in range(1, 4):
        I(f'v_xor_b32 v{a}, {tm}, v{c}')
        I(f'v_mad_u32_u24 v{vSO+tm}, v{a}, 52, v{b}')
    if opts.get('fine'): ST(e, 'dma0')
    for t in range(13):
        I(f'buffer_load_dwordx4 v{vSO + (t & 3)}, {srd(S_CIN)}, s{sSrc} offen lds')
        if t < 12:
            I(f's_add_u32 m0, m0, s{sT2}')
            I(f's_add_u32 s{sSrc}, s{sSrc}, s{sT3}')
    ST(e, 'b0')
    I(f's_load_dwordx2 s[20:21], s[0:1], 64')
    if debug == 'hstamp':
        I('s_load_dwordx2 s[22:23], s[0:1], 72')
    elif debug:
        I('s_load_dwordx2 s[22:23], s[0:1], 80')
    I(f's_load_dword s{sBO}, s[18:19], 0')
    I(f'v_and_b32 v{vN}, 15, v{vL}')
    I(f'v_lshrrev_b32 v{vG}, 4, v{vL}')
    I(f'v_bfe_u32 v{vR4}, v{vL}, 2, 2')
    I(f'v_and_b32 v{vC4}, 3, v{vL}')
    I(f's_cmp_lt_u32 s{sW}, 4')
    I('s_cbranch_scc1 L_Upath')

    ms = ['s[72:73]', 's[74:75]', 's[76:77]', 'vcc']
    I(f's_mov_b32 s{sE52}, -1')
    I(f's_mov_b32 s{sE52+1}, 0x000fffff')
    I(f'v_lshlrev_b32 v{b}, 4, v{vG}')
    I(f'v_mad_u32_u24 v{vFO}, v{vN}, 52, v{b}')
    I(f'v_cmp_gt_u32 vcc, 10, v{vN}')
    I(f'v_add_u32 v{vFO+1}, 832, v{vFO}')
    I(f'v_mov_b32 v{c}, 0x7ff00000')
    I(f'v_cndmask_b32 v{vFO+1}, v{c}, v{vFO+1}, vcc')
    I(f's_mul_i32 s{sT0}, s{sI0}, 1352')
    F = FQ()
    g0 = f_srd(S_A0, 10, 52) + f_srd(S_B1, 14, 832) + f_srd(S_W2, 16, 832) + [f'v_lshlrev_b32 v{fe}, 4, v{vL}']
    F.add(f'v_lshrrev_b32 v{fa}, 4, v{vL}', f'v_mul_u32_u24 v{fa}, {XS}, v{fa}', f'v_lshl_add_u32 v{fa}, v{vN}, 2, v{fa}',
          f's_mul_i32 s{sF0}, s{sK}, {4*XS}', f's_add_u32 s{sF0}, s{sF0}, {XB + 832}', f'v_add_u32 v{fa}, s{sF0}, v{fa}',
          f'v_cmp_gt_u32 vcc, 8, v{vN}', f'v_mov_b32 v{fb}, 0x3f803f80', f'v_mov_b32 v{fc}, {XCNT}', f'v_mov_b32 v{fd}, 0',
          f'v_cndmask_b32 v{fb}, 0, v{fb}, vcc', f'ds_write_b32 v{fa}, v{fb}', f'ds_write_b32 v{fc}, v{fd}', f'ds_write_b32 v{fc}, v{fd} offset:4')
    F.add(f'v_and_b32 v{fa}, 1, v{vL}', f'v_lshlrev_b32 v{fa}, 4, v{fa}', f'v_mov_b32 v{fb}, 0x3f80', f'v_lshlrev_b32 v{fb}, v{fa}, v{fb}',
          's_mov_b32 s73, 0', 's_mov_b32 s74, 0')
    for dw in range(4):
        m0_ = (3 << (2*dw)) | (3 << (16 + 2*dw + 8))
        m1_ = (3 << (2*dw)) | ((3 << 24) if dw == 0 else 0)
        F.add(f's_mov_b32 s72, {hex(m0_)}', f'v_cndmask_b32 v{EF+dw}, 0, v{fb}, s[72:73]',
              f's_mov_b32 s75, {hex(m1_)}', f'v_cndmask_b32 v{EF+4+dw}, 0, v{fb}, s[74:75]')
    F.add(*f_common_a())
    F.add(*f_setup_cin())
    def small_dma():
        I(f's_cmp_eq_u32 s{sK}, 0'); I('s_cbranch_scc0 L_sm1')
        I('s_mov_b32 exec_lo, 15'); I('s_mov_b32 exec_hi, 0')
        I(f's_mov_b32 m0, {SM_A0}'); I('s_nop 0')
        I(f'buffer_load_dwordx4 v{fe}, {srd(S_A0)}, 0 offen lds')
        I('s_branch L_smdone')
        e.label('L_sm1')
        I(f's_mov_b64 exec, {sp(sE52)}')
        I(f's_cmp_eq_u32 s{sK}, 1'); I('s_cbranch_scc0 L_sm2')
        I(f's_mov_b32 m0, {SM_B1}'); I('s_nop 0')
        I(f'buffer_load_dwordx4 v{fe}, {srd(S_B1)}, 0 offen lds')
        I('s_branch L_smdone')
        e.label('L_sm2')
        I(f's_cmp_eq_u32 s{sK}, 2'); I('s_cbranch_scc0 L_smdone')
        I(f's_mov_b32 m0, {SM_W2}'); I('s_nop 0')
        I(f'buffer_load_dwordx4 v{fe}, {srd(S_W2)}, 0 offen lds')
        e.label('L_smdone')
        I('s_mov_b64 exec, -1')
    for x in g0: I(x)
    small_dma()
    b1_at = opts.get('b1_at', 99)
    for u in range(7):
        if u == 6:
            I(f's_cmp_ge_u32 s{sK}, 2'); I('s_cbranch_scc1 L_w0done')
        if u == b1_at:
            I(f's_waitcnt vmcnt({0 if opts.get("safe_b1") else max(0, 2*u - 3)})')
            I('s_barrier')
            ST(e, 'b1')
        I(f's_add_u32 s{sT1}, s{sT0}, {u*1352}')
        for R in range(2):
            I(f'buffer_load_dwordx4 {vr(FF+8*u+4*R,4)}, v{vFO+R}, {srd(S_CIN)}, s{sT1} offen')
            if u < 6: F.drain(e, opts.get('gapW0', 0))
    e.label('L_w0done')
    if b1_at >= 7: I(f's_waitcnt vmcnt({25 + ntouch})')
    for _ in range(opts.get('dly_g', 0)): I('s_nop 15')
    mk_srd(e, S_TAB, 6, 3200000)
    I(f'v_and_b32 v{a}, 1, v{vL}')
    I(f'v_lshlrev_b32 v{a}, 4, v{a}')
    for bb in range(4):
        I(f'v_lshl_add_u32 v{vIDX+bb}, v{vIDX+bb}, 5, v{a}')
    I(f's_mul_i32 s{sT0}, s{sK}, {4*XS}')
    I(f's_mov_b64 exec, {sp(sE52)}')
    for bb in range(4):
        I(f's_add_u32 m0, s{sT0}, {XB + bb*XS}')
        I('s_nop 0')
        I(f'buffer_load_dwordx4 v{vIDX+bb}, {srd(S_TAB)}, 0 offen lds')
    I('s_mov_b64 exec, -1')
    ST(e, 'pre1')
    if b1_at >= 7:
        I('s_waitcnt vmcnt(13)')
        I('s_barrier')
        ST(e, 'b1')
    if opts.get('lprio'): I(f's_setprio {opts["lprio"]}')
    for _ in range(opts.get('dly_p', 0)): I('s_nop 15')
    F.drain(e)
    prev = None
    for u in range(7):
        if u == 6:
            I(f's_cmp_ge_u32 s{sK}, 2'); I('s_cbranch_scc1 L_plast')
        n = 2 * (5 - u) + 4 if u <= 5 else 4
        I(f's_waitcnt vmcnt({0 if opts.get("safe_p") else n})')
        f = FF + 8 * u
        unit(e, f, f + 4, EF, EF + 4, DD[u & 1], None if prev is None else (DD[prev & 1], prev, FR_P))
        prev = u
    unit_store(e, DD[6 & 1], 6, FR_P)
    I('s_branch L_pend')
    e.label('L_plast')
    unit_store(e, DD[5 & 1], 5, FR_P)
    e.label('L_pend')
    ST(e, 'units')
    I('s_waitcnt lgkmcnt(0)')
    ST(e, 'fold')
    if opts.get('lprio'): I('s_setprio 0')
    I('s_barrier')
    ST(e, 'b2')
    e.ds_q = []
    if debug == 'fold':
        I('s_branch L_dbg')
    else:
        acc_init_cin(e)
        I('s_waitcnt lgkmcnt(0)')
        main_cin(e, debug, opts)
        I('s_branch L_join')

    e.last = {}; e.ds_q = []
    e.label('L_Upath')
    I(f's_lshl_b32 s{sT2}, s{sK}, 3')
    I(f's_add_u32 s{sT2}, s{sT2}, 52')
    I(f's_add_u32 s{sT3}, s{sT2}, 32')
    I(f's_load_dwordx16 s[{SA}:{SA+15}], s[10:11], 104')
    I(f's_load_dwordx2 s[60:61], s[10:11], s{sT2}')
    I(f's_load_dwordx2 s[62:63], s[10:11], s{sT3}')
    for j in range(2):
        I(f'v_lshl_add_u32 v{fa}, v{vG}, 2, v{vR4}')
        if j:
            I(f'v_add_u32 v{fa}, 16, v{fa}'); I(f'v_min_u32 v{fa}, 25, v{fa}')
        I(f'v_and_b32 v{fb}, 7, v{fa}'); I(f'v_lshlrev_b32 v{fb}, 5, v{fb}'); I(f'v_lshl_add_u32 v{fb}, v{fa}, 9, v{fb}')
        I(f'v_lshl_add_u32 v{fb}, v{vC4}, 3, v{fb}'); I(f'v_add_u32 v{TAD+8*j}, s{sStage}, v{fb}')
        for x in range(1, 8):
            I(f'v_xor_b32 v{TAD+8*j+x}, {x*32}, v{TAD+8*j}')
    for u in range(4, 8):
        for R in range(2): I(f'v_mov_b32 v{UD+8*u+4*R}, 0')
    for dw in range(4): I(f'v_mov_b32 v{SELA+dw}, 0')
    I(f'v_lshlrev_b32 v{a}, 4, v{vL}')
    I(f'v_add_u32 v{a}, {HB}, v{a}')
    I(f'v_cmp_gt_u32 {sp(sMN10)}, 10, v{vN}')
    I(f's_lshl_b32 s{sF0}, s{sK}, 2')
    I(f's_lshl_b32 s{sF1}, 1, s{sF0}')
    I(f's_lshl_b32 s{sF2}, s{sF1}, 16')
    I('s_waitcnt lgkmcnt(0)')
    for q in (13, 14, 15): I(f's_mov_b32 s{SA+q}, 0')
    for g in range(4):
        if g < 2:
            I(f's_mov_b32 exec_lo, s{sF1 if g == 0 else sF2}'); I('s_mov_b32 exec_hi, 0') if g == 0 else None
        else:
            I('s_mov_b32 exec_lo, 0') if g == 2 else None
            I(f's_mov_b32 exec_hi, s{sF1 if g == 2 else sF2}')
        for dw, src in enumerate((2*g, 2*g+1, 8+2*g, 9+2*g)):
            I(f'v_mov_b32 v{SELA+dw}, s{SA+src}')
    I('s_mov_b64 exec, -1')
    I(f's_cmp_le_u32 s{sK}, 2'); I('s_cselect_b32 s62, s62, 0'); I(f's_cmp_le_u32 s{sK}, 1'); I('s_cselect_b32 s63, s63, 0')
    for q in range(4):
        I(f's_lshl_b32 s{SA+2*q}, s{60+q}, 16'); I(f's_and_b32 s{SA+2*q+1}, s{60+q}, 0xffff0000')
    I('s_waitcnt vmcnt(0)')
    ST(e, 'pre1')
    for _ in range(opts.get('dly_u2', 0)): I('s_nop 15')
    for x in f_common_a(): I(x)
    def frag_reads(u, nbuf=4, off=0):
        buf = UB + 8 * (u % nbuf)
        ids = []
        for R in range(2):
            pg = 2 * u + R
            for j in range(2):
                ids.append(I(f'ds_read_b64_tr_b16 {vr(buf+4*R+2*j,2)}, v{TAD+8*j+(pg&7)} offset:{off + (pg>>3)*256}'))
        return ids
    pend = {u: frag_reads(u) for u in range(3)}
    for u in range(8):
        if u == 4:
            I(f's_cmp_eq_u32 s{sK}, 3'); I('s_cbranch_scc1 L_u2done')
        if u == 6:
            I(f's_cmp_eq_u32 s{sK}, 2'); I('s_cbranch_scc1 L_u2done')
        if u + 3 < 8:
            pend[u + 3] = frag_reads(u + 3)
        e.wait_ds(pend[u][-1])
        buf = UB + 8 * (u % 4)
        for R in range(2):
            I(f'v_mfma_f32_16x16x32_bf16 {vr(UD+8*u+4*R,4)}, {vr(SELA,4)}, {vr(buf+4*R,4)}, 0')
    e.label('L_u2done')
    I(f's_mov_b32 s{sX0}, 0xffff')
    I(f's_mov_b32 s{sX0+1}, 0')
    I(f's_lshl_b32 s{sT0}, s{sK}, 4')
    for u in range(4):
        I(f'v_cvt_pk_bf16_f32 v{HF+u}, v{UD+16*u}, v{UD+16*u+8}')
    for u in range(8):
        I(f'v_cndmask_b32 v{UD+8*u+4}, 0, v{UD+8*u+4}, {sp(sMN10)}')
    I('s_mov_b32 exec_lo, 0x04000400'); I('s_mov_b32 exec_hi, 0x04000400')
    for u in range(8):
        I(f'v_mov_b32 v{UD+8*u+4}, s{SA+u}')
    I('s_mov_b64 exec, -1')
    for u in range(4):
        I(f'v_cvt_pk_bf16_f32 v{HF+4+u}, v{UD+16*u+4}, v{UD+16*u+12}')
    I(f's_lshl_b64 exec, {sp(sX0)}, s{sT0}')
    I(f'ds_write_b128 v{a}, {vr(HF,4)}')
    I(f'ds_write_b128 v{a}, {vr(HF+4,4)} offset:1024')
    I('s_mov_b64 exec, -1')
    if opts.get('dnnsetup_early', 1):
        for x in f_setup_dnn(): I(x)
    I('s_waitcnt lgkmcnt(0)')
    I('s_barrier')
    ST(e, 'b1')
    for _ in range(opts.get('dly_t', 0)): I('s_nop 15')
    I(f'ds_read_b128 {vr(HF,4)}, v{a} offset:0')
    I(f'ds_read_b128 {vr(HF+4,4)}, v{a} offset:1024')
    pend = {u: frag_reads(u, off=WS1 - WS2) for u in range(3)}
    prev = None
    for u in range(7):
        if u == 6:
            I(f's_cmp_ge_u32 s{sK}, 2'); I('s_cbranch_scc1 L_tlast')
        if u + 3 < 7:
            pend[u + 3] = frag_reads(u + 3, off=WS1 - WS2)
        e.wait_ds(pend[u][-1])
        g = UB + 8 * (u % 4)
        for dw in range(4):
            I(f'v_cndmask_b32 v{g+4+dw}, 0, v{g+4+dw}, {sp(sMN10)}')
        unit(e, g, g + 4, HF, HF + 4, DD[u & 1], None if prev is None else (DD[prev & 1], prev, FR_Q))
        prev = u
    unit_store(e, DD[6 & 1], 6, FR_Q)
    I('s_branch L_tend')
    e.label('L_tlast')
    unit_store(e, DD[5 & 1], 5, FR_Q)
    e.label('L_tend')
    ST(e, 'units')
    I('s_waitcnt lgkmcnt(0)')
    e.ds_q = []
    if not opts.get('dnnsetup_early', 1):
        for x in f_setup_dnn(): I(x)
    if opts.get('dnn0_early', 1): dma_step(e, 0, 'U0')
    I(f'v_mov_b32 v{vXCA}, {XCNT}')
    I(f'v_mov_b32 v{vONE}, 1')
    acc_init_dnn(e)
    I('s_waitcnt lgkmcnt(0)')
    ST(e, 'fold')
    I('s_barrier')
    ST(e, 'b2')
    e.ds_q = []
    if debug == 'fold':
        e.label('L_dbg')
        I('s_waitcnt vmcnt(0)'); I('s_barrier')
        dump_lds(e)
        return finish(e, opts)
    main_dnn(e, debug, opts)
    final(e, debug, opts)
    return finish(e, opts)

def dma_step(e, step, tag):
    I = e.I
    slot = step % 4
    I(f's_mov_b32 s{sT3}, {step*26624}')
    for u in range(7):
        if u == 6:
            I(f's_cmp_ge_u32 s{sK}, 2'); I(f's_cbranch_scc1 L_dma_{tag}')
        I(f's_add_u32 m0, s{sDma}, {slot*SLOT + u*1024}')
        I('s_nop 0')
        I(f'buffer_load_dwordx4 v{vDMA+u}, {srd(S_W1)}, s{sT3} offen lds')
    e.label(f'L_dma_{tag}')

def unit(e, X0, X1, Y0, Y1, D, prev):
    I = e.I
    mf = []
    def m(dd, A, B, first):
        mf.append(f'v_mfma_f32_16x16x32_bf16 {vr(dd,4)}, {vr(A,4)}, {vr(B,4)}, ' + ('0' if first else vr(dd, 4)))
    m(D, X0, Y0, True); m(D + 4, X1, Y0, True); m(D + 8, X1, Y1, True)
    m(D, Y0, X0, False); m(D + 4, Y1, X0, False); m(D + 8, Y1, X1, False)
    fill = []
    if prev is not None:
        PD, pu, setbase = prev
        for ti in range(3):
            fill.append(f'v_cvt_pk_bf16_f32 v{DC+2*ti}, v{PD+4*ti}, v{PD+4*ti+1}')
            fill.append(f'v_cvt_pk_bf16_f32 v{DC+2*ti+1}, v{PD+4*ti+2}, v{PD+4*ti+3}')
        for ti in range(3):
            fill.append(f'ds_write_b32 v{vWA+ti}, v{DC+2*ti} offset:{setbase + pu*16}')
            fill.append(f'ds_write_b32 v{vWB+ti}, v{DC+2*ti+1} offset:{setbase + pu*16}')
    for i in range(6):
        I(mf[i])
        for f in fill[2*i:2*i+2]:
            I(f)

def unit_store(e, D, u, setbase):
    I = e.I
    for ti in range(3):
        I(f'v_cvt_pk_bf16_f32 v{DC+2*ti}, v{D+4*ti}, v{D+4*ti+1}')
        I(f'v_cvt_pk_bf16_f32 v{DC+2*ti+1}, v{D+4*ti+2}, v{D+4*ti+3}')
    for ti in range(3):
        I(f'ds_write_b32 v{vWA+ti}, v{DC+2*ti} offset:{setbase + u*16}')
        I(f'ds_write_b32 v{vWB+ti}, v{DC+2*ti+1} offset:{setbase + u*16}')

def dump_lds(e):
    I = e.I
    I('v_mbcnt_lo_u32_b32 v1, -1, 0'); I('v_mbcnt_hi_u32_b32 v1, -1, v1')
    I(f's_lshl_b32 s{sT0}, s{sW}, 10')
    I('v_lshlrev_b32 v1, 4, v1')
    I(f'v_add_u32 v1, s{sT0}, v1')
    I(f's_mul_i32 s{sT1}, s2, {LDS_TOTAL}')
    I(f'v_add_u32 v2, s{sT1}, v1')
    I(f's_mov_b32 s{sT2}, 0')
    e.label('L_dump')
    I('ds_read_b128 v[4:7], v1')
    I('s_waitcnt lgkmcnt(0)')
    I('global_store_dwordx4 v2, v[4:7], s[22:23]')
    I('s_waitcnt vmcnt(0)')
    I('v_add_u32 v1, 8192, v1'); I('v_add_u32 v2, 8192, v2')
    I(f's_add_u32 s{sT2}, s{sT2}, 1')
    I(f's_cmp_lt_u32 s{sT2}, 20')
    e.raw('    s_cbranch_scc1 L_dump')

def main_cin(e, debug, opts):
    I = e.I
    steps = step_list()
    hs = opts.get('hsched', [3, 5, 5, 5, 5, 5, 5, 5, 5, 5, 5, 3, 0])
    assert sum(hs) == 56 and len(hs) == 13
    halves = [(s_, X_) for s_ in range(28) for X_ in range(2)]
    sc = []; si = 0
    for n in hs:
        sc.append(halves[si:si + n]); si += n
    XR = [XA, XBB]; ZZ = [ZA, ZBB]
    af_ids = {}
    def af_read(s):
        buf = AF[s & 1]
        I(f'ds_read_b128 {vr(buf,4)}, v{vAF} offset:{FR_P + s*FST}')
        af_ids[s] = I(f'ds_read_b128 {vr(buf+4,4)}, v{vAF} offset:{FR_Q + s*FST}')
    def z_half(X, s, pi):
        aa, bb = steps[s]
        mod = ' div:2' if aa == bb else ''
        t = ZT + 4 * pi
        x = XR[X]
        for qi in range(4):
            if mod: I(f'v_mul_f32_e64 v{t+qi}, v{x+4*aa+pi}, v{x+4*bb+qi}{mod}')
            else: I(f'v_mul_f32 v{t+qi}, v{x+4*aa+pi}, v{x+4*bb+qi}')
        z = ZZ[X][s & 1]
        I(f'v_cvt_pk_bf16_f32 v{z+2*pi}, v{t}, v{t+1}')
        I(f'v_cvt_pk_bf16_f32 v{z+2*pi+1}, v{t+2}, v{t+3}')
    def epilogue():
        t = TMP
        for X in range(2):
            P, Q = ACC[('P', X)], ACC[('Q', X)]
            t = TMP + 4 * X
            I(f'v_mul_f32 v{t}, v{P}, v{Q}')
            I(f'v_mul_f32 v{t+1}, v{P+12}, v{Q+12}')
            I(f'v_mul_f32 v{t+2}, v{P+1}, v{Q+1}')
            I(f'v_fmac_f32 v{t+1}, v{P+13}, v{Q+13}')
            for r in range(2, 12):
                I(f'v_fmac_f32 v{t + 2*(r&1)}, v{P+r}, v{Q+r}')
        I(f'v_cmp_gt_u32 vcc, 32, v{vL}')
        for X in range(2):
            t = TMP + 4 * X
            I(f'v_add_f32 v{t}, v{t}, v{t+2}')
        for X in range(2):
            t = TMP + 4 * X
            I(f'v_cndmask_b32 v{t+1}, 0, v{t+1}, vcc')
        for X in range(2):
            t = TMP + 4 * X
            I(f'v_add_f32 v{t}, v{t}, v{t+1}')
        t = TMP
        I(f'v_and_b32 v{t+2}, 1, v{vG}')
        I(f'v_lshlrev_b32 v{t+2}, 6, v{t+2}')
        I(f'v_lshrrev_b32 v{t+3}, 1, v{vG}')
        I(f'v_lshl_add_u32 v{t+2}, v{t+3}, 2, v{t+2}')
        I(f's_lshl_b32 s{sT0}, s{sK}, 8')
        I(f's_add_u32 s{sT0}, s{sT0}, {RED + 16}')
        I(f'v_add_u32 v{t+2}, s{sT0}, v{t+2}')
        for sh in (8, 4, 2, 1):
            for X in range(2):
                tt = TMP + 4 * X
                I(f'v_add_f32_dpp v{tt}, v{tt}, v{tt} row_ror:{sh} row_mask:0xf bank_mask:0xf')
        I(f's_mov_b32 exec_lo, 0x00010001'); I(f's_mov_b32 exec_hi, 0x00010001')
        I(f'ds_write_b32 v{t+2}, v{TMP}')
        I(f'ds_write_b32 v{t+2}, v{TMP+4} offset:128')
        I('s_mov_b64 exec, -1')
    for j in range(13):
        e.comment(f'---- CIN interval {j}')
        if j == 0:
            I(f'v_mov_b32 v{TMP}, {XCNT}'); I(f'v_mov_b32 v{TMP+1}, 1')
            I('s_waitcnt vmcnt(0)')
            I('s_nop 15')
            if opts.get('cp0', 2): I(f's_setprio {opts.get("cp0", 2)}')
            I('s_mov_b64 exec, 1')
            I(f'ds_add_u32 v{TMP}, v{TMP+1} offset:4')
            I('s_mov_b64 exec, -1')
            I('s_nop 15')
        if j == 1 and opts.get('cp0', 2): I(f's_setprio {opts.get("cp1", 0)}')
        ST(e, f'it{j}')
        if j == 0:
            xa = [I(f'ds_read_b64_tr_b16 {vr(XPA+2*q,2)}, v{vTRX} offset:{128*q}') for q in range(7)]
            xb = [I(f'ds_read_b64_tr_b16 {vr(XPB+2*q,2)}, v{vTRX} offset:{2*XS + 128*q}') for q in range(7)]
            I('s_waitcnt lgkmcnt(0)')
            I('s_mov_b64 exec, 1')
            I(f'ds_add_u32 v{TMP}, v{TMP+1}')
            I('s_mov_b64 exec, -1')
            for _ in range(opts.get('dly_c', 0)): I('s_nop 15')
            if opts.get('safe_x'): I('s_barrier')
            af_read(0); af_read(1)
            for q in range(7):
                for h in range(2):
                    I(f'v_lshlrev_b32 v{XA+4*q+2*h}, 16, v{XPA+2*q+h}')
                    I(f'v_and_b32 v{XA+4*q+2*h+1}, 0xffff0000, v{XPA+2*q+h}')
            z_half(0, 0, 0); z_half(0, 0, 1)
            for q in range(7):
                for h in range(2):
                    I(f'v_lshlrev_b32 v{XBB+4*q+2*h}, 16, v{XPB+2*q+h}')
                    I(f'v_and_b32 v{XBB+4*q+2*h+1}, 0xffff0000, v{XPB+2*q+h}')
            z_half(1, 0, 0); z_half(1, 0, 1)
        for (s, X) in ([] if opts.get('no_cin') else sc[j]):
            if X == 0: e.wait_ds(af_ids[s])
            buf = AF[s & 1]
            z = ZZ[X][s & 1]
            P, Q = ACC[('P', X)], ACC[('Q', X)]
            I(f'v_mfma_f32_32x32x16_bf16 {vr(P,16)}, {vr(buf,4)}, {vr(z,4)}, ' + ('0' if s == 0 else vr(P,16)))
            if s + 1 < 28: z_half(X, s + 1, 0)
            I(f'v_mfma_f32_32x32x16_bf16 {vr(Q,16)}, {vr(buf+4,4)}, {vr(z,4)}, ' + (vr(QI,16) if s == 0 else vr(Q,16)))
            if X == 1 and s + 2 < 28: af_read(s + 2)
            if s + 1 < 28: z_half(X, s + 1, 1)
        if (not sc[j]) and j > 0 and sc[j-1]:
            if opts.get('cpe', 2): I(f's_setprio {opts.get("cpe", 2)}')
            epilogue()
    if sc[12]:
        epilogue()
    I('s_waitcnt lgkmcnt(0)')
    ST(e, 'gelu')

def main_dnn(e, debug, opts):
    I = e.I
    e.last = {}
    I(f's_cmp_ge_u32 s{sK}, 2')
    I('s_cselect_b64 vcc, -1, 0')
    def dma_one(step, u, tag, between=None):
        if u == 6: I(f's_cbranch_vccnz L_d6_{tag}')
        I(f's_add_u32 m0, s{sDma}, {(step % 4)*SLOT + u*1024}')
        if between: between()
        else: I('s_nop 0')
        I(f'buffer_load_dwordx4 v{vDMA+u}, {srd(S_W1)}, s{sT3} offen lds')
        if u == 6: e.label(f'L_d6_{tag}')
    def mf(j, u):
        I(f'v_mfma_f32_16x16x32_bf16 {vr(DACC+4*u,4)}, {vr(XF+4*j,4)}, {vr(WF[j&1]+4*u,4)}, {vr(DACC+4*u,4)}')
    plan = {j: ([j + 3] if j + 3 <= 12 else []) for j in range(13)}
    order = [(st_, u) for st_ in range(3) for u in range(7)]
    tops = {}
    for j in range(13):
        tops[j] = list(order)
        order += [(st_, u) for st_ in plan[j] for u in range(7)]
    def later_count(j, cls7):
        seq = [x for x in tops[j] if cls7 or x[1] < 6]
        jj_ = min(j + 1, 12)
        last = max(i for i, x in enumerate(seq) if x[0] == jj_)
        return len(seq) - 1 - last
    if not opts.get('dnn0_early', 1): dma_step(e, 0, 'C0')
    dma_step(e, 1, 'C1')
    dma_step(e, 2, 'C2')
    e.label('L_xl_dnn')
    I(f'ds_read_b32 v{vXCT}, v{vXCA} offset:4')
    I('s_waitcnt lgkmcnt(0)')
    I(f'v_readfirstlane_b32 s{sT0}, v{vXCT}')
    I(f's_cmp_ge_u32 s{sT0}, 4')
    e.raw('    s_cbranch_scc0 L_xl_dnn')
    ST(e, 'it0')
    for _ in range(opts.get('dly_d', 0)): I('s_nop 15')
    for q in range(13):
        I(f'ds_read_b64 {vr(XF+4*q,2)}, v{vXF} offset:{64*q}')
        I(f'ds_read_b64 {vr(XF+4*q+2,2)}, v{vXF} offset:{64*q+16}')
    I('s_waitcnt lgkmcnt(0)')
    I('s_mov_b64 exec, 1')
    I(f'ds_add_u32 v{vXCA}, v{vONE}')
    I('s_mov_b64 exec, -1')
    for j in range(13):
        e.comment(f'---- DNN interval {j}')
        n7, n6 = later_count(j, True), later_count(j, False)
        if opts.get('safe_dv'): n7 = n6 = 0
        if n7 != n6:
            I(f's_cbranch_vccnz L_vw6_{j}')
            I(f's_waitcnt vmcnt({n7})')
            I(f's_branch L_vwd_{j}')
            e.label(f'L_vw6_{j}')
            I(f's_waitcnt vmcnt({n6})')
            e.label(f'L_vwd_{j}')
        else:
            I(f's_waitcnt vmcnt({n7})')
        if j > 0: ST(e, f'it{j}')
        slot = j % 4
        tb = vT + 4 * (slot >> 1)
        for u in range(7):
            if u == 6: I(f's_cbranch_vccnz L_r6_{j}')
            for jj in range(2):
                I(f'ds_read_b64_tr_b16 {vr(WF[j&1]+4*u+2*jj,2)}, v{tb+2*jj+(u&1)} offset:{(slot&1)*SLOT + (u>>1)*64}')
        e.label(f'L_r6_{j}')
        steps_ = [] if opts.get('no_dma') else plan[j]
        first = steps_[0] if steps_ else None
        if j == 0:
            e.label('L_xspin')
            I(f'ds_read_b32 v{vXCT}, v{vXCA}')
            I('s_waitcnt lgkmcnt(0)')
            I(f'v_readfirstlane_b32 s{sT0}, v{vXCT}')
            I(f's_cmp_ge_u32 s{sT0}, 8')
            e.raw('    s_cbranch_scc0 L_xspin')
            I(f's_mov_b32 s{sT3}, {first*26624}')
            for u in range(7): dma_one(first, u, '0')
        else:
            I('s_waitcnt lgkmcnt(12)')
            if first is not None: I(f's_mov_b32 s{sT3}, {first*26624}')
            for u in range(7):
                if u == 6:
                    I(f's_cbranch_vccnz L_m6_{j}')
                    if first is not None:
                        I(f's_add_u32 m0, s{sDma}, {(first % 4)*SLOT + u*1024}'); mf(j - 1, u)
                        I(f'buffer_load_dwordx4 v{vDMA+u}, {srd(S_W1)}, s{sT3} offen lds')
                    else: mf(j - 1, u)
                    e.label(f'L_m6_{j}')
                elif first is not None:
                    dma_one(first, u, f'{j}', between=lambda: mf(j - 1, u))
                else:
                    mf(j - 1, u)
    I('s_waitcnt lgkmcnt(0)')
    for u in range(7):
        if u == 6: I('s_cbranch_vccnz L_m6_end')
        mf(12, u)
    e.label('L_m6_end')
    ST(e, 'gelu')
    G = TMP
    T = TMP + 4
    C1, C0, ONE = CST, CST + 2, CST + 4
    def gelu(pairs, first):
        def each(fn):
            for k_, (x, u, h) in enumerate(pairs):
                fn(x, T + 2 * k_, u, h, k_)
        each(lambda x, t, u, h, k_: I(f'v_pk_mul_f32 {vr(t,2)}, {vr(x,2)}, {vr(x,2)}'))
        each(lambda x, t, u, h, k_: I(f'v_pk_fma_f32 {vr(t,2)}, {vr(t,2)}, {vr(C1,2)}, {vr(C0,2)}'))
        each(lambda x, t, u, h, k_: I(f'v_pk_mul_f32 {vr(t,2)}, {vr(t,2)}, {vr(x,2)}'))
        each(lambda x, t, u, h, k_: (I(f'v_exp_f32 v{t}, v{t}'), I(f'v_exp_f32 v{t+1}, v{t+1}')))
        each(lambda x, t, u, h, k_: I(f'v_pk_mul_f32 {vr(x,2)}, {vr(x,2)}, {vr(W2V + (u & ~1), 2)} op_sel:[0,{u&1}] op_sel_hi:[1,{u&1}]'))
        each(lambda x, t, u, h, k_: I(f'v_pk_add_f32 {vr(t,2)}, {vr(t,2)}, {vr(ONE,2)}'))
        each(lambda x, t, u, h, k_: (I(f'v_rcp_f32 v{t}, v{t}'), I(f'v_rcp_f32 v{t+1}, v{t+1}')))
        def last(x, t, u, h, k_):
            if first and k_ < 2: I(f'v_pk_mul_f32 {vr(G+2*h,2)}, {vr(t,2)}, {vr(x,2)}')
            else: I(f'v_pk_fma_f32 {vr(G+2*h,2)}, {vr(t,2)}, {vr(x,2)}, {vr(G+2*h,2)}')
        each(last)
    allp = [(DACC + 4*u + 2*h, u, h) for u in range(6) for h in range(2)]
    gelu(allp[0:4], True); gelu(allp[4:8], False); gelu(allp[8:12], False)
    I(f's_cmp_ge_u32 s{sK}, 2'); I(f's_cbranch_scc1 L_g6')
    gelu([(DACC + 24 + 2*h, 6, h) for h in range(2)], False)
    e.label('L_g6')
    I(f'v_lshlrev_b32 v{T}, 8, v{vG}')
    I(f's_lshl_b32 s{sT0}, s{sK}, 2')
    I(f's_add_u32 s{sT0}, s{sT0}, {RED}')
    I(f'v_add_u32 v{T}, s{sT0}, v{T}')
    for sh in (8, 4, 2, 1):
        for r in range(4):
            I(f'v_add_f32_dpp v{G+r}, v{G+r}, v{G+r} row_ror:{sh} row_mask:0xf bank_mask:0xf')
    I(f's_mov_b32 exec_lo, 0x00010001'); I(f's_mov_b32 exec_hi, 0x00010001')
    for r in range(4):
        I(f'ds_write_b32 v{T}, v{G+r} offset:{64*r}')
    I('s_mov_b64 exec, -1')
    I('s_waitcnt lgkmcnt(0)')

def final(e, debug, opts):
    I = e.I
    T = TMP + 4
    e.label('L_join')
    e.last = {}
    if opts.get('pad_line'):
        for q in range(opts['pad_line']): I(f'v_mov_b32 v{60 + (q % 8)}, 0x12345678')
    if opts.get('pad_loop'):
        I(f's_mov_b32 s{sT0}, 0')
        e.label('L_pl')
        for q in range(32): I(f'v_mov_b32 v{60 + (q % 8)}, 0x12345678')
        I(f's_add_u32 s{sT0}, s{sT0}, 1')
        I(f's_cmp_lt_u32 s{sT0}, {opts["pad_loop"]}')
        e.raw('    s_cbranch_scc1 L_pl')
    if opts.get('delay_end'):
        I(f's_mov_b32 s{sT0}, 0')
        e.label('L_dly')
        for _ in range(8): I('s_nop 15')
        I(f's_add_u32 s{sT0}, s{sT0}, 1')
        I(f's_cmp_lt_u32 s{sT0}, {opts["delay_end"]}')
        e.raw('    s_cbranch_scc1 L_dly')
    I('s_barrier')
    if debug == 'red':
        dump_lds(e); return
    if debug == 'stamp':
        ST(e, 'fin')
        ST.flush(e)
        open(sys.argv[1] + '.names', 'w').write(' '.join(ST.names))
        return
    if debug == 'hstamp':
        ST(e, 'fin')
        sel = opts.get('hsel', ['b0', 'pre1', 'b1', 'units', 'b2', 'it0', 'it12', 'fin'])
        I(f's_cmp_eq_u32 s2, {opts.get("hwg", 128)}'); I('s_cbranch_scc0 L_nohs')
        I(f's_and_b32 s{sT0}, s{sW}, 3'); I(f's_cmp_eq_u32 s{sT0}, 0'); I('s_cbranch_scc0 L_nohs')
        I('s_waitcnt lgkmcnt(0)')
        r0 = STAMP_SLOTS[0]
        for i, nm in enumerate(sel):
            r = STAMP_SLOTS[ST.names.index(nm)]
            I(f's_sub_u32 s{sT1}, s{r}, s{r0}')
            I(f'v_writelane_b32 v200, s{sT1}, {i}')
        I(f's_lshl_b32 s{sT0}, s{sW}, 3')
        I(f'v_lshlrev_b32 v201, 2, v{vL}')
        I(f'v_add_u32 v201, s{sT0}, v201')
        I('s_mov_b32 exec_lo, 0xff'); I('s_mov_b32 exec_hi, 0')
        I('global_store_dword v201, v200, s[22:23]')
        I('s_mov_b64 exec, -1')
        I('s_waitcnt vmcnt(0)')
        e.label('L_nohs')
    I(f's_cmp_lg_u32 s{sW}, 0'); I('s_cbranch_scc1 L_end')
    I('s_mov_b32 exec_lo, 0xffff'); I('s_mov_b32 exec_hi, 0')
    I(f'v_lshlrev_b32 v{T}, 6, v{vL}')
    I(f'v_add_u32 v{T}, {RED}, v{T}')
    I(f'ds_read_b128 {vr(8,4)}, v{T}')
    I(f'ds_read_b64 {vr(12,2)}, v{T} offset:16')
    if debug == 'redout':
        I('s_waitcnt lgkmcnt(0)')
        I(f's_lshl_b32 s{sT0}, s2, 9')
        I(f'v_lshlrev_b32 v20, 5, v{vL}')
        I(f'v_add_u32 v20, s{sT0}, v20')
        I('global_store_dwordx4 v20, v[8:11], s[22:23]')
        I('global_store_dwordx2 v20, v[12:13], s[22:23] offset:16')
        I('s_waitcnt vmcnt(0)')
    I(f's_mov_b32 s{S_OUT}, s20'); I(f's_mov_b32 s{S_OUT+1}, s21')
    I(f's_mov_b32 s{S_OUT+2}, 8192'); I(f's_mov_b32 s{S_OUT+3}, 0x20000')
    I(f's_lshl_b32 s{sBO}, s{sBO}, 16')
    I(f's_lshl_b32 s{sT0}, s2, 5')
    I(f'v_lshlrev_b32 v{T+1}, 1, v{vL}')
    I(f'v_add_u32 v{T+1}, s{sT0}, v{T+1}')
    I('s_waitcnt lgkmcnt(0)')
    I('v_add_f32 v8, v8, v9'); I('v_add_f32 v10, v10, v11'); I('v_add_f32 v12, v12, v13')
    I('v_add_f32 v8, v8, v10')
    I(f'v_add_f32 v12, s{sBO}, v12')
    I('v_add_f32 v8, v8, v12')
    I('v_cvt_pk_bf16_f32 v8, v8, v8')
    I(f'buffer_store_short v8, v{T+1}, {srd(S_OUT)}, 0 offen')

def finish(e, opts):
    e.label('L_end')
    body = e.text()
    hdr = f"""; xDeepFM (CIN + DNN) fused kernel, generated by my own generator script.
; One workgroup = 16 batch rows, 8 waves.  CIN layers are folded at run time into two quadratic forms.
; @launch grid=(256,1,1) block=(512,1,1) lds={LDS_TOTAL}
.amdgcn_target "amdgcn-amd-amdhsa--gfx950"
.text
.globl {KN}
.p2align 8
.type {KN},@function
{KN}:
"""
    ftr = f"""    s_endpgm
.section .rodata,"a"
.p2align 6
.amdhsa_kernel {KN}
  .amdhsa_next_free_vgpr 256
  .amdhsa_next_free_sgpr 102
  .amdhsa_accum_offset 256
  .amdhsa_group_segment_fixed_size 0
  .amdhsa_kernarg_size 88
  .amdhsa_user_sgpr_count 2
  .amdhsa_user_sgpr_kernarg_segment_ptr 1
  .amdhsa_system_sgpr_workgroup_id_x 1
  .amdhsa_ieee_mode 0
.end_amdhsa_kernel
"""
    return hdr + body + ftr

if __name__ == '__main__':
    dbg = sys.argv[2] if len(sys.argv) > 2 and sys.argv[2] != 'none' else None
    opts = eval(sys.argv[3]) if len(sys.argv) > 3 else {}
    out = build(dbg, opts)
    open(sys.argv[1], 'w').write(out)
    print('wrote', sys.argv[1], len(out), 'bytes')
```
